```python
import torch

def _softmax(x, axis=-1):
    return torch.softmax(x, dim=axis)
def _gelu(x):
    return torch.nn.functional.gelu(x, approximate="tanh")
def _silu(x):
    return torch.nn.functional.silu(x)
def _sigmoid(x):
    return torch.sigmoid(x)
def _layernorm(x, axis=-1, eps=1e-5):
    m = x.mean(dim=axis, keepdim=True)
    v = x.var(dim=axis, keepdim=True, unbiased=False)
    return (x - m) / torch.sqrt(v + eps)
def _scatter_add(tgt, idx, src, axis=0):
    return tgt.clone().index_add_(axis, idx, src)
def _segment_sum(src, seg, n):
    out = torch.zeros((n,) + src.shape[1:], dtype=src.dtype)
    return out.index_add_(0, seg, src)
def _pad(x, pw):
    flat = tuple(v for pair in reversed(pw) for v in pair)
    return torch.nn.functional.pad(x, flat)

kernel_name = 'standalone__cheap_equivariant_egnn__graph'

def setup_inputs():

    _w = (lambda a: (lambda t: t.to(torch.bfloat16) if t.is_floating_point() else t)(torch.as_tensor(a)))
    N, deg, D, De = 25000, 32, 64, max(0, 1)
    E = N * deg
    return {
        "h": _w((lambda *s: torch.randn(*s, dtype=torch.bfloat16) * 0.2)(N, D)),
        "pos": _w((lambda *s: torch.randn(*s, dtype=torch.bfloat16) * 0.8)(N, 3)),
        "e_attr": _w((lambda *s: torch.randn(*s, dtype=torch.bfloat16) * 0.8)(E, De)),
        "src": _w((lambda lo, hi, *s: torch.randint(lo, hi, s))(0, N, E).to(torch.int64)),
        "dst": _w((lambda lo, hi, *s: torch.randint(lo, hi, s))(0, N, E).to(torch.int64)),
        "w_e": _w(0.1 * (lambda *s: torch.randn(*s, dtype=torch.bfloat16) * 0.8)(2 * D + 1 + De, D)),
        "w_x": _w(0.1 * (lambda *s: torch.randn(*s, dtype=torch.bfloat16) * 0.2)(D, 1)),
        "w_h": _w(0.1 * (lambda *s: torch.randn(*s, dtype=torch.bfloat16) * 0.2)(2 * D, D)),
    }

def reference(h, pos, e_attr, src, dst, w_e, w_x, w_h):
    N, D = h.shape[0], h.shape[1]
    diff = pos[dst] - pos[src]
    dist2 = torch.sum(diff * diff, axis=-1, keepdims=True)
    e_in = torch.concatenate([h[dst], h[src], dist2, e_attr], axis=-1)
    m_ij = _silu(e_in @ w_e)
    coord_scale = m_ij @ w_x
    pos_new = pos + _segment_sum(diff * coord_scale, dst, N)
    m_i = _segment_sum(m_ij, dst, N)
    h_new = h + _silu(torch.concatenate([h, m_i], axis=-1) @ w_h)
    return h_new, pos_new
```

```python
import sys

N = 25000; E = 800000; NPB = 98; NBIN = 256; CH = 3128; NCH = 256
RECB = CH * 8
WS_REC = 0
WS_OFF = 0x620000
WS_POS = 0x660000
WS_WF = 0x6D0000
WS_SZ = 0x800000
LOG2E = 0x3fb8aa3b
NLOG2E = 0xbfb8aa3b
LN2 = 0x3f317218

class Em:
    def __init__(s):
        s.L = []; s.ds = []; s.vm = []; s.nl = 0
    def __call__(s, t):
        for x in t.strip().split("\n"):
            x = x.strip()
            if x: s.L.append("    " + x if not x.endswith(":") else x)
    def lab(s, p="L"):
        s.nl += 1; return f"{p}_{s.nl}"
    def d(s, tag, t):
        s(t); s.ds.append(tag)
    def v(s, tag, t):
        s(t); s.vm.append(tag)
    def _cnt(s, lst, tags):
        idx = max(i for i, t in enumerate(lst) if t in tags)
        return idx, len(lst) - 1 - idx
    def wds(s, *tags):
        if not any(t in s.ds for t in tags): raise Exception(f"wds: no {tags}")
        idx, n = s._cnt(s.ds, tags)
        s(f"s_waitcnt lgkmcnt({min(n,15)})"); s.ds = s.ds[idx + 1:]
    def wvm(s, *tags):
        if not any(t in s.vm for t in tags): raise Exception(f"wvm: no {tags}")
        idx, n = s._cnt(s.vm, tags)
        s(f"s_waitcnt vmcnt({min(n,63)})"); s.vm = s.vm[idx + 1:]
    def wds0(s): s("s_waitcnt lgkmcnt(0)"); s.ds = []
    def wvm0(s): s("s_waitcnt vmcnt(0)"); s.vm = []
    def text(s): return "\n".join(s.L) + "\n"

def vr(a, n): return f"v[{a}:{a+n-1}]"
def sr(a, n): return f"s[{a}:{a+n-1}]"

def srd(e, d, lo, hi, size, add=0, stride=0):
    if add:
        e(f"s_add_u32 s{d}, s{lo}, {add}\ns_addc_u32 s{d+1}, s{hi}, 0\ns_and_b32 s{d+1}, s{d+1}, 0xffff")
    else:
        e(f"s_mov_b32 s{d}, s{lo}\ns_and_b32 s{d+1}, s{hi}, 0xffff")
    if stride: e(f"s_or_b32 s{d+1}, s{d+1}, {stride << 16}")
    e(f"s_mov_b32 s{d+2}, {size}\ns_mov_b32 s{d+3}, 0x00020000")

def wave_scan(e, v):
    for k in (1, 2, 4, 8):
        e(f"s_nop 1\nv_add_u32_dpp v{v}, v{v}, v{v} row_shr:{k} row_mask:0xf bank_mask:0xf bound_ctrl:1")
    e(f"s_nop 1\nv_add_u32_dpp v{v}, v{v}, v{v} row_bcast:15 row_mask:0xa bank_mask:0xf")
    e(f"s_nop 1\nv_add_u32_dpp v{v}, v{v}, v{v} row_bcast:31 row_mask:0xc bank_mask:0xf")

KD = """
.section .rodata,"a"
.p2align 6
.amdhsa_kernel {name}
  .amdhsa_next_free_vgpr {vgpr}
  .amdhsa_next_free_sgpr {sgpr}
  .amdhsa_accum_offset {acc}
  .amdhsa_group_segment_fixed_size 0
  .amdhsa_kernarg_size 88
  .amdhsa_user_sgpr_count 2
  .amdhsa_user_sgpr_kernarg_segment_ptr 1
  .amdhsa_system_sgpr_workgroup_id_x 1
  .amdhsa_float_denorm_mode_32 3
.end_amdhsa_kernel
"""

WS_STAMP = 0x780000
def mk_stamp(e, opt, vreg):
    st = {'n': 0}
    def stamp(name):
        if not opt.get('stamp'): return
        i = st['n']; st['n'] += 1
        e(f"s_memtime s[0:1]\ns_waitcnt lgkmcnt(0)\nv_writelane_b32 v{vreg}, s0, {i}")
        e.ds = []
        opt.setdefault('names', []).append(name)
    def real():
        if not opt.get('stamp'): return
        e(f"s_memrealtime s[0:1]\ns_waitcnt lgkmcnt(0)\nv_writelane_b32 v{vreg}, s0, 31\ns_getreg_b32 s0, hwreg(HW_REG_HW_ID)\nv_writelane_b32 v{vreg}, s0, 30\ns_getreg_b32 s0, hwreg(HW_REG_XCC_ID)\nv_writelane_b32 v{vreg}, s0, 29")
    def fin(swg, swave, nw, srd_, base, vt):
        if not opt.get('stamp'): return
        e(f"""
        s_mov_b32 exec_lo, -1
        s_mov_b32 exec_hi, 0
        s_mul_i32 s0, s{swg}, {nw}
        s_add_u32 s0, s0, s{swave}
        s_lshl_b32 s0, s0, 7
        s_add_u32 s0, s0, {base}
        v_and_b32 v{vt}, 63, v0
        v_lshlrev_b32 v{vt}, 2, v{vt}
        buffer_store_dword v{vreg}, v{vt}, {sr(srd_,4)}, s0 offen
        s_mov_b64 exec, -1
        """)
    return stamp, real, fin

K1_HIST = 0; K1_BASE = 1024; K1_STG = 2048; K1_LDS = 2048 + 26624

def gen_k1(opt):
    e = Em(); nm = "egnn_part_kernel"
    o1 = {'stamp': opt.get('stamp1')}
    stamp, real, fin = mk_stamp(e, o1, 47)
    e(f".globl {nm}\n.p2align 8\n.type {nm},@function\n{nm}:")
    e(f"""
    s_cmp_ge_u32 s2, {NCH}
    s_cbranch_scc1 K1_end
    s_load_dwordx16 s[4:19], s[0:1], 0
    s_load_dwordx2 s[20:21], s[0:1], 80
    v_lshrrev_b32 v1, 6, v0
    s_nop 0
    v_readfirstlane_b32 s3, v1
    s_mul_i32 s22, s2, {CH*4}
    v_lshlrev_b32 v2, 4, v0
    v_lshlrev_b32 v40, 2, v0
    v_mov_b32 v41, 0
    s_waitcnt lgkmcnt(0)
    """)
    srd(e, 36, 20, 21, WS_SZ)
    real(); stamp('start')
    e("s_cmp_ge_u32 s3, 13\ns_cbranch_scc1 K1_side")
    srd(e, 24, 12, 13, E * 4)
    srd(e, 28, 10, 11, E * 4)
    srd(e, 32, 8, 9, E * 2)
    e(f"""
    v_add_u32 v3, s22, v2
    v_lshrrev_b32 v4, 1, v3
    s_mov_b32 s23, {E*4}
    v_cmp_gt_u32 vcc, 782, v0
    v_cmp_gt_u32 s[40:41], s23, v3
    s_nop 1
    s_and_b64 s[40:41], s[40:41], vcc
    s_mov_b64 exec, s[40:41]
    s_cbranch_execz K1_noload
    buffer_load_dwordx4 v[8:11], v3, s[24:27], 0 offen
    buffer_load_dwordx4 v[12:15], v3, s[28:31], 0 offen
    buffer_load_dwordx2 v[16:17], v4, s[32:35], 0 offen
    K1_noload:
    s_mov_b64 exec, -1
    s_mov_b32 s42, 42800
    s_mov_b32 s43, -98
    s_mov_b32 s44, 0xffff0000
    v_mov_b32 v42, 1
    s_cmp_ge_u32 s3, 4
    s_cbranch_scc1 K1_nz
    ds_write_b32 v40, v41 offset:{K1_HIST}
    K1_nz:
    s_waitcnt lgkmcnt(0)
    s_barrier
    """)
    stamp('B0')
    e("s_waitcnt vmcnt(2)")
    stamp('dst')
    for r in range(4): e(f"v_mul_u32_u24 v{20+r}, s42, v{8+r}")
    for r in range(4): e(f"v_lshrrev_b32 v{20+r}, 22, v{20+r}")
    for r in range(4): e(f"v_mad_i32_i24 v{25+2*r}, v{20+r}, s43, v{8+r}")
    for r in range(4): e(f"v_lshlrev_b32 v{20+r}, 2, v{20+r}")
    e("s_mov_b64 exec, s[40:41]")
    for r in range(4): e(f"ds_add_rtn_u32 v{32+r}, v{20+r}, v42 offset:{K1_HIST}")
    e("s_mov_b64 exec, -1")
    for r in range(4): e(f"v_lshlrev_b32 v{25+2*r}, 4, v{25+2*r}")
    e("""
    s_waitcnt vmcnt(0)
    v_lshl_or_b32 v24, v16, 16, v12
    v_and_or_b32 v26, v16, s44, v13
    v_lshl_or_b32 v28, v17, 16, v14
    v_and_or_b32 v30, v17, s44, v15
    v_and_b32 v5, 63, v0
    v_lshlrev_b32 v5, 4, v5
    s_waitcnt lgkmcnt(0)
    """)
    stamp('hist')
    e("s_barrier")
    stamp('B1')
    e(f"""
    ds_read_b128 v[8:11], v5 offset:{K1_HIST}
    s_waitcnt lgkmcnt(0)
    v_add_u32 v12, v8, v9
    v_add_u32 v13, v12, v10
    v_add_u32 v14, v13, v11
    v_mov_b32 v15, v14
    """)
    wave_scan(e, 15)
    e(f"""
    v_sub_u32 v16, v15, v14
    v_add_u32 v17, v16, v8
    v_add_u32 v18, v16, v12
    v_add_u32 v19, v16, v13
    ds_write_b128 v5, v[16:19] offset:{K1_BASE}
    s_mov_b64 exec, s[40:41]
    """)
    for r in range(4): e(f"ds_read_b32 v{36+r}, v{20+r} offset:{K1_BASE}")
    e(f"""
    s_mov_b64 exec, -1
    s_cmp_lg_u32 s3, 12
    s_cbranch_scc1 K1_nooff
    v_lshl_or_b32 v8, v8, 16, v16
    v_lshl_or_b32 v9, v9, 16, v17
    v_lshl_or_b32 v10, v10, 16, v18
    v_lshl_or_b32 v11, v11, 16, v19
    s_lshl_b32 s45, s2, 10
    s_add_u32 s45, s45, {WS_OFF}
    buffer_store_dwordx4 v[8:11], v5, s[36:39], s45 offen
    K1_nooff:
    s_waitcnt lgkmcnt(0)
    """)
    stamp('scan')
    for r in range(4): e(f"v_add_lshl_u32 v{36+r}, v{36+r}, v{32+r}, 3")
    e("s_mov_b64 exec, s[40:41]")
    for r in range(4): e(f"ds_write_b64 v{36+r}, v[{24+2*r}:{25+2*r}] offset:{K1_STG}")
    e(f"""
    s_mov_b64 exec, -1
    s_mul_i32 s45, s2, {RECB}
    s_add_u32 s46, s45, 13312
    s_mov_b32 s47, 732
    v_cmp_gt_u32 s[40:41], s47, v0
    s_waitcnt lgkmcnt(0)
    s_barrier
    """)
    stamp('B2')
    e(f"""
    ds_read_b128 v[12:15], v2 offset:{K1_STG}
    ds_read_b128 v[16:19], v2 offset:{K1_STG+13312}
    s_waitcnt lgkmcnt(1)
    buffer_store_dwordx4 v[12:15], v2, s[36:39], s45 offen
    """)
    if opt.get('stamp1'):
        e("s_waitcnt vmcnt(0)"); stamp('st'); fin(2, 3, 13, 36, 0x7C0000, 46); print(o1['names'])
    e(f"""
    s_mov_b64 exec, s[40:41]
    s_cbranch_execz K1_end
    s_waitcnt lgkmcnt(0)
    buffer_store_dwordx4 v[16:19], v2, s[36:39], s46 offen
    s_endpgm
    """)
    e("K1_side:\ns_cmp_eq_u32 s3, 15\ns_cbranch_scc1 K1_frag")
    srd(e, 24, 6, 7, N * 6)
    e(f"""
    v_subrev_u32 v3, 832, v0
    s_mul_i32 s22, s2, {NPB}
    v_add_u32 v4, s22, v3
    s_mov_b32 s23, {N}
    v_cmp_gt_u32 vcc, {NPB}, v3
    v_cmp_gt_u32 s[40:41], s23, v4
    v_mul_u32_u24 v5, 6, v4
    v_lshlrev_b32 v6, 4, v4
    s_and_b64 exec, s[40:41], vcc
    s_cbranch_execz K1_end
    buffer_load_ushort v8, v5, s[24:27], 0 offen
    buffer_load_ushort v9, v5, s[24:27], 0 offen offset:2
    buffer_load_ushort v10, v5, s[24:27], 0 offen offset:4
    v_mov_b32 v11, 0
    s_mov_b32 s45, {WS_POS}
    s_waitcnt vmcnt(0)
    v_lshlrev_b32 v8, 16, v8
    v_lshlrev_b32 v9, 16, v9
    v_lshlrev_b32 v10, 16, v10
    buffer_store_dwordx4 v[8:11], v6, s[36:39], s45 offen
    s_endpgm
    K1_frag:
    s_cmp_ge_u32 s2, 32
    s_cbranch_scc1 K1_end
    """)
    e("""
    v_and_b32 v3, 31, v0
    v_bfe_u32 v4, v0, 5, 1
    s_and_b32 s40, s2, 3
    s_cmp_ge_u32 s2, 8
    s_cbranch_scc1 K1_f1
    s_lshl_b32 s22, s40, 4
    s_add_u32 s22, s22, 64
    s_mov_b32 s23, 8
    s_lshr_b32 s45, s2, 2
    s_lshl_b32 s45, s45, 5
    s_mov_b32 s24, s14
    s_mov_b32 s25, s15
    s_branch K1_fgo
    K1_f1:
    v_lshrrev_b32 v5, 3, v3
    v_bfe_u32 v6, v3, 2, 1
    v_and_b32 v3, 3, v3
    v_lshl_or_b32 v3, v5, 2, v3
    v_lshl_or_b32 v3, v6, 4, v3
    s_cmp_ge_u32 s2, 16
    s_cbranch_scc1 K1_f2
    s_bfe_u32 s41, s2, 0x10002
    s_mov_b32 s24, s14
    s_mov_b32 s25, s15
    s_branch K1_fh
    K1_f2:
    s_bfe_u32 s41, s2, 0x10003
    s_mov_b32 s24, s18
    s_mov_b32 s25, s19
    s_bitcmp1_b32 s2, 2
    s_cbranch_scc0 K1_fh
    s_lshl_b32 s22, s40, 4
    s_add_u32 s22, s22, 64
    s_mov_b32 s23, 8
    s_lshl_b32 s45, s41, 5
    s_branch K1_fgo
    K1_fh:
    s_lshl_b32 s42, s41, 1
    s_xor_b32 s42, s42, s40
    s_lshr_b32 s22, s42, 1
    s_lshl_b32 s22, s22, 5
    s_and_b32 s42, s42, 1
    s_lshl_b32 s42, s42, 3
    s_add_u32 s22, s22, s42
    s_mov_b32 s23, 16
    s_lshl_b32 s45, s41, 5
    K1_fgo:
    s_and_b32 s25, s25, 0xffff
    s_mov_b32 s26, 16384
    s_mov_b32 s27, 0x00020000
    v_mul_u32_u24 v4, s23, v4
    v_add_u32 v4, s22, v4
    v_add_u32 v3, s45, v3
    v_lshlrev_b32 v3, 1, v3
    v_lshl_add_u32 v3, v4, 7, v3
    """)
    for q in range(8): e(f"buffer_load_ushort v{8+q}, v3, s[24:27], 0 offen offset:{128*q}")
    e(f"v_and_b32 v5, 63, v0\nv_lshlrev_b32 v5, 4, v5\ns_lshl_b32 s45, s2, 10\ns_add_u32 s45, s45, {WS_WF}\ns_waitcnt vmcnt(0)")
    if opt.get('fold'):
        e(f"s_cmp_ge_u32 s2, 8\ns_cbranch_scc1 K1_fns\ns_mov_b32 s46, {LOG2E}")
        for q in range(8): e(f"v_lshlrev_b32 v{8+q}, 16, v{8+q}")
        for q in range(8): e(f"v_mul_f32 v{8+q}, s46, v{8+q}")
        for q in range(4): e(f"v_cvt_pk_bf16_f32 v{16+q}, v{8+2*q}, v{9+2*q}")
        e("s_branch K1_fst\nK1_fns:")
    for q in range(4): e(f"v_lshl_or_b32 v{16+q}, v{9+2*q}, 16, v{8+2*q}")
    e("K1_fst:\nbuffer_store_dwordx4 v[16:19], v5, s[36:39], s45 offen\nK1_end:\ns_endpgm")
    return e.text(), KD.format(name=nm, vgpr=48, acc=48, sgpr=48)

CAP = 3584
L_REC = 0; L_POSD = 29184; L_OHT = 31232; L_HIST = 31392; L_BASE = 31904; L_FLAG = 32416; L_WDA = 32448
L_MM = 33664; L_ACC = 50048; L_PACC = 105488; L_ATAB = 108848; L_STG = 127360; K2_LDS = 160128
ACS = 528; ATS = 144
W2 = 4; HOWN = 36; ACC0 = 52; ACC1 = 68; PRE0 = 84; PRE1 = 100; TMP = 116; MR = 132; HS = 140; AW = 156
OH1A = 164; OH1B = 168; OH2 = 172; IDX = 180; ZQ = 188; RW = 192; PS = 194; PD = 198; WP = 202
vMA = 204; vPI = 205; vRA = 206; vTA = 207; cRA = 208; cTA = 209; cHS = 210; cM = 214; cMW = 216
vAWA = 217; cAW = 218; cF = 219; cP = 220; wx0 = 221; wx1 = 222; T0 = 223
NVG = 232
sH = 24; sPF = 28; sWS = 32; sOUT = 36; sOP = 40; sWE = 44; sWX = 48; sMASK = 56
s_w = 3; s_b = 4; s_nb0 = 5; s_done = 6; s_take = 7; s_T = 8; s_p = 9; s_pn = 10; s_end = 11; s_p8 = 12
s_lim = 13; s_nbN = 14; s_nbCur = 15; s_nbOld = 16; s_flN = 17; s_flush = 18; s_cntN = 19; s_cntCur = 20
s_t0 = 21; s_t1 = 22; s_stg = 23; sMK = 52; sMV = 54; sC = 88; sLO = 90; sQ = 92; s_rb = 94; s_cb = 95; s_o = 96
s_need = 100; s_t2 = 101; s_mkB = 2

def mfma(d, a, b, c=None):
    cs = "0" if c is None else vr(c, 16)
    return f"v_mfma_f32_32x32x16_bf16 {vr(d,16)}, {vr(a,4)}, {vr(b,4)}, {cs}"

def gen_k2(opt):
    fold = opt.get('fold')
    e = Em(); nm = "egnn_main_kernel"
    stamp, real, fin = mk_stamp(e, opt, 232)
    e(f".globl {nm}\n.p2align 8\n.type {nm},@function\n{nm}:")
    e(f"""
    s_cmp_ge_u32 s2, {NBIN}
    s_cbranch_scc1 K2_end
    s_load_dwordx2 s[56:57], s[0:1], 80
    s_load_dwordx2 s[58:59], s[0:1], 0
    s_load_dwordx4 s[60:63], s[0:1], 40
    s_load_dwordx2 s[64:65], s[0:1], 64
    v_lshrrev_b32 v2, 6, v0
    v_and_b32 v1, 63, v0
    v_readfirstlane_b32 s{s_w}, v2
    s_and_b32 s{s_b}, s2, 7
    s_lshl_b32 s{s_b}, s{s_b}, 5
    s_lshr_b32 s{s_t0}, s2, 3
    s_add_u32 s{s_b}, s{s_b}, s{s_t0}
    s_mul_i32 s{s_nb0}, s{s_b}, {NPB}
    s_lshr_b32 s{s_rb}, s{s_w}, 1
    s_and_b32 s{s_cb}, s{s_w}, 1
    s_lshl_b32 s{s_stg}, s{s_w}, 12
    s_add_u32 s{s_stg}, s{s_stg}, {L_STG}
    s_mov_b32 s{s_done}, 0
    s_mov_b32 s{s_take}, 32
    v_lshrrev_b32 v2, 3, v1
    v_and_b32 v3, 7, v1
    s_waitcnt lgkmcnt(0)
    """)
    srd(e, sWS, 56, 57, WS_SZ)
    real(); stamp('start')
    OFFV = 148; cREC = 152; vT2D = 153; tA = 154; tB = 155
    RECV = PRE0; HADR = TMP; RANK = MR; vMX = T0 + 8
    def offs_loads():
        e(f"""
        v_lshlrev_b32 v{tA}, 10, v2
        s_lshl_b32 s{s_t0}, s{s_w}, 15
        s_lshl_b32 s{s_t1}, s{s_b}, 2
        s_add_u32 s{s_t0}, s{s_t0}, s{s_t1}
        s_add_u32 s{s_o}, s{s_t0}, {WS_OFF}
        s_add_u32 s{s_o+1}, s{s_o}, 8192
        s_add_u32 s{s_o+2}, s{s_o}, 16384
        s_add_u32 s{s_o+3}, s{s_o}, 24576
        """)
        for i in range(4):
            e.v('off', f"buffer_load_dword v{OFFV+i}, v{tA}, {sr(sWS,4)}, s{s_o+i} offen")
    def rec_loads(first=False):
        e(f"""
        s_mov_b32 s{s_t0}, {RECB}
        v_mul_u32_u24 v{cREC}, s{s_t0}, v2
        v_lshl_add_u32 v{cREC}, v3, 4, v{cREC}
        v_lshl_add_u32 v{vT2D}, v3, 1, s{s_done}
        s_mul_i32 s{s_o}, s{s_w}, {32*RECB}
        s_add_u32 s{s_o+1}, s{s_o}, {8*RECB}
        s_add_u32 s{s_o+2}, s{s_o}, {16*RECB}
        s_add_u32 s{s_o+3}, s{s_o}, {24*RECB}
        """)
        e.wvm('off')
        if first: stamp('offs')
        for i in range(4):
            m = sMASK + 8 * i
            e(f"""
            v_lshrrev_b32 v{tB}, 16, v{OFFV+i}
            v_and_b32 v{tA}, 0xffff, v{OFFV+i}
            v_sub_u32 v{HADR+i}, v{tB}, v{vT2D}
            v_add_u32 v{tA}, s{s_done}, v{tA}
            v_cmp_lt_i32 {sr(m,2)}, 0, v{HADR+i}
            v_cmp_lt_i32 {sr(m+4,2)}, 16, v{HADR+i}
            v_lshl_add_u32 v{RANK+i}, v{tA}, 3, v{cREC}
            v_cmp_lt_i32 {sr(m+2,2)}, 1, v{HADR+i}
            v_cmp_lt_i32 {sr(m+6,2)}, 17, v{HADR+i}
            """)
            if i == 0: e(f"v_mov_b32 v{vMX}, v{tB}")
            else: e(f"v_max_u32 v{vMX}, v{vMX}, v{tB}")
            e(f"s_or_b64 exec, {sr(m,2)}, 1")
            e.v('rec', f"buffer_load_dwordx4 {vr(RECV+8*i,4)}, v{RANK+i}, {sr(sWS,4)}, s{s_o+i} offen")
            e(f"s_or_b64 exec, {sr(m+4,2)}, 1")
            e.v('rec', f"buffer_load_dwordx4 {vr(RECV+8*i+4,4)}, v{RANK+i}, {sr(sWS,4)}, s{s_o+i} offen offset:128")
            e("s_mov_b64 exec, -1")
    offs_loads()
    srd(e, sH, 58, 59, N, stride=128)
    srd(e, sPF, 56, 57, N + 216, add=WS_POS, stride=16)
    srd(e, sWE, 60, 61, 130 * 128)
    srd(e, sWX, 62, 63, 128)
    srd(e, sOUT, 64, 65, N * 128)
    srd(e, sOP, 64, 65, N * 6, add=N * 128)
    e(f"""
    s_lshl_b32 s{s_t0}, s{s_rb}, 5
    s_add_u32 s{s_t0}, s{s_t0}, s{s_nb0}
    v_lshrrev_b32 v{tA}, 4, v1
    v_xor_b32 v{tB}, v3, v{tA}
    v_lshlrev_b32 v{IDX+1}, 4, v{tB}
    v_xor_b32 v{IDX+3}, 64, v{IDX+1}
    v_mov_b32 v{IDX+5}, v{IDX+1}
    v_mov_b32 v{IDX+7}, v{IDX+3}
    v_add_u32 v{IDX}, s{s_t0}, v2
    v_add_u32 v{IDX+2}, 8, v{IDX}
    v_add_u32 v{IDX+4}, 16, v{IDX}
    v_add_u32 v{IDX+6}, 24, v{IDX}
    """)
    def dma4(tag):
        r = []
        for j in range(4):
            r.append((f"s_add_u32 m0, s{s_stg}, {1024*j}" if j else f"s_mov_b32 m0, s{s_stg}",
                      f"buffer_load_dwordx4 {vr(IDX+2*j,2)}, {sr(sH,4)}, 0 idxen offen lds"))
        return r
    for a, b in dma4('hown'):
        e(a); e("s_nop 0"); e.v('hown', b)
    e(f"v_lshlrev_b32 v{T0}, 4, v1\ns_lshl_b32 s{s_t0}, s{s_cb}, 12\ns_add_u32 s{s_t0}, s{s_t0}, {WS_WF+8192}")
    for s_ in range(4):
        e.v('w1', f"buffer_load_dwordx4 {vr(ACC1+4*s_,4)}, v{T0}, {sr(sWS,4)}, s{s_t0} offen offset:{1024*s_}")
    e(f"""
    s_cmp_lt_u32 s{s_w}, 6
    s_cbranch_scc1 K2_nopd
    s_sub_u32 s{s_t0}, s{s_w}, 6
    s_lshl_b32 s{s_t1}, s{s_t0}, 6
    s_add_u32 s{s_t1}, s{s_t1}, s{s_nb0}
    v_add_u32 v{T0+1}, s{s_t1}, v1
    s_lshl_b32 s{s_t0}, s{s_t0}, 10
    s_add_u32 m0, s{s_t0}, {L_POSD}
    s_nop 0
    buffer_load_dwordx4 v{T0+1}, {sr(sPF,4)}, 0 idxen lds
    K2_nopd:
    v_lshlrev_b32 v{T0+1}, 1, v1
    s_cmp_lg_u32 s{s_w}, 5
    s_cbranch_scc1 K2_nowd
    s_mov_b32 s{s_t0}, 16384
    buffer_load_ushort v{T0+2}, v{T0+1}, {sr(sWE,4)}, s{s_t0} offen
    buffer_load_ushort v{T0+3}, v{T0+1}, {sr(sWE,4)}, s{s_t0} offen offset:128
    K2_nowd:
    """)
    e(f"""
    v_mov_b32 v{ZQ}, 0
    v_mov_b32 v{ZQ+1}, 0
    v_mov_b32 v{ZQ+2}, 0
    v_mov_b32 v{ZQ+3}, 0
    v_lshlrev_b32 v{T0+4}, 4, v0
    v_add_u32 v{T0+5}, {L_OHT+32768}, v{T0+4}
    """)
    for r in range(4): e(f"ds_write_b128 v{T0+4}, {vr(ZQ,4)} offset:{L_OHT+8192*r}")
    for r in range(6): e(f"ds_write_b128 v{T0+5}, {vr(ZQ,4)} offset:{8192*r}")
    rec_loads(True)
    e(f"s_mov_b32 s{s_t0}, {WS_WF}\ns_mov_b32 s{s_t1}, {WS_WF+4096}")
    for f in range(8):
        e.v('w2', f"buffer_load_dwordx4 {vr(W2+4*f,4)}, v{T0}, {sr(sWS,4)}, s{s_t0 if f<4 else s_t1} offen offset:{1024*(f&3)}")
    e(f"v_and_b32 v{T0+6}, 31, v1\nv_lshlrev_b32 v{T0+7}, 1, v{T0+6}")
    e.v('wx', f"buffer_load_ushort v{wx0}, v{T0+7}, {sr(sWX,4)}, 0 offen")
    e.v('wx', f"buffer_load_ushort v{wx1}, v{T0+7}, {sr(sWX,4)}, 0 offen offset:64")
    rho = T0 + 6; hb = T0 + 7
    e(f"""
    v_lshrrev_b32 v{hb}, 5, v1
    v_lshlrev_b32 v{cRA}, 3, v1
    v_lshlrev_b32 v{cTA}, 3, v2
    v_bfe_u32 v{T0+4}, v1, 1, 3
    v_lshl_add_u32 v{T0+5}, v{rho}, 7, s{s_stg}
    """)
    for s_ in range(4):
        e(f"v_or_b32 v{cHS+s_}, {2*s_}, v{hb}\nv_xor_b32 v{cHS+s_}, v{cHS+s_}, v{T0+4}\nv_lshl_add_u32 v{cHS+s_}, v{cHS+s_}, 4, v{T0+5}")
    e(f"s_lshl_b32 s{s_t0}, s{s_cb}, 2\nv_lshlrev_b32 v{AW+4}, 1, v{hb}\nv_xor_b32 v{AW+4}, s{s_t0}, v{AW+4}\nv_xor_b32 v{AW+4}, v{AW+4}, v{T0+4}")
    for s_ in range(4):
        k = 4 * (s_ >> 1) + (s_ & 1)
        e(f"v_xor_b32 v{AW+s_}, {k}, v{AW+4}\nv_lshl_add_u32 v{AW+s_}, v{AW+s_}, 4, v{T0+5}")
    e(f"""
    s_lshl_b32 s{s_t0}, s{s_w}, 11
    s_add_u32 s{s_t0}, s{s_t0}, {L_MM}
    v_lshl_add_u32 v{cMW}, v{rho}, 6, s{s_t0}
    v_lshl_or_b32 v{cMW}, v{T0+4}, 3, v{cMW}
    v_mov_b32 v{vMA}, v{cMW}
    v_bfe_u32 v{OH2}, v1, 2, 2
    v_lshl_or_b32 v{OH2+1}, v{hb}, 2, v{OH2}
    v_bfe_u32 v{OH2+2}, v1, 4, 1
    v_and_b32 v{OH2+3}, 3, v1
    v_lshl_or_b32 v{OH2+4}, v{OH2+2}, 2, v{OH2+3}
    v_lshrrev_b32 v{OH2+5}, 1, v{OH2+1}
    v_xor_b32 v{OH2+5}, v{OH2+5}, v{OH2+4}
    v_lshl_add_u32 v{OH2+6}, v{OH2+1}, 6, s{s_t0}
    v_lshl_add_u32 v{cM}, v{OH2+5}, 3, v{OH2+6}
    v_xor_b32 v{OH2+5}, 4, v{OH2+5}
    v_lshl_add_u32 v{cM+1}, v{OH2+5}, 3, v{OH2+6}
    v_add_u32 v{cM+1}, 512, v{cM+1}
    v_mul_u32_u24 v{cAW}, {ATS}, v{OH2}
    v_lshl_add_u32 v{cAW}, v{OH2+4}, 3, v{cAW}
    v_mov_b32 v{OH2+5}, {L_WDA}
    v_mov_b32 v{OH2+6}, {L_ATAB}
    v_cmp_gt_u32 vcc, 32, v1
    s_mov_b32 s{sLO}, -1
    s_mov_b32 s{sLO+1}, 0
    v_cndmask_b32 v{OH2+5}, v{OH2+5}, v{OH2+6}, vcc
    v_add_u32 v{cAW}, v{cAW}, v{OH2+5}
    v_mov_b32 v{vAWA}, v{cAW}
    v_mul_u32_u24 v{cF}, {ACS}, v{hb}
    v_lshl_add_u32 v{cF}, v{rho}, 3, v{cF}
    v_add_u32 v{cF}, {L_ACC}, v{cF}
    v_lshl_or_b32 v{cP}, v{OH2}, 1, v{hb}
    v_lshlrev_b32 v{cP}, 5, v{cP}
    v_add_u32 v{cP}, {L_PACC}, v{cP}
    s_mov_b32 s{sQ}, 0x11111111
    s_mov_b32 s{sQ+1}, 0x11111111
    s_mov_b32 s{sC}, {NLOG2E}
    s_mov_b32 s{sC+1}, {NLOG2E}
    s_waitcnt lgkmcnt(0)
    s_barrier
    """)
    e.ds = []
    stamp('B0')
    e.wvm('w1')
    for s_ in range(4): e.d('hown', f"ds_read_b128 {vr(HOWN+4*s_,4)}, v{AW+s_}")
    e(f"""
    s_cmp_lg_u32 s{s_w}, 4
    s_cbranch_scc1 K2_nooh
    v_mul_u32_u24 v{T0+4}, 18, v1
    v_mov_b32 v{T0+5}, 0x3f80
    s_mov_b64 exec, 0xff
    ds_write_b16 v{T0+4}, v{T0+5} offset:{L_OHT}
    s_mov_b64 exec, -1
    K2_nooh:
    s_cmp_lg_u32 s{s_w}, 5
    s_cbranch_scc1 K2_nowd2
    """)
    if not fold:
        e(f"ds_write_b16 v{T0+1}, v{T0+2} offset:{L_WDA}\nds_write_b16 v{T0+1}, v{T0+3} offset:{L_WDA+ATS}")
    else:
        e(f"""
        s_mov_b32 s{s_t0}, {LOG2E}
        v_lshlrev_b32 v{T0+2}, 16, v{T0+2}
        v_lshlrev_b32 v{T0+3}, 16, v{T0+3}
        v_mul_f32 v{T0+2}, s{s_t0}, v{T0+2}
        v_mul_f32 v{T0+3}, s{s_t0}, v{T0+3}
        v_cvt_pk_bf16_f32 v{T0+4}, v{T0+2}, v{T0+3}
        v_lshlrev_b32 v{T0+5}, 16, v{T0+4}
        v_sub_f32 v{T0+2}, v{T0+2}, v{T0+5}
        v_and_b32 v{T0+5}, 0xffff0000, v{T0+4}
        v_sub_f32 v{T0+3}, v{T0+3}, v{T0+5}
        v_cvt_pk_bf16_f32 v{T0+5}, v{T0+2}, v{T0+3}
        ds_write_b16 v{T0+1}, v{T0+4} offset:{L_WDA}
        ds_write_b16_d16_hi v{T0+1}, v{T0+4} offset:{L_WDA+ATS}
        ds_write_b16 v{T0+1}, v{T0+5} offset:{L_WDA+2*ATS}
        ds_write_b16_d16_hi v{T0+1}, v{T0+5} offset:{L_WDA+3*ATS}
        """)
    e("K2_nowd2:")
    e(f"""
    s_lshl_b32 s{s_t0}, s{s_rb}, 5
    v_add_u32 v{T0+4}, s{s_t0}, v{rho}
    v_mul_u32_u24 v{T0+4}, {ATS}, v{T0+4}
    s_lshl_b32 s{s_t0}, s{s_cb}, 6
    s_add_u32 s{s_t0}, s{s_t0}, {L_ATAB}
    v_lshl_add_u32 v{T0+4}, v{hb}, 5, v{T0+4}
    v_add_u32 v{T0+4}, s{s_t0}, v{T0+4}
    """)
    e.wds0()
    for s_ in range(4): e(mfma(ACC0, ACC1 + 4 * s_, HOWN + 4 * s_, None if s_ == 0 else ACC0))
    for r in list(range(OH1A, OH1A + 8)) + list(range(OH2, OH2 + 8)): e(f"v_mov_b32 v{r}, 0")
    e("s_nop 3")
    if fold:
        e(f"s_mov_b32 s{s_t0}, {LOG2E}")
        for r in range(16): e(f"v_mul_f32 v{ACC0+r}, s{s_t0}, v{ACC0+r}")
    for r in range(8): e(f"v_cvt_pk_bf16_f32 v{AW+r}, v{ACC0+2*r}, v{ACC0+2*r+1}")
    e(f"ds_write_b128 v{T0+4}, {vr(AW,4)}\nds_write_b128 v{T0+4}, {vr(AW+4,4)} offset:16")
    for r in range(32): e(f"v_mov_b32 v{ACC0+r}, 0")
    stamp('atab')
    e.wvm('rec')
    stamp('rec')
    slots = [(i, ld, u) for i in range(4) for ld in range(2) for u in range(2)]
    def sreg(k): i, ld, u = slots[k]; return RECV + 8 * i + 4 * ld + 2 * u
    def smask(k): i, ld, u = slots[k]; return sMASK + 8 * i + 4 * ld + 2 * u
    e("K2_hist:")
    e(f"v_mov_b32 v{tA}, 1")
    for k in range(16): e(f"v_lshrrev_b32 v{HADR+k}, 2, v{sreg(k)+1}")
    order = [k for k in range(16) if slots[k][1] == 0] + [k for k in range(16) if slots[k][1] == 1]
    for k in order:
        e(f"s_mov_b64 exec, {sr(smask(k),2)}\nds_add_rtn_u32 v{RANK+k}, v{HADR+k}, v{tA} offset:{L_HIST}")
    e(f"""
    s_mov_b64 exec, -1
    s_waitcnt lgkmcnt(0)
    s_barrier
    """)
    stamp('B1')
    e(f"""
    ds_read_b64 v[{OFFV}:{OFFV+1}], v{cRA} offset:{L_HIST}
    s_waitcnt lgkmcnt(0)
    v_add_u32 v{tA}, v{OFFV}, v{OFFV+1}
    v_mov_b32 v{tB}, v{tA}
    """)
    wave_scan(e, tB)
    e(f"""
    v_sub_u32 v{OFFV+2}, v{tB}, v{tA}
    v_readlane_b32 s{s_T}, v{tB}, 63
    v_add_u32 v{OFFV+3}, v{OFFV+2}, v{OFFV}
    ds_write_b64 v{cRA}, v[{OFFV+2}:{OFFV+3}] offset:{L_BASE}
    s_cmp_gt_u32 s{s_T}, {CAP}
    s_cbranch_scc1 K2_retry
    """)
    BASV = PS
    BASV = HS
    for k in order:
        e(f"s_mov_b64 exec, {sr(smask(k),2)}\nds_read_b32 v{HADR+k}, v{HADR+k} offset:{L_BASE}")
    e(f"""
    s_mov_b64 exec, -1
    s_add_u32 s{s_t0}, s{s_done}, s{s_take}
    v_cmp_lt_u32 vcc, s{s_t0}, v{vMX}
    s_add_u32 s{s_t1}, s{s_T}, 31
    s_lshr_b32 s{s_t1}, s{s_t1}, 5
    s_cbranch_vccz K2_noflag
    v_mov_b32 v{tA}, 1
    v_mov_b32 v{tB}, {L_FLAG}
    ds_write_b32 v{tB}, v{tA}
    K2_noflag:
    s_lshr_b32 s{s_t0}, s{s_t1}, 3
    s_and_b32 s{s_t1}, s{s_t1}, 7
    s_mul_i32 s{s_p}, s{s_w}, s{s_t0}
    s_min_u32 s{s_t2}, s{s_w}, s{s_t1}
    s_add_u32 s{s_p}, s{s_p}, s{s_t2}
    s_add_u32 s{s_end}, s{s_p}, s{s_t0}
    s_cmp_lt_u32 s{s_w}, s{s_t1}
    s_addc_u32 s{s_end}, s{s_end}, 0
    s_lshl_b32 s{s_p}, s{s_p}, 5
    s_lshl_b32 s{s_end}, s{s_end}, 5
    s_min_u32 s{s_end}, s{s_end}, s{s_T}
    s_lshl_b32 s{s_t0}, s{s_T}, 3
    v_add_u32 v{tA}, s{s_t0}, v{cRA}
    s_cmp_lg_u32 s{s_w}, 7
    s_cbranch_scc1 K2_nopad
    ds_write_b64 v{tA}, v[{ZQ}:{ZQ+1}] offset:{L_REC}
    K2_nopad:
    s_waitcnt lgkmcnt(0)
    """)
    for k in range(16): e(f"v_add_lshl_u32 v{HADR+k}, v{HADR+k}, v{RANK+k}, 3")
    for k in order:
        e(f"s_mov_b64 exec, {sr(smask(k),2)}\nds_write_b64 v{HADR+k}, v[{sreg(k)}:{sreg(k)+1}] offset:{L_REC}")
    e(f"s_mov_b64 exec, -1")
    for r in range(8): e(f"v_mov_b32 v{MR+r}, 0")
    e(f"s_waitcnt vmcnt(0) lgkmcnt(0)")
    e(f"s_cmp_lg_u32 s{s_done}, 0\ns_cbranch_scc1 K2_nowx\nv_lshlrev_b32 v{wx0}, 16, v{wx0}\nv_lshlrev_b32 v{wx1}, 16, v{wx1}")
    if fold: e(f"v_mul_f32 v{wx0}, {LN2}, v{wx0}\nv_mul_f32 v{wx1}, {LN2}, v{wx1}")
    e("K2_nowx:\ns_barrier")
    e.ds = []; e.vm = []
    stamp('B2')
    e(f"s_cmp_ge_u32 s{s_p}, s{s_end}\ns_cbranch_scc1 K2_wavedone")

    def rec_read():
        e(f"v_add_u32 v{vRA}, s{s_p8}, v{cRA}\nv_add_u32 v{vTA}, s{s_p8}, v{cTA}")
        e.d('rw', f"ds_read_b64 v[{RW}:{RW+1}], v{vRA} offset:{L_REC}")
        e.d('rw', f"ds_read_u16 v{vPI}, v{vRA} offset:{L_REC}")
    def window():
        e.wds('rw')
        e.v('ps', f"buffer_load_dwordx3 {vr(PS,3)}, v{vPI}, {sr(sPF,4)}, 0 idxen")
        e.d('pd', f"ds_read_b128 {vr(PD,4)}, v{RW+1} offset:{L_POSD}")
        l = e.lab("K2_win")
        e(f"""
        v_cmp_gt_u32 vcc, s{s_lim}, v{RW+1}
        s_sub_u32 s{s_t0}, s{s_end}, s{s_p}
        s_min_u32 s{s_need}, s{s_t0}, 64
        s_bfm_b64 {sr(sMV,2)}, s{s_t0}, 0
        s_cmp_ge_u32 s{s_t0}, 64
        s_cselect_b64 {sr(sMV,2)}, -1, {sr(sMV,2)}
        s_mov_b32 s{s_flN}, 0
        s_and_b64 {sr(sMK,2)}, vcc, {sr(sMV,2)}
        s_bcnt1_i32_b64 s{s_cntN}, {sr(sMK,2)}
        s_cmp_eq_u32 s{s_cntN}, s{s_need}
        s_cbranch_scc1 {l}
        v_readfirstlane_b32 s{s_nbN}, v{RW+1}
        s_mov_b32 s{s_flN}, 1
        s_add_u32 s{s_lim}, s{s_nbN}, 128
        v_cmp_gt_u32 vcc, s{s_lim}, v{RW+1}
        s_nop 0
        s_and_b64 {sr(sMK,2)}, vcc, {sr(sMV,2)}
        s_bcnt1_i32_b64 s{s_cntN}, {sr(sMK,2)}
        {l}:
        s_add_u32 s{s_pn}, s{s_p}, s{s_cntN}
        """)
    def idx_read(off):
        for j in range(4): e.d('idx', f"ds_read_u16 v{IDX+2*j}, v{vTA} offset:{L_REC+off+64*j}")
    def hs_read():
        for s_ in range(4): e.d('hs', f"ds_read_b128 {vr(HS+4*s_,4)}, v{cHS+s_}")
    def oh2_read(grp):
        for s_ in range(2):
            for t in range(2):
                e.d('oh2', f"ds_read_b64_tr_b16 {vr(OH2+4*s_+2*t,2)}, v{cM+t} offset:{1024*s_}")
    def aw_read():
        e(f"s_mul_i32 s{s_t0}, s{s_nbN}, {ATS//16}\ns_mov_b64 exec, {sr(sLO,2)}\nv_add_u32 v{vAWA}, s{s_t0}, v{cAW}\ns_mov_b64 exec, -1")
        for blk in range(2):
            for t in range(2):
                e.d('aw', f"ds_read_b64_tr_b16 {vr(AW+4*blk+2*t,2)}, v{vAWA} offset:{4*ATS*t+64*blk}")
    def misc_list():
        t0, t1, t2, t3, t4 = T0, T0 + 1, T0 + 2, T0 + 3, T0 + 4
        L = [lambda: e.d('mc', f"ds_write_b64 v{vMA}, v[{ZQ}:{ZQ+1}]"),
             f"v_subrev_u32 v{t0}, s{s_nbN}, v{RW+1}",
             f"v_sub_f32 v{t1}, v{PD}, v{PS}",
             f"v_sub_f32 v{t2}, v{PD+1}, v{PS+1}",
             f"v_sub_f32 v{t3}, v{PD+2}, v{PS+2}",
             f"v_min_u32 v{OH1A}, 0x80, v{t0}",
             f"v_mul_f32 v{t4}, v{t1}, v{t1}",
             f"v_lshrrev_b32 v{t0}, 1, v{OH1A}",
             f"v_fmac_f32 v{t4}, v{t2}, v{t2}",
             f"v_cvt_pk_bf16_f32 v{WP}, 1.0, v{t1}",
             f"v_fmac_f32 v{t4}, v{t3}, v{t3}",
             f"v_cvt_pk_bf16_f32 v{WP+1}, v{t2}, v{t3}",
             f"v_cvt_pk_bf16_f32 v{OH1B}, v{t4}, v{RW}",
             f"v_xor_b32 v{vMA}, v{t0}, v{cMW}",
             f"s_and_b64 exec, {sr(sMK,2)}, {sr(sLO,2)}\ns_mov_b32 s{s_mkB}, s{sMK+1}",
             f"ds_write_b64 v{vMA}, v[{WP}:{WP+1}]",
             f"s_mov_b64 exec, -1\nv_permlane32_swap_b32 v{OH1A}, v{OH1B}"]
        if fold:
            L.append(f"v_mov_b32 v{OH1A+1}, v{OH1A}\nv_mov_b32 v{OH1B+1}, v{OH1B}")
        L += [f"s_mov_b64 exec, {sr(sLO,2)}",
              lambda: e.d('oh1', f"ds_read_b128 {vr(OH1A,4)}, v{OH1A} offset:{L_OHT}"),
              lambda: e.d('oh1', f"ds_read_b128 {vr(OH1B,4)}, v{OH1B} offset:{L_OHT}"),
              "s_mov_b64 exec, -1"]
        return L
    def m_b():
        e.d('mc', f"ds_write_b64 v{vMA}, v[{ZQ}:{ZQ+1}]")
        e(f"s_mov_b32 exec_lo, 0\ns_mov_b32 exec_hi, s{s_mkB}\nds_write_b64 v{vMA}, v[{WP}:{WP+1}]\ns_mov_b64 exec, -1")
    def run(L):
        for x in L:
            if callable(x): x()
            else: e(x)
    def flush(snb):
        e(f"s_mul_i32 s{s_t0}, s{snb}, {ACS//16}\nv_add_u32 v{T0}, s{s_t0}, v{cF}\nv_lshl_add_u32 v{T0+1}, s{snb}, 1, v{cP}")
        for j in range(4):
            e(f"v_cvt_f64_f32 {vr(TMP+4*j,2)}, v{ACC0+4*j}\nv_cvt_f64_f32 {vr(TMP+4*j+2,2)}, v{ACC1+4*j}")
        for j in range(4):
            e(f"ds_add_f64 v{T0}, {vr(TMP+4*j,2)} offset:{2*ACS*j}\nds_add_f64 v{T0}, {vr(TMP+4*j+2,2)} offset:{2*ACS*j+256}")
        R = [4 * j + 1 + c for j in range(4) for c in range(3)]
        for r in R: e(f"v_mul_f32 v{ACC0+r}, v{ACC0+r}, v{wx0}")
        for r in R: e(f"v_fmac_f32 v{ACC0+r}, v{ACC1+r}, v{wx1}")
        lo = [ACC0 + 4 * j + 1 + c for j in range(2) for c in range(3)]
        for r in lo: e(f"v_add_f32_dpp v{r}, v{r}, v{r} row_ror:8 row_mask:0xf bank_mask:0x3")
        for r in lo: e(f"v_add_f32_dpp v{r}, v{r+8}, v{r+8} row_ror:8 row_mask:0xf bank_mask:0xc")
        lo = [ACC0 + 1 + c for c in range(3)]
        for r in lo: e(f"v_add_f32_dpp v{r}, v{r}, v{r} row_half_mirror row_mask:0xf bank_mask:0x5")
        for r in lo: e(f"v_add_f32_dpp v{r}, v{r+4}, v{r+4} row_half_mirror row_mask:0xf bank_mask:0xa")
        for r in lo: e(f"v_add_f32_dpp v{r}, v{r}, v{r} quad_perm:[1,0,3,2] row_mask:0xf bank_mask:0xf")
        for r in lo: e(f"v_add_f32_dpp v{r}, v{r}, v{r} quad_perm:[2,3,0,1] row_mask:0xf bank_mask:0xf")
        for c in range(3): e(f"v_cvt_f64_f32 {vr(TMP+2*c,2)}, v{ACC0+1+c}")
        e(f"s_mov_b64 exec, {sr(sQ,2)}")
        for c in range(3): e(f"ds_add_f64 v{T0+1}, {vr(TMP+2*c,2)} offset:{8*c}")
        e("s_mov_b64 exec, -1")
        e(mfma(ACC0, ZQ, ZQ)); e(mfma(ACC1, ZQ, ZQ))
    def gemm1(q, blk, oh1):
        L = [mfma(q, HS + 4 * s_, W2 + 16 * blk + 4 * s_, None if s_ == 0 else q) for s_ in range(4)]
        L.append(mfma(q, oh1, AW + 4 * blk, q))
        return L
    def seg(acc): return [mfma(acc, OH2 + 4 * s_, MR + 4 * s_, acc) for s_ in range(2)]
    def phase(P, G, S, ins):
        base = []
        if not fold:
            base += [f"v_pk_mul_f32 {vr(TMP+i,2)}, {vr(P+i,2)}, {sr(sC,2)}" for i in range(0, 16, 2)]
            ex = [f"v_exp_f32 v{TMP+i}, v{TMP+i}" for i in range(16)]
        else:
            base += [None] * 8
            ex = [f"v_exp_f32 v{TMP+i}, -v{P+i}" for i in range(16)]
        for m in range(4): base += [G[m]] + ex[3 * m:3 * m + 3]
        base += ex[12:]
        base += [f"v_pk_add_f32 {vr(TMP+i,2)}, {vr(TMP+i,2)}, 1.0 op_sel_hi:[1,0]" for i in range(0, 16, 2)]
        rc = [f"v_rcp_f32 v{TMP+i}, v{TMP+i}" for i in range(16)]
        for m, x in enumerate([G[4], S[0], S[1]]): base += [x] + rc[3 * m:3 * m + 3]
        base += rc[9:]
        base += [f"v_pk_mul_f32 {vr(TMP+i,2)}, {vr(P+i,2)}, {vr(TMP+i,2)}" for i in range(0, 16, 2)]
        base += [f"v_cvt_pk_bf16_f32 v{MR+i//2}, v{TMP+i}, v{TMP+i+1}" for i in range(0, 16, 2)]
        assert len(base) == 71
        for i, x in enumerate(base):
            if i in ins: run(ins[i])
            if x: e(x)
    def dma_ins(ins, at):
        for (a, b), k in zip(dma4('x'), at):
            ins.setdefault(k, []).append(a)
            ins.setdefault(k + 1, []).append(lambda b=b: e.v('dma', b))

    e(f"s_lshl_b32 s{s_p8}, s{s_p}, 3\ns_mov_b32 s{s_lim}, 0\ns_mov_b32 s{s_nbCur}, 0")
    rec_read(); idx_read(0)
    e.wds('idx')
    for a, b in dma4('x'): e(a); e("s_nop 0"); e.v('dma', b)
    e.ds = ['rw']
    window()
    e(f"s_mov_b32 s{s_flN}, 0")
    aw_read()
    e.wvm0(); e.wds('pd')
    hs_read(); idx_read(256)
    run(misc_list())
    e.wds('idx')
    for a, b in dma4('x'): e(a); e("s_nop 0"); e.v('dma', b)
    e.wds0()
    for x in gemm1(PRE0, 0, OH1A): e(x)
    e("s_nop 7\ns_nop 3")
    stamp('wprol')
    if opt.get('stamp'): e("s_mov_b32 s56, 0")
    e(".p2align 4\nK2_loop:")
    loop_start = len(e.L)
    if opt.get('stamp'): e("s_add_u32 s56, s56, 1")
    e.ds = []; e.vm = ['dma'] * 4
    e(f"""
    s_mov_b32 s{s_flush}, s{s_flN}
    s_mov_b32 s{s_nbOld}, s{s_nbCur}
    s_mov_b32 s{s_nbCur}, s{s_nbN}
    s_mov_b32 s{s_cntCur}, s{s_cntN}
    s_mov_b32 s{s_p}, s{s_pn}
    s_lshl_b32 s{s_p8}, s{s_pn}, 3
    """)
    ins = {0: [rec_read], 14: [window], 46: [lambda: oh2_read(0), m_b], 48: [lambda: e.wvm('dma'), hs_read]}
    phase(PRE0, gemm1(PRE1, 1, OH1A), seg(ACC1), ins)
    e(f"s_cmp_eq_u32 s{s_flush}, 0\ns_cbranch_scc1 K2_nofl")
    sv = list(e.ds)
    if opt.get('stamp'): e("s_add_u32 s56, s56, 0x10000")
    flush(s_nbOld)
    e.ds = sv
    e("K2_nofl:")
    ins = {0: [lambda: idx_read(0)], 8: [lambda: e.wds('idx')]}
    dma_ins(ins, (9, 13, 17, 21))
    phase(PRE1, gemm1(PRE0, 0, OH1B), seg(ACC0), ins)
    e(f"""
    s_cmp_gt_u32 s{s_cntCur}, 32
    s_cselect_b32 s{s_t0}, 1, s{s_cntN}
    s_cmp_eq_u32 s{s_t0}, 0
    s_cbranch_scc1 K2_drain
    """)
    ins = {38: [aw_read], 46: [lambda: oh2_read(1)], 48: [e.wvm0, hs_read]}
    phase(PRE0, gemm1(PRE1, 1, OH1B), seg(ACC1), ins)
    ml = misc_list()
    ins = {0: [lambda: idx_read(256)] + ml, 8: [lambda: e.wds('idx')], 36: [e.wds0]}
    dma_ins(ins, (9, 13, 17, 21))
    phase(PRE1, gemm1(PRE0, 0, OH1A), seg(ACC0), ins)
    e(f"s_cmp_lg_u32 s{s_cntN}, 0\ns_cbranch_scc1 K2_loop")
    assert e.vm == ['dma'] * 4, e.vm
    def xf(l):
        if opt.get('x_novm') and ('buffer_load' in l or 'vmcnt' in l): return False
        if opt.get('x_nodma') and (' lds' in l): return False
        if opt.get('x_nops') and ('dwordx3' in l): return False
        if opt.get('x_noadd') and 'ds_add' in l: return False
        if opt.get('x_notr') and '_tr_' in l: return False
        if opt.get('x_nohs') and 'ds_read_b128' in l: return False
        if opt.get('x_nomw') and 'ds_write' in l: return False
        if opt.get('x_nomf') and 'v_mfma' in l: return False
        if opt.get('x_nodpp') and '_dpp' in l: return False
        if opt.get('x_nopk') and 'v_pk_' in l: return False
        if opt.get('x_nocvt') and 'v_cvt_pk' in l: return False
        if opt.get('x_nolgkm') and 'lgkmcnt' in l: return False
        if opt.get('x_notrans') and ('v_exp' in l or 'v_rcp' in l): return False
        return True
    e.L = e.L[:loop_start] + [l for l in e.L[loop_start:] if xf(l)]
    e("K2_drain:\ns_nop 0")
    stamp('loop')
    if opt.get('stamp'): e("v_writelane_b32 v232, s56, 28")
    for x in seg(ACC1): e(x)
    e(f"ds_write_b64 v{vMA}, v[{ZQ}:{ZQ+1}]")
    e("s_nop 7\ns_nop 7")
    flush(s_nbCur)
    for r in range(8): e(f"v_mov_b32 v{OH2+r}, 0")
    e("K2_wavedone:")
    e(f"s_waitcnt vmcnt(0)\nv_lshlrev_b32 v{T0}, 4, v1\ns_lshl_b32 s{s_t0}, s{s_cb}, 13\ns_add_u32 s{s_t0}, s{s_t0}, {WS_WF+16384}\ns_add_u32 s{s_t1}, s{s_t0}, 4096")
    for f in range(8):
        e(f"buffer_load_dwordx4 {vr(PRE0+4*f,4)}, v{T0}, {sr(sWS,4)}, s{s_t0 if f<4 else s_t1} offen offset:{1024*(f&3)}")
    e(f"""
    v_and_b32 v{T0+1}, 31, v1
    v_lshrrev_b32 v{T0+2}, 5, v1
    s_lshl_b32 s{s_t0}, s{s_rb}, 5
    v_add_u32 v{T0+1}, s{s_t0}, v{T0+1}
    v_mul_u32_u24 v{T0+3}, {ACS}, v{T0+1}
    v_lshl_add_u32 v{T0+3}, v{T0+2}, 6, v{T0+3}
    v_add_u32 v{T0+3}, {L_ACC}, v{T0+3}
    v_lshlrev_b32 v{T0+4}, 2, v0
    v_lshlrev_b32 v{T0+5}, 3, v0
    v_add_u32 v{T0+5}, {L_PACC}, v{T0+5}
    v_mov_b32 v{T0+6}, {L_FLAG}
    s_waitcnt lgkmcnt(0)
    """)
    stamp('drain')
    e("s_barrier")
    stamp('B3')
    e(f"ds_read_b32 v{T0+6}, v{T0+6}")
    for s_ in range(4):
        e(f"ds_read_b128 {vr(W2+8*s_,4)}, v{T0+3} offset:{64*s_}" if False else "")
    e(f"""
    s_waitcnt lgkmcnt(0)
    v_readfirstlane_b32 s{s_t0}, v{T0+6}
    s_nop 0
    s_cmp_lg_u32 s{s_t0}, 0
    s_cbranch_scc1 K2_more
    """)
    dreg = lambda k: (W2 + 4 * k) if k < 8 else (ACC0 + 4 * (k - 8))
    for k in range(16):
        e(f"ds_read_b128 {vr(dreg(k),4)}, v{T0+3} offset:{128*(k>>2)+16*(k&3)}")
    e(f"ds_read_b64 {vr(PD,2)}, v{T0+5}\nds_read_b32 v{T0+7}, v{T0+4} offset:{L_POSD}")
    e("s_waitcnt vmcnt(4)")
    for s_ in range(4): e(mfma(TMP, PRE0 + 4 * s_, HOWN + 4 * s_, None if s_ == 0 else TMP))
    for k in range(16):
        if k % 4 == 0: e(f"s_waitcnt lgkmcnt({14-k})")
        r = dreg(k)
        e(f"v_cvt_f32_f64 v{r}, {vr(r,2)}\nv_cvt_f32_f64 v{r+1}, {vr(r+2,2)}")
        if fold: e(f"v_mul_f32 v{r}, {LN2}, v{r}\nv_mul_f32 v{r+1}, {LN2}, v{r+1}")
        if k: e(f"v_cvt_pk_bf16_f32 v{HS+k-1}, v{dreg(k-1)}, v{dreg(k-1)+1}")
    e(f"v_cvt_pk_bf16_f32 v{HS+15}, v{dreg(15)}, v{dreg(15)+1}")
    e("s_waitcnt vmcnt(0)\ns_nop 0")
    for s_ in range(4): e(mfma(TMP, PRE0 + 16 + 4 * s_, HS + 4 * s_, TMP))
    e(f"""
    v_lshrrev_b32 v{W2}, 2, v0
    v_and_b32 v{W2+1}, 3, v0
    v_cmp_gt_u32 vcc, {NPB}, v{W2}
    v_cmp_gt_u32 {sr(sMK,2)}, 3, v{W2+1}
    v_add_u32 v{W2}, s{s_nb0}, v{W2}
    v_mul_u32_u24 v{W2}, 6, v{W2}
    v_lshl_add_u32 v{W2}, v{W2+1}, 1, v{W2}
    s_waitcnt lgkmcnt(0)
    v_cvt_f32_f64 v{T0+6}, {vr(PD,2)}
    s_nop 0
    v_add_f32 v{T0+6}, v{T0+6}, v{T0+7}
    s_and_b64 {sr(sMK,2)}, {sr(sMK,2)}, vcc
    v_cvt_pk_bf16_f32 v{T0+6}, v{T0+6}, v{T0+6}
    s_mov_b64 exec, {sr(sMK,2)}
    s_cbranch_execz K2_nopos
    buffer_store_short v{T0+6}, v{W2}, {sr(sOP,4)}, 0 offen
    K2_nopos:
    s_mov_b64 exec, -1
    v_cmp_gt_u32 vcc, {NPB}, v{T0+1}
    v_add_u32 v{T0+1}, s{s_nb0}, v{T0+1}
    v_lshlrev_b32 v{T0+1}, 7, v{T0+1}
    v_lshl_add_u32 v{T0+1}, v{T0+2}, 5, v{T0+1}
    s_lshl_b32 s{s_t0}, s{s_cb}, 6
    """)
    for r in range(8):
        e(f"v_lshlrev_b32 v{ACC0+2*r}, 16, v{HOWN+r}\nv_and_b32 v{ACC0+2*r+1}, 0xffff0000, v{HOWN+r}")
    X = W2 + 4
    for i in range(0, 16, 2): e(f"v_pk_mul_f32 {vr(X+i,2)}, {vr(TMP+i,2)}, {sr(sC,2)}")
    for i in range(16): e(f"v_exp_f32 v{X+i}, v{X+i}")
    for i in range(0, 16, 2): e(f"v_pk_add_f32 {vr(X+i,2)}, {vr(X+i,2)}, 1.0 op_sel_hi:[1,0]")
    for i in range(16): e(f"v_rcp_f32 v{X+i}, v{X+i}")
    for i in range(0, 16, 2): e(f"v_pk_fma_f32 {vr(X+i,2)}, {vr(TMP+i,2)}, {vr(X+i,2)}, {vr(ACC0+i,2)}")
    for i in range(8): e(f"v_cvt_pk_bf16_f32 v{HS+i}, v{X+2*i}, v{X+2*i+1}")
    stamp('epi')
    fin(s_b, s_w, 8, sWS, WS_STAMP, T0)
    e(f"""
    s_mov_b64 exec, vcc
    s_cbranch_execz K2_end
    buffer_store_dwordx4 {vr(HS,4)}, v{T0+1}, {sr(sOUT,4)}, s{s_t0} offen
    buffer_store_dwordx4 {vr(HS+4,4)}, v{T0+1}, {sr(sOUT,4)}, s{s_t0} offen offset:16
    K2_end:
    s_endpgm
    """)
    def zero_hist():
        e(f"""
        v_cmp_gt_u32 vcc, 65, v0
        v_lshlrev_b32 v{tA}, 4, v0
        s_nop 0
        s_mov_b64 exec, vcc
        ds_write_b128 v{tA}, {vr(ZQ,4)} offset:{L_HIST}
        s_mov_b64 exec, -1
        s_waitcnt lgkmcnt(0)
        s_barrier
        """)
    e("K2_retry:\ns_waitcnt lgkmcnt(0)\ns_barrier")
    zero_hist()
    e(f"s_mov_b32 s{s_take}, 8\ns_mov_b32 s{sMV}, 0x0f0f0f0f\ns_mov_b32 s{sMV+1}, 0x0f0f0f0f")
    for i in range(4):
        e(f"s_mov_b64 {sr(sMASK+8*i+4,2)}, 0\ns_mov_b64 {sr(sMASK+8*i+6,2)}, 0")
        e(f"s_and_b64 {sr(sMASK+8*i,2)}, {sr(sMASK+8*i,2)}, {sr(sMV,2)}\ns_and_b64 {sr(sMASK+8*i+2,2)}, {sr(sMASK+8*i+2,2)}, {sr(sMV,2)}")
    e("s_branch K2_hist")
    e("K2_more:\ns_waitcnt vmcnt(0)\ns_barrier")
    zero_hist()
    e(f"s_add_u32 s{s_done}, s{s_done}, s{s_take}\ns_mov_b32 s{s_take}, 32")
    e.vm = []
    offs_loads(); rec_loads()
    e("s_waitcnt vmcnt(0)\ns_branch K2_hist")
    return e.text(), KD.format(name=nm, vgpr=NVG+8, acc=NVG+8, sgpr=102)

HEADER = open("standalone__cheap_equivariant_egnn__graph.s.ref").read().split("; Override launch")[0]

def gen(opt):
    k1, d1 = gen_k1(opt); k2, d2 = gen_k2(opt)
    s = HEADER
    s += f"; @launch kernel=egnn_part_kernel grid=({NCH},1,1) block=(1024,1,1) lds={K1_LDS}\n"
    s += f"; @launch kernel=egnn_main_kernel grid=({NBIN},1,1) block=(512,1,1) lds={K2_LDS}\n"
    s += '.amdgcn_target "amdgcn-amd-amdhsa--gfx950"\n.text\n'
    s += k1 + "\n" + k2 + d1 + d2
    return s

if __name__ == "__main__":
    opt = {}
    out = sys.argv[1]
    for a in sys.argv[2:]:
        k, _, v = a.partition("="); opt[k] = int(v) if v else 1
    open(out, "w").write(gen(opt))
    if opt.get('stamp'): print(opt['names'])
```

```python
import sys
from gen import Em, vr, sr, srd, wave_scan, KD, mk_stamp, mfma, HEADER, LOG2E, NLOG2E, LN2

N = 25000; E = 800000; NPB = 98; NW = 256; CH = 3128; NQ = CH // 4
RECB = 25088
WS_REC = 0; WS_OFF = 0x620000; WS_POS = 0x660000; WS_SZ = 0x800000; WS_STAMP = 0x780000
CAP = 3584
L_REC = 0; L_H1 = 25088; L_B1 = 26112
L_POSD = 29184; L_OHT = 31232; L_HIST = 31392; L_BASE = 31904; L_FLAG = 32416; L_WDA = 32448
L_MM = 33664; L_ACC = 50048; L_PACC = 105488; L_ATAB = 108848; L_STG = 127360; LDS = 160128
L_W = L_ACC
ACS = 528; ATS = 144
W2 = 2; DH = 34; WHM = 50; HR = 66; ACC0 = 74; ACC1 = 90; PRE0 = 106; PRE1 = 122; TMP = 138; MR = 154
HS = 162; AW = 178; OH1A = 186; OH1B = 190; OH2 = 194; IDX = 202; ZQ = 210; RW = 214; PS = 216; vPI = 219
PD = 220; WP = 224; vMA = 226; vRA = 227; vTA = 228; cRA = 229; cTA = 230; cHS = 231; cM = 235; cMW = 237
vAWA = 238; cAW = 239; cF = 240; cP = 241; wx0 = 242; wx1 = 243; vMX = 244; T0 = 245; vST = 255
sDST = 28; sSRC = 32; sEA = 36; sWS = 40; sH = 44; sPF = 48; sOUT = 52; sOP = 56; sDBG = 60
sWE = 64; sWH = 68; sPOS = 72; sWX = 76; sM0 = 80; sM1 = 82; sMASK = 4
s_w = 3; s_b = 84; s_nb0 = 85; s_rb = 86; s_cb = 87; s_stg = 88; s_t0 = 89; s_t1 = 90; s_t2 = 91
sC = 92; sLO = 94; sQ = 96; s_done = 98; s_take = 99; s_T = 100; s_c = 101
s_p = 64; s_pn = 65; s_end = 66; s_p8 = 67; s_lim = 68; s_nbN = 69; s_nbCur = 70; s_nbOld = 71
s_flN = 72; s_flush = 73; s_cntN = 74; s_cntCur = 75; s_need = 76; s_mkB = 77; sMK = 78; sMV = 80; s_o = 36; s_dbg = 82

def gen(opt):
    fold = opt.get('fold', 1)
    SC = " sc1"
    e = Em(); nm = "standalone__cheap_equivariant_egnn__graph_kernel"
    stamp, real, fin = mk_stamp(e, opt, vST)
    e(f".globl {nm}\n.p2align 8\n.type {nm},@function\n{nm}:")
    o8 = T0 + 4; t8 = T0 + 5
    rho = PD; hb = PD + 1; f3 = PD + 2; r4 = PD + 3; slot = WP; g1 = WP + 1; c4 = RW; tq = RW + 1
    e(f"""
    s_cmp_ge_u32 s2, {NW}
    s_cbranch_scc1 K_end
    {'s_memrealtime s[26:27]' if opt.get('x_pad') else ''}
    s_load_dwordx16 s[4:19], s[0:1], 0
    s_load_dwordx4 s[20:23], s[0:1], 64
    s_load_dwordx2 s[24:25], s[0:1], 80
    v_lshrrev_b32 v{T0}, 6, v0
    v_and_b32 v1, 63, v0
    v_readfirstlane_b32 s{s_w}, v{T0}
    s_mov_b32 s{s_c}, s2
    s_and_b32 s{s_b}, s2, 7
    s_lshl_b32 s{s_b}, s{s_b}, 5
    s_lshr_b32 s{s_t0}, s2, 3
    s_add_u32 s{s_b}, s{s_b}, s{s_t0}
    s_mul_i32 s{s_nb0}, s{s_b}, {NPB}
    s_lshr_b32 s{s_rb}, s{s_w}, 1
    s_and_b32 s{s_cb}, s{s_w}, 1
    s_mul_i32 s{s_t0}, s2, {NQ}
    v_add_u32 v{T0}, s{s_t0}, v0
    v_add_u32 v{T0+1}, 0x200, v{T0}
    s_mov_b32 s{s_t1}, {E//4}
    v_cmp_gt_u32 {sr(sM0,2)}, s{s_t1}, v{T0}
    v_cmp_gt_u32 {sr(sM1,2)}, s{s_t1}, v{T0+1}
    v_cmp_gt_u32 vcc, {NQ-512}, v0
    v_lshlrev_b32 v{T0+2}, 3, v{T0}
    v_lshlrev_b32 v{T0+3}, 3, v{T0+1}
    v_lshlrev_b32 v{T0}, 4, v{T0}
    v_lshlrev_b32 v{T0+1}, 4, v{T0+1}
    s_and_b64 {sr(sM1,2)}, {sr(sM1,2)}, vcc
    v_lshrrev_b32 v{o8}, 3, v1
    v_and_b32 v{t8}, 7, v1
    v_mov_b32 v{ZQ}, 0
    v_mov_b32 v{ZQ+1}, 0
    v_mov_b32 v{ZQ+2}, 0
    v_mov_b32 v{ZQ+3}, 0
    v_lshlrev_b32 v{tq}, 4, v0
    s_cmp_lg_u32 s{s_w}, 7
    s_cbranch_scc1 K_nh1
    ds_write_b128 v{tq}, {vr(ZQ,4)} offset:{L_H1-7*1024}
    K_nh1:
    s_waitcnt lgkmcnt(0)
    s_barrier
    """)
    def spin(tag):
        if opt.get('x_spin') == tag:
            e(f"""
            s_memtime s[0:1]
            s_waitcnt lgkmcnt(0)
            s_add_u32 s2, s0, 20000
            KX_spin:
            s_memtime s[0:1]
            s_waitcnt lgkmcnt(0)
            s_sub_u32 s0, s0, s2
            s_cmp_lt_i32 s0, 0
            s_cbranch_scc1 KX_spin
            """)
    stamp0 = stamp
    def stamp(name):
        stamp0(name)
        if opt.get('x_pad') == name:
            e(f"""
            s_add_u32 s27, s26, 5000
            KX_pad:
            s_memrealtime s[0:1]
            s_waitcnt lgkmcnt(0)
            s_sub_u32 s0, s0, s27
            s_cmp_lt_i32 s0, 0
            s_cbranch_scc1 KX_pad
            """)
    spin(1)
    real(); stamp('start')
    def rt(lane):
        if opt.get('stamp'): e(f"s_memrealtime s[0:1]\ns_waitcnt lgkmcnt(0)\nv_writelane_b32 v{vST}, s0, {lane}")
    D0, S0, E0, D1, S1, E1 = 106, 110, 114, 116, 120, 124
    REC1 = 126; HA = 142; RK = 150
    srd(e, sDST, 12, 13, E * 4)
    e.v('dst', f"buffer_load_dwordx4 {vr(D0,4)}, v{T0}, {sr(sDST,4)}, 0 offen nt")
    e(f"s_or_b64 exec, {sr(sM1,2)}, 1")
    e.v('dst', f"buffer_load_dwordx4 {vr(D1,4)}, v{T0+1}, {sr(sDST,4)}, 0 offen nt")
    e("s_mov_b64 exec, -1")
    srd(e, sSRC, 10, 11, E * 4); srd(e, sEA, 8, 9, E * 2)
    e.v('src', f"buffer_load_dwordx4 {vr(S0,4)}, v{T0}, {sr(sSRC,4)}, 0 offen nt")
    e.v('src', f"buffer_load_dwordx2 {vr(E0,2)}, v{T0+2}, {sr(sEA,4)}, 0 offen nt")
    e(f"s_or_b64 exec, {sr(sM1,2)}, 1")
    e.v('src', f"buffer_load_dwordx4 {vr(S1,4)}, v{T0+1}, {sr(sSRC,4)}, 0 offen nt")
    e.v('src', f"buffer_load_dwordx2 {vr(E1,2)}, v{T0+3}, {sr(sEA,4)}, 0 offen nt")
    e("s_mov_b64 exec, -1")
    srd(e, sWS, 24, 25, WS_SZ)
    stamp('iss')
    e(f"""
    v_cmp_gt_u32 vcc, 152, v0
    s_nop 0
    ds_write_b128 v{tq}, {vr(ZQ,4)} offset:{L_OHT}
    ds_write_b128 v{tq}, {vr(ZQ,4)} offset:{L_OHT+8192}
    s_mov_b64 exec, vcc
    ds_write_b128 v{tq}, {vr(ZQ,4)} offset:{L_OHT+16384}
    s_mov_b64 exec, -1
    """)
    srd(e, sH, 4, 5, N, stride=128); srd(e, sWE, 14, 15, 130 * 128); srd(e, sWH, 18, 19, 128 * 128)
    srd(e, sWX, 16, 17, 128); srd(e, sPOS, 6, 7, N * 6)
    srd(e, sPF, 24, 25, N + 216, add=WS_POS, stride=16)
    srd(e, sOUT, 20, 21, N * 128); srd(e, sOP, 20, 21, N * 6, add=N * 128); srd(e, sDBG, 22, 23, 256)
    e(f"""
    s_mov_b32 s4, 42800
    s_mov_b32 s5, -98
    s_mov_b32 s6, 0xffff0000
    v_mov_b32 v{T0+2}, 1
    v_and_b32 v{rho}, 31, v1
    """)
    WR = 170; PO = OH2
    e(f"""
    s_lshl_b32 s{s_stg}, s{s_w}, 12
    s_add_u32 s{s_stg}, s{s_stg}, {L_STG}
    v_lshrrev_b32 v{hb}, 5, v1
    v_bfe_u32 v{f3}, v1, 1, 3
    v_bfe_u32 v{r4}, v1, 2, 2
    v_bfe_u32 v{g1}, v1, 4, 1
    v_and_b32 v{c4}, 3, v1
    v_lshl_or_b32 v{slot}, v{g1}, 2, v{c4}
    v_lshlrev_b32 v{cRA}, 3, v1
    v_lshlrev_b32 v{cTA}, 3, v{o8}
    v_lshl_add_u32 v{T0}, v{rho}, 7, s{s_stg}
    v_xor_b32 v{T0+3}, v{hb}, v{f3}
    """)
    for s_ in range(4):
        if s_: e(f"v_xor_b32 v{cHS+s_}, {2*s_}, v{T0+3}\nv_lshl_add_u32 v{cHS+s_}, v{cHS+s_}, 4, v{T0}")
        else: e(f"v_lshl_add_u32 v{cHS}, v{T0+3}, 4, v{T0}")
    e(f"""
    s_lshl_b32 s{s_t0}, s{s_w}, 11
    s_add_u32 s{s_t0}, s{s_t0}, {L_MM}
    v_lshl_add_u32 v{cMW}, v{rho}, 6, s{s_t0}
    v_lshl_or_b32 v{cMW}, v{f3}, 3, v{cMW}
    v_mov_b32 v{vMA}, v{cMW}
    v_lshl_or_b32 v{T0}, v{hb}, 2, v{r4}
    v_lshrrev_b32 v{T0+3}, 1, v{T0}
    v_xor_b32 v{T0+3}, v{T0+3}, v{slot}
    v_lshl_add_u32 v{T0}, v{T0}, 6, s{s_t0}
    v_lshl_add_u32 v{cM}, v{T0+3}, 3, v{T0}
    v_xor_b32 v{T0+3}, 4, v{T0+3}
    v_lshl_add_u32 v{cM+1}, v{T0+3}, 3, v{T0}
    v_add_u32 v{cM+1}, 0x200, v{cM+1}
    v_mul_u32_u24 v{cAW}, {ATS}, v{r4}
    v_lshl_add_u32 v{cAW}, v{slot}, 3, v{cAW}
    s_mov_b32 s{s_t0}, {L_WDA-L_ATAB}
    v_mad_i32_i24 v{cAW}, v{hb}, s{s_t0}, v{cAW}
    v_add_u32 v{cAW}, {L_ATAB}, v{cAW}
    v_mov_b32 v{vAWA}, v{cAW}
    v_mul_u32_u24 v{cF}, {ACS}, v{hb}
    v_lshl_add_u32 v{cF}, v{rho}, 3, v{cF}
    v_add_u32 v{cF}, {L_ACC}, v{cF}
    v_lshl_or_b32 v{cP}, v{r4}, 1, v{hb}
    v_lshlrev_b32 v{cP}, 5, v{cP}
    v_add_u32 v{cP}, {L_PACC}, v{cP}
    s_mov_b32 s{sLO}, -1
    s_mov_b32 s{sLO+1}, 0
    s_mov_b32 s{sQ}, 0x11111111
    s_mov_b32 s{sQ+1}, 0x11111111
    s_mov_b32 s{sC}, {NLOG2E}
    s_mov_b32 s{sC+1}, {NLOG2E}
    s_mov_b32 s{s_done}, 0
    s_mov_b32 s{s_take}, 32
    """)
    stamp('Ba')
    e.wvm('dst')
    stamp('dst')
    for r, D in enumerate((D0, D1)):
        if r: e(f"s_mov_b64 exec, {sr(sM1,2)}\ns_cbranch_execz K_h1")
        else: e(f"s_mov_b64 exec, {sr(sM0,2)}")
        for k in range(4): e(f"v_mul_u32_u24 v{HA+4*r+k}, s4, v{D+k}")
        for k in range(4): e(f"v_lshrrev_b32 v{HA+4*r+k}, 22, v{HA+4*r+k}")
        for k in range(4): e(f"v_mad_i32_i24 v{REC1+8*r+2*k+1}, v{HA+4*r+k}, s5, v{D+k}")
        for k in range(4): e(f"v_lshlrev_b32 v{HA+4*r+k}, 2, v{HA+4*r+k}")
        for k in range(4): e(f"ds_add_rtn_u32 v{RK+4*r+k}, v{HA+4*r+k}, v{T0+2} offset:{L_H1}")
        for k in range(4): e(f"v_lshlrev_b32 v{REC1+8*r+2*k+1}, 4, v{REC1+8*r+2*k+1}")
    e("K_h1:\ns_mov_b64 exec, -1")
    e(f"""
    s_lshl_b32 s{s_t0}, s{s_w}, 4
    s_add_u32 s{s_t0}, s{s_t0}, s{s_nb0}
    v_lshrrev_b32 v{T0}, 4, v1
    v_xor_b32 v{T0}, v{t8}, v{T0}
    v_lshlrev_b32 v{IDX+1}, 4, v{T0}
    v_add_u32 v{IDX}, s{s_t0}, v{o8}
    v_xor_b32 v{IDX+3}, 64, v{IDX+1}
    v_add_u32 v{IDX+2}, 8, v{IDX}
    s_lshl_b32 s{s_t0}, s{s_w}, 11
    s_add_u32 m0, s{s_t0}, {L_STG}
    v_mov_b32 v{IDX+5}, v{IDX+1}
    """)
    e.v('set', f"buffer_load_dwordx4 {vr(IDX,2)}, {sr(sH,4)}, 0 idxen offen lds")
    e(f"s_add_u32 m0, s{s_t0}, {L_STG+1024}\nv_mov_b32 v{IDX+7}, v{IDX+3}")
    e.v('set', f"buffer_load_dwordx4 {vr(IDX+2,2)}, {sr(sH,4)}, 0 idxen offen lds")
    e(f"s_add_u32 m0, s{s_t0}, {L_W+16384}\nv_lshlrev_b32 v{T0}, 4, v1")
    e.v('set', f"buffer_load_dwordx4 v{T0}, {sr(sWH,4)}, s{s_t0} offen lds")
    e.v('set', f"buffer_load_dwordx4 v{T0}, {sr(sWH,4)}, s{s_t0} offen offset:1024 lds")
    e(f"s_lshl_b32 s{s_t0}, s{s_w}, 10\ns_add_u32 m0, s{s_t0}, {L_W}\ns_mov_b32 s{s_t1}, 8192")
    e.v('set', f"buffer_load_dwordx4 v{tq}, {sr(sWE,4)}, 0 offen lds")
    if fold:
        e.v('set', f"buffer_load_dwordx4 {vr(WR,4)}, v{tq}, {sr(sWE,4)}, s{s_t1} offen")
    else:
        e(f"s_add_u32 m0, s{s_t0}, {L_W+8192}\ns_nop 0")
        e.v('set', f"buffer_load_dwordx4 v{tq}, {sr(sWE,4)}, s{s_t1} offen lds")
    e(f"v_lshlrev_b32 v{T0}, 1, v{rho}")
    e.v('set', f"buffer_load_ushort v{wx0}, v{T0}, {sr(sWX,4)}, 0 offen")
    e.v('set', f"buffer_load_ushort v{wx1}, v{T0}, {sr(sWX,4)}, 0 offen offset:64")
    PO = OH2
    e(f"""
    v_subrev_u32 v{PO+5}, 0x180, v0
    v_add_u32 v{PO+4}, s{s_nb0}, v{PO+5}
    v_mul_u32_u24 v{T0}, 6, v{PO+4}
    v_lshlrev_b32 v{T0+1}, 1, v1
    s_cmp_lt_u32 s{s_w}, 6
    s_cbranch_scc1 K_np1
    buffer_load_ushort v{PO}, v{T0}, {sr(sPOS,4)}, 0 offen
    buffer_load_ushort v{PO+1}, v{T0}, {sr(sPOS,4)}, 0 offen offset:2
    buffer_load_ushort v{PO+2}, v{T0}, {sr(sPOS,4)}, 0 offen offset:4
    K_np1:
    s_cmp_lg_u32 s{s_w}, 5
    s_cbranch_scc1 K_nwd1
    s_mov_b32 s{s_t0}, 16384
    buffer_load_ushort v{PO}, v{T0+1}, {sr(sWE,4)}, s{s_t0} offen
    buffer_load_ushort v{PO+1}, v{T0+1}, {sr(sWE,4)}, s{s_t0} offen offset:128
    K_nwd1:
    """)
    e.wvm('src')
    for r, (S, EE) in enumerate(((S0, E0), (S1, E1))):
        e(f"""
        v_lshl_or_b32 v{REC1+8*r}, v{EE}, 16, v{S}
        v_and_or_b32 v{REC1+8*r+2}, v{EE}, s6, v{S+1}
        v_lshl_or_b32 v{REC1+8*r+4}, v{EE+1}, 16, v{S+2}
        v_and_or_b32 v{REC1+8*r+6}, v{EE+1}, s6, v{S+3}
        """)
    SCN = 158
    e(f"v_lshlrev_b32 v{T0}, 4, v1\ns_waitcnt lgkmcnt(0)\ns_barrier")
    stamp('Bb')
    e(f"ds_read_b128 {vr(SCN,4)}, v{T0} offset:{L_H1}")
    e(f"""
    s_waitcnt lgkmcnt(0)
    v_add_u32 v{SCN+4}, v{SCN}, v{SCN+1}
    v_add_u32 v{SCN+5}, v{SCN+4}, v{SCN+2}
    v_add_u32 v{SCN+6}, v{SCN+5}, v{SCN+3}
    v_mov_b32 v{SCN+7}, v{SCN+6}
    """)
    wave_scan(e, SCN + 7)
    e(f"""
    v_sub_u32 v{SCN+8}, v{SCN+7}, v{SCN+6}
    v_add_u32 v{SCN+9}, v{SCN+8}, v{SCN}
    v_add_u32 v{SCN+10}, v{SCN+8}, v{SCN+4}
    v_add_u32 v{SCN+11}, v{SCN+8}, v{SCN+5}
    ds_write_b128 v{T0}, {vr(SCN+8,4)} offset:{L_B1}
    s_mov_b64 exec, {sr(sM0,2)}
    """)
    for k in range(4): e(f"ds_read_b32 v{HA+k}, v{HA+k} offset:{L_B1}")
    e(f"s_mov_b64 exec, {sr(sM1,2)}")
    for k in range(4, 8): e(f"ds_read_b32 v{HA+k}, v{HA+k} offset:{L_B1}")
    e("s_mov_b64 exec, -1")
    e(f"""
    s_mul_i32 s8, s{s_c}, {RECB}
    s_add_u32 s9, s8, 8192
    s_add_u32 s10, s8, 16384
    s_add_u32 s11, s8, 24576
    s_waitcnt lgkmcnt(0)
    """)
    for k in range(8): e(f"v_add_lshl_u32 v{HA+k}, v{HA+k}, v{RK+k}, 3")
    e(f"s_mov_b64 exec, {sr(sM0,2)}")
    for k in range(4): e(f"ds_write_b64 v{HA+k}, {vr(REC1+2*k,2)} offset:{L_REC}")
    e(f"s_mov_b64 exec, {sr(sM1,2)}\ns_cbranch_execz K_s1")
    for k in range(4, 8): e(f"ds_write_b64 v{HA+k}, {vr(REC1+2*k,2)} offset:{L_REC}")
    e("K_s1:\ns_mov_b64 exec, -1")
    e(f"""
    v_cmp_gt_u32 vcc, 28, v0
    v_mov_b32 v{vPI}, 0x1000000
    s_nop 0
    v_cndmask_b32 v{vPI}, v{vPI}, v{tq}, vcc
    s_waitcnt lgkmcnt(0)
    s_barrier
    """)
    stamp('Bc')
    for r in range(4): e(f"ds_read_b128 {vr(PRE0+4*r,4)}, v{tq} offset:{L_REC+8192*r}")
    for r in range(4):
        e(f"s_waitcnt lgkmcnt({3-r})\nbuffer_store_dwordx4 {vr(PRE0+4*r,4)}, v{tq if r < 3 else vPI}, {sr(sWS,4)}, s{8+r} offen{SC}")
    e(f"s_mov_b32 s7, {LOG2E}\ns_waitcnt vmcnt(4)")
    e(f"""
    s_cmp_lt_u32 s{s_w}, 4
    s_cbranch_scc1 K_side_done
    s_cmp_lt_u32 s{s_w}, 6
    s_cbranch_scc1 K_side45
    s_mov_b32 s{s_t0}, {N}
    v_cmp_gt_u32 vcc, {NPB}, v{PO+5}
    v_cmp_gt_u32 {sr(12,2)}, s{s_t0}, v{PO+4}
    v_lshlrev_b32 v{PO}, 16, v{PO}
    v_lshlrev_b32 v{PO+1}, 16, v{PO+1}
    v_lshlrev_b32 v{PO+2}, 16, v{PO+2}
    v_mov_b32 v{PO+3}, 0
    v_lshlrev_b32 v{PO+5}, 4, v{PO+5}
    ds_write_b128 v{PO+5}, {vr(PO,4)} offset:{L_POSD}
    s_and_b64 exec, {sr(12,2)}, vcc
    s_cbranch_execz K_nopf
    buffer_store_dwordx4 {vr(PO,4)}, v{PO+4}, {sr(sPF,4)}, 0 idxen{SC}
    K_nopf:
    s_mov_b64 exec, -1
    s_branch K_side_done
    K_side45:
    s_cmp_eq_u32 s{s_w}, 5
    s_cbranch_scc1 K_side5
    v_lshl_or_b32 v{SCN}, v{SCN}, 16, v{SCN+8}
    v_lshl_or_b32 v{SCN+1}, v{SCN+1}, 16, v{SCN+9}
    v_lshl_or_b32 v{SCN+2}, v{SCN+2}, 16, v{SCN+10}
    v_lshl_or_b32 v{SCN+3}, v{SCN+3}, 16, v{SCN+11}
    s_lshl_b32 s{s_t0}, s{s_c}, 10
    s_add_u32 s{s_t0}, s{s_t0}, {WS_OFF}
    buffer_store_dwordx4 {vr(SCN,4)}, v{T0}, {sr(sWS,4)}, s{s_t0} offen{SC}
    v_mul_u32_u24 v{PO}, 18, v1
    v_mov_b32 v{PO+1}, 0x3f80
    s_mov_b64 exec, 0xff
    ds_write_b16 v{PO}, v{PO+1} offset:{L_OHT}
    s_mov_b64 exec, -1
    s_branch K_side_done
    K_side5:
    """)
    if not fold:
        e(f"ds_write_b16 v{T0+1}, v{PO} offset:{L_WDA}\nds_write_b16 v{T0+1}, v{PO+1} offset:{L_WDA+ATS}")
    else:
        e(f"""
        v_lshlrev_b32 v{PO}, 16, v{PO}
        v_lshlrev_b32 v{PO+1}, 16, v{PO+1}
        v_mul_f32 v{PO}, s7, v{PO}
        v_mul_f32 v{PO+1}, s7, v{PO+1}
        v_cvt_pk_bf16_f32 v{PO+2}, v{PO}, v{PO+1}
        v_lshlrev_b32 v{PO+3}, 16, v{PO+2}
        v_sub_f32 v{PO}, v{PO}, v{PO+3}
        v_and_b32 v{PO+3}, s6, v{PO+2}
        v_sub_f32 v{PO+1}, v{PO+1}, v{PO+3}
        v_cvt_pk_bf16_f32 v{PO+3}, v{PO}, v{PO+1}
        ds_write_b16 v{T0+1}, v{PO+2} offset:{L_WDA}
        ds_write_b16_d16_hi v{T0+1}, v{PO+2} offset:{L_WDA+ATS}
        ds_write_b16 v{T0+1}, v{PO+3} offset:{L_WDA+2*ATS}
        ds_write_b16_d16_hi v{T0+1}, v{PO+3} offset:{L_WDA+3*ATS}
        """)
    e("K_side_done:")
    if fold:
        for k in range(4): e(f"v_lshlrev_b32 v{AW+2*k}, 16, v{WR+k}\nv_and_b32 v{AW+2*k+1}, s6, v{WR+k}")
        for k in range(8): e(f"v_mul_f32 v{AW+k}, s7, v{AW+k}")
        for k in range(4): e(f"v_cvt_pk_bf16_f32 v{WR+k}, v{AW+2*k}, v{AW+2*k+1}")
    if fold: e(f"ds_write_b128 v{tq}, {vr(WR,4)} offset:{L_W+8192}")
    e(f"""
    v_lshlrev_b32 v{wx0}, 16, v{wx0}
    v_lshlrev_b32 v{wx1}, 16, v{wx1}
    """)
    if fold: e(f"v_mul_f32 v{wx0}, {LN2}, v{wx0}\nv_mul_f32 v{wx1}, {LN2}, v{wx1}")
    e(f"""
    v_lshl_or_b32 v{T0}, v{hb}, 3, v{r4}
    v_lshlrev_b32 v{T0}, 7, v{T0}
    v_and_b32 v{T0+1}, 1, v{c4}
    v_lshrrev_b32 v{T0+2}, 1, v{c4}
    v_lshlrev_b32 v{T0+1}, 5, v{T0+1}
    v_lshl_or_b32 v{T0+1}, v{g1}, 4, v{T0+1}
    v_lshl_or_b32 v{T0+1}, v{T0+2}, 3, v{T0+1}
    s_lshl_b32 s{s_t0}, s{s_cb}, 6
    s_add_u32 s{s_t0}, s{s_t0}, {L_W}
    v_add3_u32 v{T0+3}, v{T0}, v{T0+1}, s{s_t0}
    v_lshl_add_u32 v{T0}, v{slot}, 3, v{T0}
    v_add_u32 v{T0}, {L_W+8192}, v{T0}
    v_lshl_add_u32 v{T0+1}, v{hb}, 10, v{T0+3}
    s_lshl_b32 s{s_t0}, s{s_cb}, 12
    s_xor_b32 s{s_t1}, s{s_t0}, 4096
    v_add_u32 v{T0+2}, s{s_t1}, v{T0+1}
    v_add_u32 v{T0+1}, s{s_t0}, v{T0+1}
    s_lshl_b32 s{s_t0}, s{s_rb}, 12
    s_add_u32 s{s_t0}, s{s_t0}, {L_STG}
    v_lshl_add_u32 v{AW+5}, v{rho}, 7, s{s_t0}
    s_lshl_b32 s{s_t0}, s{s_cb}, 2
    v_lshlrev_b32 v{AW+4}, 1, v{hb}
    v_xor_b32 v{AW+4}, s{s_t0}, v{AW+4}
    v_xor_b32 v{AW+4}, v{AW+4}, v{f3}
    """)
    for s_ in range(4):
        k = 4 * (s_ >> 1) + (s_ & 1)
        e(f"v_xor_b32 v{AW+s_}, {k}, v{AW+4}\nv_lshl_add_u32 v{AW+s_}, v{AW+s_}, 4, v{AW+5}")
    e(f"""
    s_lshl_b32 s{s_t0}, s{s_rb}, 5
    v_add_u32 v{PS}, s{s_t0}, v{rho}
    v_mul_u32_u24 v{PS}, {ATS}, v{PS}
    s_lshl_b32 s{s_t0}, s{s_cb}, 6
    s_add_u32 s{s_t0}, s{s_t0}, {L_ATAB}
    v_lshl_add_u32 v{PS}, v{hb}, 5, v{PS}
    v_add_u32 v{PS}, s{s_t0}, v{PS}
    """)
    e(f"""
    s_and_b32 s{s_t0}, s{s_c}, 7
    s_lshl_b32 s{s_t0}, s{s_t0}, 5
    v_mov_b32 v{PRE0}, s{s_t0}
    v_mov_b32 v{PRE0+1}, 1
    """)
    stamp('side')
    e("s_waitcnt vmcnt(0) lgkmcnt(0)\ns_barrier")
    e.ds = []; e.vm = []
    stamp('Bd'); rt(27)
    e(f"""
    s_cmp_lg_u32 s{s_w}, 0
    s_cbranch_scc1 K_nosig
    s_mov_b64 exec, 1
    buffer_atomic_add v{PRE0+1}, v{PRE0}, {sr(sDBG,4)}, 0 offen sc1
    s_mov_b64 exec, -1
    K_nosig:
    """)
    HO = [HR, HR + 4, ACC1, ACC1 + 4]
    for s_ in range(4): e.d('ho', f"ds_read_b128 {vr(HO[s_],4)}, v{AW+s_}")
    for s_ in range(4):
        for t in range(2): e.d('w1', f"ds_read_b64_tr_b16 {vr(PRE1+4*s_+2*t,2)}, v{T0+1+(s_>>1)} offset:{1024*(s_&1)+512*t}")
    for s_ in range(4):
        for t in range(2): e.d('wh', f"ds_read_b64_tr_b16 {vr(TMP+4*s_+2*t,2)}, v{T0+1+(s_>>1)} offset:{16384+1024*(s_&1)+512*t}")
    e.wds('w1')
    for s_ in range(4): e(mfma(ACC0, PRE1 + 4 * s_, HO[s_], None if s_ == 0 else ACC0))
    for s_ in range(4):
        for t in range(2): e.d('wm', f"ds_read_b64_tr_b16 {vr(WHM+4*s_+2*t,2)}, v{T0+3} offset:{24576+2048*s_+512*t}")
    e.wds('wh')
    for s_ in range(4): e(mfma(DH, TMP + 4 * s_, HO[s_], None if s_ == 0 else DH))
    for blk in range(2):
        for s_ in range(4):
            for t in range(2): e.d('w2', f"ds_read_b64_tr_b16 {vr(W2+16*blk+4*s_+2*t,2)}, v{T0} offset:{2048*s_+512*t+64*blk}")
    if fold:
        for r in range(16): e(f"v_mul_f32 v{ACC0+r}, s7, v{ACC0+r}")
    for r in range(8): e(f"v_cvt_pk_bf16_f32 v{AW+r}, v{ACC0+2*r}, v{ACC0+2*r+1}")
    e(f"ds_write_b128 v{PS}, {vr(AW,4)}\nds_write_b128 v{PS}, {vr(AW+4,4)} offset:16")
    e(mfma(ACC0, ZQ, ZQ)); e(mfma(ACC1, ZQ, ZQ))
    for r in list(range(OH1A, OH1A + 8)) + list(range(OH2, OH2 + 8)): e(f"v_mov_b32 v{r}, 0")
    e(f"""
    v_lshlrev_b32 v{T0+2}, 5, v1
    v_add_u32 v{T0+3}, {L_ACC}, v{tq}
    v_cmp_gt_u32 vcc, 91, v0
    s_waitcnt lgkmcnt(0)
    s_barrier
    """)
    e.ds = []
    stamp('atab')
    for r in range(7): e(f"ds_write_b128 v{T0+3}, {vr(ZQ,4)} offset:{8192*r}")
    e(f"""
    s_mov_b64 exec, vcc
    ds_write_b128 v{T0+3}, {vr(ZQ,4)} offset:{8192*7}
    s_mov_b64 exec, -1
    s_cmp_lg_u32 s{s_w}, 0
    s_cbranch_scc1 K_polled
    s_mov_b32 s{s_t0}, 0
    s_mov_b64 exec, 0xff
    K_poll:
    buffer_load_dword v{T0}, v{T0+2}, {sr(sDBG,4)}, 0 offen sc1
    s_add_u32 s{s_t0}, s{s_t0}, 1
    s_waitcnt vmcnt(0)
    v_cmp_gt_u32 vcc, 32, v{T0}
    s_cmp_gt_u32 s{s_t0}, 0x40000
    s_cbranch_scc1 K_pollx
    s_cbranch_vccz K_pollx
    s_sleep {opt.get('sleep', 8)}
    s_branch K_poll
    K_pollx:
    s_mov_b64 exec, -1
    K_polled:
    """)
    OFFV = 170; cREC = 174; vT2D = 175; tA = 176; tB = 177
    RECV = PRE0; HADR = TMP; RANK = MR
    def offs_pre():
        e(f"""
        v_lshlrev_b32 v{tA}, 10, v{o8}
        s_lshl_b32 s{s_t0}, s{s_w}, 15
        s_lshl_b32 s{s_t1}, s{s_b}, 2
        s_add_u32 s{s_t0}, s{s_t0}, s{s_t1}
        s_add_u32 s{s_o}, s{s_t0}, {WS_OFF}
        s_add_u32 s{s_o+1}, s{s_o}, 8192
        s_add_u32 s{s_o+2}, s{s_o}, 16384
        s_add_u32 s{s_o+3}, s{s_o}, 24576
        """)
    def offs_loads():
        for i in range(4):
            e.v('off', f"buffer_load_dword v{OFFV+i}, v{tA}, {sr(sWS,4)}, s{s_o+i} offen{SC}")
    def rec_loads(first=False):
        e(f"""
        s_mov_b32 s{s_t0}, {RECB}
        v_mul_u32_u24 v{cREC}, s{s_t0}, v{o8}
        v_lshl_add_u32 v{cREC}, v{t8}, 4, v{cREC}
        v_lshl_add_u32 v{vT2D}, v{t8}, 1, s{s_done}
        s_lshl_b32 s{s_t0}, s{s_done}, 3
        v_add_u32 v{cREC}, s{s_t0}, v{cREC}
        s_mul_i32 s{s_o}, s{s_w}, {32*RECB}
        s_add_u32 s{s_o+1}, s{s_o}, {8*RECB}
        s_add_u32 s{s_o+2}, s{s_o}, {16*RECB}
        s_add_u32 s{s_o+3}, s{s_o}, {24*RECB}
        """)
        for i in range(4):
            m = sMASK + 8 * i
            e(f"s_waitcnt vmcnt({3+i})")
            if first and i == 0: stamp('offs')
            e(f"""
            v_lshrrev_b32 v{tB}, 16, v{OFFV+i}
            v_and_b32 v{tA}, 0xffff, v{OFFV+i}
            v_sub_u32 v{HADR+i}, v{tB}, v{vT2D}
            v_lshl_add_u32 v{RANK+i}, v{tA}, 3, v{cREC}
            v_cmp_lt_i32 {sr(m,2)}, 0, v{HADR+i}
            v_cmp_lt_i32 {sr(m+4,2)}, 16, v{HADR+i}
            """)
            e(f"v_mov_b32 v{vMX}, v{tB}" if i == 0 else f"v_max_u32 v{vMX}, v{vMX}, v{tB}")
            e(f"s_or_b64 exec, {sr(m,2)}, 1")
            e(f"buffer_load_dwordx4 {vr(RECV+8*i,4)}, v{RANK+i}, {sr(sWS,4)}, s{s_o+i} offen{SC}")
            e(f"s_or_b64 exec, {sr(m+4,2)}, 1")
            e(f"buffer_load_dwordx4 {vr(RECV+8*i+4,4)}, v{RANK+i}, {sr(sWS,4)}, s{s_o+i} offen offset:128{SC}")
            e("s_mov_b64 exec, -1")
        for i in range(4):
            m = sMASK + 8 * i
            e(f"v_cmp_lt_i32 {sr(m+2,2)}, 1, v{HADR+i}\nv_cmp_lt_i32 {sr(m+6,2)}, 17, v{HADR+i}")
        e.vm = []
    offs_pre()
    e("s_barrier")
    stamp('Be'); rt(26)
    offs_loads()
    rec_loads(True)
    slots = [(i, ld, u) for i in range(4) for ld in range(2) for u in range(2)]
    def sreg(k): i, ld, u = slots[k]; return RECV + 8 * i + 4 * ld + 2 * u
    def smask(k): i, ld, u = slots[k]; return sMASK + 8 * i + 4 * ld + 2 * u
    e(f"K_hist:\nv_mov_b32 v{tA}, 1")
    for i in range(4):
        e(f"s_waitcnt vmcnt({6-2*i})")
        if i == 0: stamp('rec')
        for k in range(4 * i, 4 * i + 4): e(f"v_lshrrev_b32 v{HADR+k}, 2, v{sreg(k)+1}")
        for k in range(4 * i, 4 * i + 4):
            e(f"s_mov_b64 exec, {sr(smask(k),2)}\nds_add_rtn_u32 v{RANK+k}, v{HADR+k}, v{tA} offset:{L_HIST}")
        e("s_mov_b64 exec, -1")
    e("s_waitcnt lgkmcnt(0)\ns_barrier")
    stamp('B1')
    e(f"""
    ds_read_b64 v[{OFFV}:{OFFV+1}], v{cRA} offset:{L_HIST}
    s_add_u32 s{s_t0}, s{s_done}, s{s_take}
    v_cmp_lt_u32 vcc, s{s_t0}, v{vMX}
    s_waitcnt lgkmcnt(0)
    v_add_u32 v{tA}, v{OFFV}, v{OFFV+1}
    v_mov_b32 v{tB}, v{tA}
    """)
    wave_scan(e, tB)
    e(f"""
    v_sub_u32 v{OFFV+2}, v{tB}, v{tA}
    v_readlane_b32 s{s_T}, v{tB}, 63
    v_add_u32 v{OFFV+3}, v{OFFV+2}, v{OFFV}
    ds_write_b64 v{cRA}, v[{OFFV+2}:{OFFV+3}] offset:{L_BASE}
    s_cmp_gt_u32 s{s_T}, {CAP}
    s_cbranch_scc1 K_retry
    """)
    for k in range(16):
        e(f"s_mov_b64 exec, {sr(smask(k),2)}\nds_read_b32 v{HADR+k}, v{HADR+k} offset:{L_BASE}")
    e(f"""
    s_mov_b64 exec, -1
    s_cbranch_vccnz K_setflag
    K_flagset:
    s_add_u32 s{s_t1}, s{s_T}, 31
    s_lshr_b32 s{s_t1}, s{s_t1}, 5
    s_lshr_b32 s{s_t0}, s{s_t1}, 3
    s_and_b32 s{s_t1}, s{s_t1}, 7
    s_mul_i32 s{s_p}, s{s_w}, s{s_t0}
    s_min_u32 s{s_t2}, s{s_w}, s{s_t1}
    s_add_u32 s{s_p}, s{s_p}, s{s_t2}
    s_add_u32 s{s_end}, s{s_p}, s{s_t0}
    s_cmp_lt_u32 s{s_w}, s{s_t1}
    s_addc_u32 s{s_end}, s{s_end}, 0
    s_lshl_b32 s{s_p}, s{s_p}, 5
    s_lshl_b32 s{s_end}, s{s_end}, 5
    s_min_u32 s{s_end}, s{s_end}, s{s_T}
    s_lshl_b32 s{s_t0}, s{s_T}, 3
    v_add_u32 v{tA}, s{s_t0}, v{cRA}
    """)
    for q in range(4):
        if opt.get('cnt0'): e("s_waitcnt lgkmcnt(12)")
        elif q == 0: e("s_waitcnt lgkmcnt(0)")
        for k in range(4 * q, 4 * q + 4): e(f"v_add_lshl_u32 v{HADR+k}, v{HADR+k}, v{RANK+k}, 3")
        for k in range(4 * q, 4 * q + 4):
            e(f"s_mov_b64 exec, {sr(smask(k),2)}\nds_write_b64 v{HADR+k}, v[{sreg(k)}:{sreg(k)+1}] offset:{L_REC}")
        e("s_mov_b64 exec, -1")
    e(f"""
    s_cmp_lg_u32 s{s_w}, 7
    s_cbranch_scc1 K_nopad
    ds_write_b64 v{tA}, v[{ZQ}:{ZQ+1}] offset:{L_REC}
    K_nopad:
    s_lshl_b32 s{s_p8}, s{s_p}, 3
    s_mov_b32 s{s_lim}, 0
    s_mov_b32 s{s_nbCur}, 0
    v_add_u32 v{vRA}, s{s_p8}, v{cRA}
    v_add_u32 v{vTA}, s{s_p8}, v{cTA}
    """)
    for r in range(8): e(f"v_mov_b32 v{MR+r}, 0")
    e("s_waitcnt lgkmcnt(0)\ns_barrier")
    e.ds = []; e.vm = []
    spin(3)
    stamp('B2')
    e(f"s_cmp_ge_u32 s{s_p}, s{s_end}\ns_cbranch_scc1 K_wavedone")

    tail = []
    D = lambda tag, t: (lambda: e.d(tag, t))
    V = lambda tag, t: (lambda: e.v(tag, t))
    def rec_read():
        return [D('rw', f"ds_read_b64 v[{RW}:{RW+1}], v{vRA} offset:{L_REC}"), D('rw', f"ds_read_u16 v{vPI}, v{vRA} offset:{L_REC}")]
    def window_pre():
        return [f"s_sub_u32 s{s_t0}, s{s_end}, s{s_p}", f"s_min_u32 s{s_need}, s{s_t0}, 64", f"s_bfm_b64 {sr(sMV,2)}, s{s_t0}, 0",
                f"s_cmp_ge_u32 s{s_t0}, 64", f"s_cselect_b64 {sr(sMV,2)}, -1, {sr(sMV,2)}", f"s_mov_b32 s{s_flN}, 0"]
    def window():
        l = e.lab("K_win")
        tail.append(f"""
        {l}a:
        v_readfirstlane_b32 s{s_nbN}, v{RW+1}
        s_mov_b32 s{s_flN}, 1
        s_add_u32 s{s_lim}, s{s_nbN}, 128
        v_cmp_gt_u32 vcc, s{s_lim}, v{RW+1}
        s_nop 0
        s_and_b64 {sr(sMK,2)}, vcc, {sr(sMV,2)}
        s_bcnt1_i32_b64 s{s_cntN}, {sr(sMK,2)}
        s_branch {l}b
        """)
        return [lambda: (e.wds('rw'), e(f"v_cmp_gt_u32 vcc, s{s_lim}, v{RW+1}")),
                V('ps', f"buffer_load_dwordx3 {vr(PS,3)}, v{vPI}, {sr(sPF,4)}, 0 idxen{SC}"),
                D('pd', f"ds_read_b128 {vr(PD,4)}, v{RW+1} offset:{L_POSD}"),
                f"s_and_b64 {sr(sMK,2)}, vcc, {sr(sMV,2)}",
                f"s_bcnt1_i32_b64 s{s_cntN}, {sr(sMK,2)}",
                f"s_cmp_lg_u32 s{s_cntN}, s{s_need}",
                f"s_cbranch_scc1 {l}a\n{l}b:",
                f"s_add_u32 s{s_pn}, s{s_p}, s{s_cntN}"]
    def idx_read(off): return [D('idx', f"ds_read_u16 v{IDX+2*j}, v{vTA} offset:{L_REC+off+64*j}") for j in range(4)]
    def hs_read(): return [D('hs', f"ds_read_b128 {vr(HS+4*s_,4)}, v{cHS+s_}") for s_ in range(4)]
    def oh2_read(): return [D('oh2', f"ds_read_b64_tr_b16 {vr(OH2+4*s_+2*t,2)}, v{cM+t} offset:{1024*s_}") for s_ in range(2) for t in range(2)]
    def aw_read():
        return [f"s_mul_i32 s{s_t0}, s{s_nbN}, {ATS//16}",
                f"s_mov_b64 exec, {sr(sLO,2)}\nv_add_u32 v{vAWA}, s{s_t0}, v{cAW}\ns_mov_b64 exec, -1"] + \
               [D('aw', f"ds_read_b64_tr_b16 {vr(AW+4*blk+2*t,2)}, v{vAWA} offset:{4*ATS*t+64*blk}") for blk in range(2) for t in range(2)]
    def m_b():
        return [D('mc', f"ds_write_b64 v{vMA}, v[{ZQ}:{ZQ+1}]"),
                f"s_mov_b32 exec_lo, 0\ns_mov_b32 exec_hi, s{s_mkB}\nds_write_b64 v{vMA}, v[{WP}:{WP+1}]\ns_mov_b64 exec, -1"]
    def misc():
        t0, t1, t2, t3 = T0, T0 + 1, T0 + 2, T0 + 3
        t4 = PD + 3
        L = [D('mc', f"ds_write_b64 v{vMA}, v[{ZQ}:{ZQ+1}]"),
             f"""v_subrev_u32 v{t0}, s{s_nbN}, v{RW+1}
             v_sub_f32 v{t1}, v{PD}, v{PS}
             v_sub_f32 v{t2}, v{PD+1}, v{PS+1}
             v_sub_f32 v{t3}, v{PD+2}, v{PS+2}
             v_min_u32 v{OH1A}, 0x80, v{t0}
             v_mul_f32 v{t4}, v{t1}, v{t1}
             v_lshrrev_b32 v{t0}, 1, v{OH1A}
             v_fmac_f32 v{t4}, v{t2}, v{t2}
             v_cvt_pk_bf16_f32 v{WP}, 1.0, v{t1}
             v_fmac_f32 v{t4}, v{t3}, v{t3}
             v_cvt_pk_bf16_f32 v{WP+1}, v{t2}, v{t3}
             v_cvt_pk_bf16_f32 v{OH1B}, v{t4}, v{RW}
             v_xor_b32 v{vMA}, v{t0}, v{cMW}""",
             f"s_mov_b32 s{s_mkB}, s{sMK+1}",
             f"s_and_b64 exec, {sr(sMK,2)}, {sr(sLO,2)}\nds_write_b64 v{vMA}, v[{WP}:{WP+1}]\ns_mov_b64 exec, -1",
             f"v_permlane32_swap_b32 v{OH1A}, v{OH1B}" + (f"\nv_mov_b32 v{OH1A+1}, v{OH1A}\nv_mov_b32 v{OH1B+1}, v{OH1B}" if fold else ""),
             lambda: (e(f"s_mov_b64 exec, {sr(sLO,2)}"), e.d('oh1', f"ds_read_b128 {vr(OH1A,4)}, v{OH1A} offset:{L_OHT}"),
                      e.d('oh1', f"ds_read_b128 {vr(OH1B,4)}, v{OH1B} offset:{L_OHT}"), e("s_mov_b64 exec, -1"))]
        return L
    def dma():
        L = []
        for j in range(4):
            L.append(f"s_add_u32 m0, s{s_stg}, {1024*j}" if j else f"s_mov_b32 m0, s{s_stg}")
            L.append(V('dma', f"buffer_load_dwordx4 {vr(IDX+2*j,2)}, {sr(sH,4)}, 0 idxen offen lds"))
        return L
    def run(L, gap=False):
        for x in L:
            if callable(x): x()
            else:
                e(x)
                if gap and 'm0' in x: e("s_nop 0")
    def flush(snb):
        e(f"s_mul_i32 s{s_t0}, s{snb}, {ACS//16}\nv_lshl_add_u32 v{T0+1}, s{snb}, 1, v{cP}\nv_add_u32 v{T0}, s{s_t0}, v{cF}")
        for j in range(4):
            e(f"v_cvt_f64_f32 {vr(TMP+4*j,2)}, v{ACC0+4*j}\nv_cvt_f64_f32 {vr(TMP+4*j+2,2)}, v{ACC1+4*j}")
        for j in range(4):
            e(f"ds_add_f64 v{T0}, {vr(TMP+4*j,2)} offset:{2*ACS*j}\nds_add_f64 v{T0}, {vr(TMP+4*j+2,2)} offset:{2*ACS*j+256}")
        R = [4 * j + 1 + c for j in range(4) for c in range(3)]
        for r in R: e(f"v_mul_f32 v{ACC0+r}, v{ACC0+r}, v{wx0}")
        for r in R: e(f"v_fmac_f32 v{ACC0+r}, v{ACC1+r}, v{wx1}")
        e(mfma(ACC1, ZQ, ZQ))
        lo = [ACC0 + 4 * j + 1 + c for j in range(2) for c in range(3)]
        for r in lo: e(f"v_add_f32_dpp v{r}, v{r}, v{r} row_ror:8 row_mask:0xf bank_mask:0x3")
        for r in lo: e(f"v_add_f32_dpp v{r}, v{r+8}, v{r+8} row_ror:8 row_mask:0xf bank_mask:0xc")
        lo = [ACC0 + 1 + c for c in range(3)]
        for r in lo: e(f"v_add_f32_dpp v{r}, v{r}, v{r} row_half_mirror row_mask:0xf bank_mask:0x5")
        for r in lo: e(f"v_add_f32_dpp v{r}, v{r+4}, v{r+4} row_half_mirror row_mask:0xf bank_mask:0xa")
        for r in lo: e(f"v_add_f32_dpp v{r}, v{r}, v{r} quad_perm:[1,0,3,2] row_mask:0xf bank_mask:0xf")
        for r in lo: e(f"v_add_f32_dpp v{r}, v{r}, v{r} quad_perm:[2,3,0,1] row_mask:0xf bank_mask:0xf")
        for c in range(3): e(f"v_cvt_f64_f32 {vr(TMP+2*c,2)}, v{ACC0+1+c}")
        e(mfma(ACC0, ZQ, ZQ))
        e(f"s_mov_b64 exec, {sr(sQ,2)}")
        for c in range(3): e(f"ds_add_f64 v{T0+1}, {vr(TMP+2*c,2)} offset:{8*c}")
        e("s_mov_b64 exec, -1")
    def gemm1(q, blk, oh1):
        return [mfma(q, oh1, AW + 4 * blk, None)] + [mfma(q, HS + 4 * s_, W2 + 16 * blk + 4 * s_, q) for s_ in range(4)]
    def seg(acc): return [mfma(acc, OH2 + 4 * s_, MR + 4 * s_, acc) for s_ in range(2)]
    def phase(P, G, S, pre, side):
        head = []
        if not fold:
            head = [f"v_pk_mul_f32 {vr(TMP+i,2)}, {vr(P+i,2)}, {sr(sC,2)}" for i in range(0, 16, 2)]
            ex = [f"v_exp_f32 v{TMP+i}, v{TMP+i}" for i in range(16)]
        else:
            ex = [f"v_exp_f32 v{TMP+i}, -v{P+i}" for i in range(16)]
        base = []
        for m, x in enumerate([G[0], S[0], S[1], G[1]]): base += [x] + ex[3 * m:3 * m + 3]
        base += ex[12:]
        base += [f"v_pk_add_f32 {vr(TMP+i,2)}, {vr(TMP+i,2)}, 1.0 op_sel_hi:[1,0]" for i in range(0, 16, 2)]
        rc = [f"v_rcp_f32 v{TMP+i}, v{TMP+i}" for i in range(16)]
        for m, x in enumerate(G[2:5]): base += [x] + rc[3 * m:3 * m + 3]
        base += rc[9:]
        base += [f"v_pk_mul_f32 {vr(TMP+i,2)}, {vr(P+i,2)}, {vr(TMP+i,2)}" for i in range(0, 16, 2)]
        base += [f"v_cvt_pk_bf16_f32 v{MR+i//2}, v{TMP+i}, v{TMP+i+1}" for i in range(0, 16, 2)]
        assert len(base) == 63
        for x in head: e(x)
        q = [(st, it) for st, L in side for it in L]
        for i, x in enumerate(base):
            if i in pre: run(pre[i])
            e(x)
            if ('v_exp' in x or 'v_rcp' in x) and q and q[0][0] <= i:
                run([q.pop(0)[1]])
        assert not q, q

    run(rec_read()); run(idx_read(0)); run(window_pre())
    e.wds('idx')
    e.ds = ['rw']
    W = window()
    run(W[:3])
    run(dma(), True)
    run(W[3:])
    e(f"s_mov_b32 s{s_flN}, 0")
    run(aw_read())
    run(idx_read(256))
    e.wvm('ps'); e.wds('pd')
    run(misc())
    e.wvm0()
    run(hs_read())
    e.wds0()
    G = gemm1(PRE0, 0, OH1A)
    for x, y in zip(G[:4], zip(dma()[0::2], dma()[1::2])):
        e(y[0]); e(x); y[1]()
    e(G[4])
    if opt.get('prio', 1): e("s_setprio 3")
    e("s_nop 7\ns_nop 3")
    stamp('wprol')
    if opt.get('stamp'): e(f"s_mov_b32 s{s_dbg}, 0")
    e(".p2align 4\nK_loop:")
    loop_start = len(e.L)
    e.ds = []; e.vm = ['dma'] * 4
    if opt.get('stamp'): e(f"s_add_u32 s{s_dbg}, s{s_dbg}, 1")
    top = [f"s_lshl_b32 s{s_p8}, s{s_pn}, 3",
           f"v_add_u32 v{vRA}, s{s_p8}, v{cRA}\nv_add_u32 v{vTA}, s{s_p8}, v{cTA}\ns_mov_b32 s{s_p}, s{s_pn}"] + rec_read()
    shift = [f"s_mov_b32 s{s_flush}, s{s_flN}", f"s_mov_b32 s{s_nbOld}, s{s_nbCur}", f"s_mov_b32 s{s_nbCur}, s{s_nbN}",
             f"s_mov_b32 s{s_cntCur}, s{s_cntN}"]
    prio = []
    if opt.get('prio', 1):
        prio = [f"s_cmp_lt_u32 s{s_t0}, 129", "s_cbranch_scc1 K_prio\nK_priob:"]
        tail.append(f"""
        K_prio:
        s_setprio 2
        s_cmp_lt_u32 s{s_t0}, 65
        s_cbranch_scc0 K_priob
        s_setprio 1
        s_cmp_lg_u32 s{s_t0}, 0
        s_cbranch_scc1 K_priob
        s_setprio 0
        s_branch K_priob
        """)
    wp = window_pre()
    phase(PRE0, gemm1(PRE1, 1, OH1A), seg(ACC1), {},
          [(1, top + shift[:2]), (9, oh2_read() + m_b() + shift[2:] + wp[:2]), (29, wp[2:] + window()),
           (37, [lambda: (e.wvm('dma'), run(hs_read()))])])
    if prio: run(prio)
    e(f"s_cmp_lg_u32 s{s_flush}, 0\ns_cbranch_scc1 K_flush\nK_flushb:")
    phase(PRE1, gemm1(PRE0, 0, OH1B), seg(ACC0), {4: [lambda: e.wds('oh2')], 12: [lambda: e.wds('idx')]},
          [(1, idx_read(0)), (13, dma())])
    e(f"""
    s_cmp_gt_u32 s{s_cntCur}, 32
    s_cselect_b32 s{s_t0}, 1, s{s_cntN}
    s_cmp_eq_u32 s{s_t0}, 0
    s_cbranch_scc1 K_drain
    """)
    phase(PRE0, gemm1(PRE1, 1, OH1B), seg(ACC1), {},
          [(1, aw_read()), (9, oh2_read() + [lambda: e.wvm('ps')] + misc()[:2]), (29, misc()[2:]), (37, [e.wvm0] + hs_read())])
    phase(PRE1, gemm1(PRE0, 0, OH1A), seg(ACC0), {0: [lambda: e.wds('oh1')], 12: [lambda: e.wds('idx')]},
          [(1, idx_read(256)), (13, dma())])
    e(f"s_cmp_lg_u32 s{s_cntN}, 0\ns_cbranch_scc1 K_loop")
    assert e.vm == ['dma'] * 4, e.vm
    def xf(l):
        if opt.get('x_novm') and ('buffer_load' in l or 'vmcnt' in l): return False
        if opt.get('x_nods') and ('_tr_' in l or 'ds_read_b128' in l or 'ds_write' in l): return False
        return True
    e.L = e.L[:loop_start] + [l for l in e.L[loop_start:] if xf(l)]
    e("K_drain:\ns_nop 0")
    stamp('loop')
    if opt.get('stamp'): e(f"v_writelane_b32 v{vST}, s{s_dbg}, 28")
    for x in seg(ACC1): e(x)
    e(f"ds_write_b64 v{vMA}, v[{ZQ}:{ZQ+1}]")
    for r in range(8): e(f"v_mov_b32 v{OH2+r}, 0")
    e("s_nop 4")
    flush(s_nbCur)
    e("K_wavedone:")
    nd = T0; hh = T0 + 1; aA = T0 + 2; aF = T0 + 3
    e(f"""
    s_setprio 0
    v_and_b32 v{nd}, 31, v1
    v_lshrrev_b32 v{hh}, 5, v1
    s_lshl_b32 s{s_t0}, s{s_rb}, 5
    v_add_u32 v{nd}, s{s_t0}, v{nd}
    v_mul_u32_u24 v{aA}, {ACS}, v{nd}
    v_lshl_add_u32 v{aA}, v{hh}, 6, v{aA}
    v_add_u32 v{aA}, {L_ACC}, v{aA}
    v_lshlrev_b32 v{PS}, 2, v0
    v_lshlrev_b32 v{PS+1}, 3, v0
    v_add_u32 v{PS+1}, {L_PACC}, v{PS+1}
    v_mov_b32 v{aF}, {L_FLAG}
    v_lshrrev_b32 v{RW}, 2, v0
    v_and_b32 v{RW+1}, 3, v0
    v_cmp_gt_u32 vcc, {NPB}, v{RW}
    v_cmp_gt_u32 {sr(sMK,2)}, 3, v{RW+1}
    v_add_u32 v{RW}, s{s_nb0}, v{RW}
    v_mul_u32_u24 v{RW}, 6, v{RW}
    v_lshl_add_u32 v{RW}, v{RW+1}, 1, v{RW}
    s_and_b64 {sr(sMK,2)}, {sr(sMK,2)}, vcc
    v_cmp_gt_u32 vcc, {NPB}, v{nd}
    v_add_u32 v{nd}, s{s_nb0}, v{nd}
    v_lshlrev_b32 v{nd}, 7, v{nd}
    v_lshl_add_u32 v{nd}, v{hh}, 5, v{nd}
    s_lshl_b32 s{s_t1}, s{s_cb}, 6
    s_waitcnt vmcnt(0) lgkmcnt(0)
    """)
    stamp('drain')
    e("s_barrier")
    stamp('B3')
    dreg = lambda k: (PRE0 + 4 * k) if k < 8 else (ACC0 + 4 * (k - 8))
    e(f"ds_read_b32 v{aF}, v{aF}")
    for k in range(16): e(f"ds_read_b128 {vr(dreg(k),4)}, v{aA} offset:{128*(k>>2)+16*(k&3)}")
    e(f"ds_read_b64 {vr(PD,2)}, v{PS+1}\nds_read_b32 v{PD+2}, v{PS} offset:{L_POSD}")
    e(f"s_waitcnt lgkmcnt(14)\nv_readfirstlane_b32 s{s_t0}, v{aF}")
    for k in range(16):
        if k % 4 == 0 and k: e(f"s_waitcnt lgkmcnt({14-k})")
        r = dreg(k)
        e(f"v_cvt_f32_f64 v{r}, {vr(r,2)}\nv_cvt_f32_f64 v{r+1}, {vr(r+2,2)}")
        if k == 0: e(f"s_cmp_lg_u32 s{s_t0}, 0\ns_cbranch_scc1 K_more")
        if fold: e(f"v_mul_f32 v{r}, {LN2}, v{r}\nv_mul_f32 v{r+1}, {LN2}, v{r+1}")
        if k: e(f"v_cvt_pk_bf16_f32 v{HS+k-1}, v{dreg(k-1)}, v{dreg(k-1)+1}")
        if k % 4 == 1 and k > 4: e(mfma(DH, WHM + 4 * (k // 4 - 1), HS + 4 * (k // 4 - 1), DH))
    e(f"v_cvt_pk_bf16_f32 v{HS+15}, v{dreg(15)}, v{dreg(15)+1}")
    e(f"s_waitcnt lgkmcnt(0)\nv_cvt_f32_f64 v{PD}, {vr(PD,2)}")
    e(mfma(DH, WHM + 12, HS + 12, DH))
    e(f"""
    v_add_f32 v{PD}, v{PD}, v{PD+2}
    v_cvt_pk_bf16_f32 v{PD}, v{PD}, v{PD}
    s_mov_b64 exec, {sr(sMK,2)}
    s_cbranch_execz K_nopos
    buffer_store_short v{PD}, v{RW}, {sr(sOP,4)}, 0 offen
    K_nopos:
    s_mov_b64 exec, -1
    """)
    for r in range(8):
        e(f"v_lshlrev_b32 v{ACC0+2*r}, 16, v{HR+r}\nv_and_b32 v{ACC0+2*r+1}, 0xffff0000, v{HR+r}")
    X = TMP
    for i in range(0, 16, 2): e(f"v_pk_mul_f32 {vr(X+i,2)}, {vr(DH+i,2)}, {sr(sC,2)}")
    for i in range(16): e(f"v_exp_f32 v{X+i}, v{X+i}")
    for i in range(0, 16, 2): e(f"v_pk_add_f32 {vr(X+i,2)}, {vr(X+i,2)}, 1.0 op_sel_hi:[1,0]")
    for i in range(16): e(f"v_rcp_f32 v{X+i}, v{X+i}")
    for hf in range(2):
        for i in range(8 * hf, 8 * hf + 8, 2): e(f"v_pk_fma_f32 {vr(X+i,2)}, {vr(DH+i,2)}, {vr(X+i,2)}, {vr(ACC0+i,2)}")
        for i in range(4 * hf, 4 * hf + 4): e(f"v_cvt_pk_bf16_f32 v{HS+i}, v{X+2*i}, v{X+2*i+1}")
    spin(2)
    stamp('epi'); rt(25)
    fin(s_b, s_w, 8, sWS, WS_STAMP, T0 + 1)
    e(f"""
    s_mov_b64 exec, vcc
    s_cbranch_execz K_end
    buffer_store_dwordx4 {vr(HS,4)}, v{nd}, {sr(sOUT,4)}, s{s_t1} offen
    buffer_store_dwordx4 {vr(HS+4,4)}, v{nd}, {sr(sOUT,4)}, s{s_t1} offen offset:16
    K_end:
    s_endpgm
    """)
    e("K_flush:")
    flush(s_nbOld)
    e("s_branch K_flushb")
    for t in tail: e(t)
    e(f"K_setflag:\nv_mov_b32 v{tA}, 1\nv_mov_b32 v{tB}, {L_FLAG}\nds_write_b32 v{tB}, v{tA}\ns_waitcnt lgkmcnt(0)\ns_branch K_flagset")
    def zero_hist():
        e(f"""
        v_cmp_gt_u32 vcc, 65, v0
        v_lshlrev_b32 v{tA}, 4, v0
        s_nop 0
        s_mov_b64 exec, vcc
        ds_write_b128 v{tA}, {vr(ZQ,4)} offset:{L_HIST}
        s_mov_b64 exec, -1
        s_waitcnt lgkmcnt(0)
        s_barrier
        """)
    e("K_retry:\ns_waitcnt lgkmcnt(0)\ns_barrier")
    zero_hist()
    e(f"s_mov_b32 s{s_take}, 8\ns_mov_b32 s{sMV}, 0x0f0f0f0f\ns_mov_b32 s{sMV+1}, 0x0f0f0f0f")
    for i in range(4):
        e(f"s_mov_b64 {sr(sMASK+8*i+4,2)}, 0\ns_mov_b64 {sr(sMASK+8*i+6,2)}, 0")
        e(f"s_and_b64 {sr(sMASK+8*i,2)}, {sr(sMASK+8*i,2)}, {sr(sMV,2)}\ns_and_b64 {sr(sMASK+8*i+2,2)}, {sr(sMASK+8*i+2,2)}, {sr(sMV,2)}")
    e("s_branch K_hist")
    e("K_more:\ns_waitcnt lgkmcnt(0)\ns_barrier")
    zero_hist()
    e(mfma(ACC0, ZQ, ZQ)); e(mfma(ACC1, ZQ, ZQ))
    e(f"s_add_u32 s{s_done}, s{s_done}, s{s_take}\ns_mov_b32 s{s_take}, 32")
    e.vm = []
    offs_pre(); offs_loads(); rec_loads()
    e("s_branch K_hist")
    s = HEADER + f"; @launch grid=({NW},1,1) block=(512,1,1) lds={LDS}\n"
    s += '.amdgcn_target "amdgcn-amd-amdhsa--gfx950"\n.text\n' + e.text()
    s += KD.format(name=nm, vgpr=256, acc=256, sgpr=102)
    return s

if __name__ == "__main__":
    opt = {}
    for a in sys.argv[2:]:
        k, _, v = a.partition("="); opt[k] = (int(v) if v.isdigit() else v) if v else 1
    open(sys.argv[1], "w").write(gen(opt))
    if opt.get('stamp'): print(",".join(opt['names']))
```

```python
import sys

N = 25000; E = 800000; NPB = 98; NBIN = 256; CH = 3128; NCH = 256
RECB = CH * 8
WS_REC = 0
WS_OFF = 0x620000
WS_POS = 0x660000
WS_WF = 0x6D0000
WS_SZ = 0x800000
LOG2E = 0x3fb8aa3b
NLOG2E = 0xbfb8aa3b
LN2 = 0x3f317218

class Em:
    def __init__(s):
        s.L = []; s.ds = []; s.vm = []; s.nl = 0
    def __call__(s, t):
        for x in t.strip().split("\n"):
            x = x.strip()
            if x: s.L.append("    " + x if not x.endswith(":") else x)
    def lab(s, p="L"):
        s.nl += 1; return f"{p}_{s.nl}"
    def d(s, tag, t):
        s(t); s.ds.append(tag)
    def v(s, tag, t):
        s(t); s.vm.append(tag)
    def _cnt(s, lst, tags):
        idx = max(i for i, t in enumerate(lst) if t in tags)
        return idx, len(lst) - 1 - idx
    def wds(s, *tags):
        if not any(t in s.ds for t in tags): raise Exception(f"wds: no {tags}")
        idx, n = s._cnt(s.ds, tags)
        s(f"s_waitcnt lgkmcnt({min(n,15)})"); s.ds = s.ds[idx + 1:]
    def wvm(s, *tags):
        if not any(t in s.vm for t in tags): raise Exception(f"wvm: no {tags}")
        idx, n = s._cnt(s.vm, tags)
        s(f"s_waitcnt vmcnt({min(n,63)})"); s.vm = s.vm[idx + 1:]
    def wds0(s): s("s_waitcnt lgkmcnt(0)"); s.ds = []
    def wvm0(s): s("s_waitcnt vmcnt(0)"); s.vm = []
    def text(s): return "\n".join(s.L) + "\n"

def vr(a, n): return f"v[{a}:{a+n-1}]"
def sr(a, n): return f"s[{a}:{a+n-1}]"

def srd(e, d, lo, hi, size, add=0, stride=0):
    if add:
        e(f"s_add_u32 s{d}, s{lo}, {add}\ns_addc_u32 s{d+1}, s{hi}, 0\ns_and_b32 s{d+1}, s{d+1}, 0xffff")
    else:
        e(f"s_mov_b32 s{d}, s{lo}\ns_and_b32 s{d+1}, s{hi}, 0xffff")
    if stride: e(f"s_or_b32 s{d+1}, s{d+1}, {stride << 16}")
    e(f"s_mov_b32 s{d+2}, {size}\ns_mov_b32 s{d+3}, 0x00020000")

def wave_scan(e, v):
    for k in (1, 2, 4, 8):
        e(f"s_nop 1\nv_add_u32_dpp v{v}, v{v}, v{v} row_shr:{k} row_mask:0xf bank_mask:0xf bound_ctrl:1")
    e(f"s_nop 1\nv_add_u32_dpp v{v}, v{v}, v{v} row_bcast:15 row_mask:0xa bank_mask:0xf")
    e(f"s_nop 1\nv_add_u32_dpp v{v}, v{v}, v{v} row_bcast:31 row_mask:0xc bank_mask:0xf")

KD = """
.section .rodata,"a"
.p2align 6
.amdhsa_kernel {name}
  .amdhsa_next_free_vgpr {vgpr}
  .amdhsa_next_free_sgpr {sgpr}
  .amdhsa_accum_offset {acc}
  .amdhsa_group_segment_fixed_size 0
  .amdhsa_kernarg_size 88
  .amdhsa_user_sgpr_count 2
  .amdhsa_user_sgpr_kernarg_segment_ptr 1
  .amdhsa_system_sgpr_workgroup_id_x 1
  .amdhsa_float_denorm_mode_32 3
.end_amdhsa_kernel
"""

WS_STAMP = 0x780000
def mk_stamp(e, opt, vreg):
    st = {'n': 0}
    def stamp(name):
        if not opt.get('stamp'): return
        i = st['n']; st['n'] += 1
        e(f"{'s_memrealtime' if opt.get('stamp') == 2 else 's_memtime'} s[0:1]\ns_waitcnt lgkmcnt(0)\nv_writelane_b32 v{vreg}, s0, {i}")
        e.ds = []
        opt.setdefault('names', []).append(name)
    def real():
        if not opt.get('stamp'): return
        e(f"s_memrealtime s[0:1]\ns_waitcnt lgkmcnt(0)\nv_writelane_b32 v{vreg}, s0, 31\ns_getreg_b32 s0, hwreg(HW_REG_HW_ID)\nv_writelane_b32 v{vreg}, s0, 30\ns_getreg_b32 s0, hwreg(HW_REG_XCC_ID)\nv_writelane_b32 v{vreg}, s0, 29")
    def fin(swg, swave, nw, srd_, base, vt):
        if not opt.get('stamp'): return
        e(f"""
        s_mov_b64 exec, -1
        s_mul_i32 s0, s{swg}, {nw}
        s_add_u32 s0, s0, s{swave}
        s_lshl_b32 s0, s0, 8
        s_add_u32 s0, s0, {base}
        v_and_b32 v{vt}, 63, v0
        v_lshlrev_b32 v{vt}, 2, v{vt}
        buffer_store_dword v{vreg}, v{vt}, {sr(srd_,4)}, s0 offen
        s_mov_b64 exec, -1
        """)
    return stamp, real, fin

K1_HIST = 0; K1_BASE = 1024; K1_STG = 2048; K1_LDS = 2048 + 26624

def gen_k1(opt):
    e = Em(); nm = "egnn_part_kernel"
    o1 = {'stamp': opt.get('stamp1')}
    stamp, real, fin = mk_stamp(e, o1, 47)
    e(f".globl {nm}\n.p2align 8\n.type {nm},@function\n{nm}:")
    e(f"""
    s_cmp_ge_u32 s2, {NCH}
    s_cbranch_scc1 K1_end
    s_load_dwordx16 s[4:19], s[0:1], 0
    s_load_dwordx2 s[20:21], s[0:1], 80
    v_lshrrev_b32 v1, 6, v0
    s_nop 0
    v_readfirstlane_b32 s3, v1
    s_mul_i32 s22, s2, {CH*4}
    v_lshlrev_b32 v2, 4, v0
    v_lshlrev_b32 v40, 2, v0
    v_mov_b32 v41, 0
    s_waitcnt lgkmcnt(0)
    """)
    srd(e, 36, 20, 21, WS_SZ)
    real(); stamp('start')
    e("s_cmp_ge_u32 s3, 13\ns_cbranch_scc1 K1_side")
    srd(e, 24, 12, 13, E * 4)
    srd(e, 28, 10, 11, E * 4)
    srd(e, 32, 8, 9, E * 2)
    e(f"""
    v_add_u32 v3, s22, v2
    v_lshrrev_b32 v4, 1, v3
    s_mov_b32 s23, {E*4}
    v_cmp_gt_u32 vcc, 782, v0
    v_cmp_gt_u32 s[40:41], s23, v3
    s_nop 1
    s_and_b64 s[40:41], s[40:41], vcc
    s_mov_b64 exec, s[40:41]
    s_cbranch_execz K1_noload
    buffer_load_dwordx4 v[8:11], v3, s[24:27], 0 offen
    buffer_load_dwordx4 v[12:15], v3, s[28:31], 0 offen
    buffer_load_dwordx2 v[16:17], v4, s[32:35], 0 offen
    K1_noload:
    s_mov_b64 exec, -1
    s_mov_b32 s42, 42800
    s_mov_b32 s43, -98
    s_mov_b32 s44, 0xffff0000
    v_mov_b32 v42, 1
    s_cmp_ge_u32 s3, 4
    s_cbranch_scc1 K1_nz
    ds_write_b32 v40, v41 offset:{K1_HIST}
    K1_nz:
    s_waitcnt lgkmcnt(0)
    s_barrier
    """)
    stamp('B0')
    e("s_waitcnt vmcnt(2)")
    stamp('dst')
    for r in range(4): e(f"v_mul_u32_u24 v{20+r}, s42, v{8+r}")
    for r in range(4): e(f"v_lshrrev_b32 v{20+r}, 22, v{20+r}")
    for r in range(4): e(f"v_mad_i32_i24 v{25+2*r}, v{20+r}, s43, v{8+r}")
    for r in range(4): e(f"v_lshlrev_b32 v{20+r}, 2, v{20+r}")
    e("s_mov_b64 exec, s[40:41]")
    for r in range(4): e(f"ds_add_rtn_u32 v{32+r}, v{20+r}, v42 offset:{K1_HIST}")
    e("s_mov_b64 exec, -1")
    for r in range(4): e(f"v_lshlrev_b32 v{25+2*r}, 4, v{25+2*r}")
    e("""
    s_waitcnt vmcnt(0)
    v_lshl_or_b32 v24, v16, 16, v12
    v_and_or_b32 v26, v16, s44, v13
    v_lshl_or_b32 v28, v17, 16, v14
    v_and_or_b32 v30, v17, s44, v15
    v_and_b32 v5, 63, v0
    v_lshlrev_b32 v5, 4, v5
    s_waitcnt lgkmcnt(0)
    """)
    stamp('hist')
    e("s_barrier")
    stamp('B1')
    e(f"""
    ds_read_b128 v[8:11], v5 offset:{K1_HIST}
    s_waitcnt lgkmcnt(0)
    v_add_u32 v12, v8, v9
    v_add_u32 v13, v12, v10
    v_add_u32 v14, v13, v11
    v_mov_b32 v15, v14
    """)
    wave_scan(e, 15)
    e(f"""
    v_sub_u32 v16, v15, v14
    v_add_u32 v17, v16, v8
    v_add_u32 v18, v16, v12
    v_add_u32 v19, v16, v13
    ds_write_b128 v5, v[16:19] offset:{K1_BASE}
    s_mov_b64 exec, s[40:41]
    """)
    for r in range(4): e(f"ds_read_b32 v{36+r}, v{20+r} offset:{K1_BASE}")
    e(f"""
    s_mov_b64 exec, -1
    s_cmp_lg_u32 s3, 12
    s_cbranch_scc1 K1_nooff
    v_lshl_or_b32 v8, v8, 16, v16
    v_lshl_or_b32 v9, v9, 16, v17
    v_lshl_or_b32 v10, v10, 16, v18
    v_lshl_or_b32 v11, v11, 16, v19
    s_lshl_b32 s45, s2, 10
    s_add_u32 s45, s45, {WS_OFF}
    buffer_store_dwordx4 v[8:11], v5, s[36:39], s45 offen
    K1_nooff:
    s_waitcnt lgkmcnt(0)
    """)
    stamp('scan')
    for r in range(4): e(f"v_add_lshl_u32 v{36+r}, v{36+r}, v{32+r}, 3")
    e("s_mov_b64 exec, s[40:41]")
    for r in range(4): e(f"ds_write_b64 v{36+r}, v[{24+2*r}:{25+2*r}] offset:{K1_STG}")
    e(f"""
    s_mov_b64 exec, -1
    s_mul_i32 s45, s2, {RECB}
    s_add_u32 s46, s45, 13312
    s_mov_b32 s47, 732
    v_cmp_gt_u32 s[40:41], s47, v0
    s_waitcnt lgkmcnt(0)
    s_barrier
    """)
    stamp('B2')
    e(f"""
    ds_read_b128 v[12:15], v2 offset:{K1_STG}
    ds_read_b128 v[16:19], v2 offset:{K1_STG+13312}
    s_waitcnt lgkmcnt(1)
    buffer_store_dwordx4 v[12:15], v2, s[36:39], s45 offen
    """)
    if opt.get('stamp1'):
        e("s_waitcnt vmcnt(0)"); stamp('st'); fin(2, 3, 13, 36, 0x7C0000, 46); print(o1['names'])
    e(f"""
    s_mov_b64 exec, s[40:41]
    s_cbranch_execz K1_end
    s_waitcnt lgkmcnt(0)
    buffer_store_dwordx4 v[16:19], v2, s[36:39], s46 offen
    s_endpgm
    """)
    e("K1_side:\ns_cmp_eq_u32 s3, 15\ns_cbranch_scc1 K1_frag")
    srd(e, 24, 6, 7, N * 6)
    e(f"""
    v_subrev_u32 v3, 832, v0
    s_mul_i32 s22, s2, {NPB}
    v_add_u32 v4, s22, v3
    s_mov_b32 s23, {N}
    v_cmp_gt_u32 vcc, {NPB}, v3
    v_cmp_gt_u32 s[40:41], s23, v4
    v_mul_u32_u24 v5, 6, v4
    v_lshlrev_b32 v6, 4, v4
    s_and_b64 exec, s[40:41], vcc
    s_cbranch_execz K1_end
    buffer_load_ushort v8, v5, s[24:27], 0 offen
    buffer_load_ushort v9, v5, s[24:27], 0 offen offset:2
    buffer_load_ushort v10, v5, s[24:27], 0 offen offset:4
    v_mov_b32 v11, 0
    s_mov_b32 s45, {WS_POS}
    s_waitcnt vmcnt(0)
    v_lshlrev_b32 v8, 16, v8
    v_lshlrev_b32 v9, 16, v9
    v_lshlrev_b32 v10, 16, v10
    buffer_store_dwordx4 v[8:11], v6, s[36:39], s45 offen
    s_endpgm
    K1_frag:
    s_cmp_ge_u32 s2, 32
    s_cbranch_scc1 K1_end
    """)
    e("""
    v_and_b32 v3, 31, v0
    v_bfe_u32 v4, v0, 5, 1
    s_and_b32 s40, s2, 3
    s_cmp_ge_u32 s2, 8
    s_cbranch_scc1 K1_f1
    s_lshl_b32 s22, s40, 4
    s_add_u32 s22, s22, 64
    s_mov_b32 s23, 8
    s_lshr_b32 s45, s2, 2
    s_lshl_b32 s45, s45, 5
    s_mov_b32 s24, s14
    s_mov_b32 s25, s15
    s_branch K1_fgo
    K1_f1:
    v_lshrrev_b32 v5, 3, v3
    v_bfe_u32 v6, v3, 2, 1
    v_and_b32 v3, 3, v3
    v_lshl_or_b32 v3, v5, 2, v3
    v_lshl_or_b32 v3, v6, 4, v3
    s_cmp_ge_u32 s2, 16
    s_cbranch_scc1 K1_f2
    s_bfe_u32 s41, s2, 0x10002
    s_mov_b32 s24, s14
    s_mov_b32 s25, s15
    s_branch K1_fh
    K1_f2:
    s_bfe_u32 s41, s2, 0x10003
    s_mov_b32 s24, s18
    s_mov_b32 s25, s19
    s_bitcmp1_b32 s2, 2
    s_cbranch_scc0 K1_fh
    s_lshl_b32 s22, s40, 4
    s_add_u32 s22, s22, 64
    s_mov_b32 s23, 8
    s_lshl_b32 s45, s41, 5
    s_branch K1_fgo
    K1_fh:
    s_lshl_b32 s42, s41, 1
    s_xor_b32 s42, s42, s40
    s_lshr_b32 s22, s42, 1
    s_lshl_b32 s22, s22, 5
    s_and_b32 s42, s42, 1
    s_lshl_b32 s42, s42, 3
    s_add_u32 s22, s22, s42
    s_mov_b32 s23, 16
    s_lshl_b32 s45, s41, 5
    K1_fgo:
    s_and_b32 s25, s25, 0xffff
    s_mov_b32 s26, 16384
    s_mov_b32 s27, 0x00020000
    v_mul_u32_u24 v4, s23, v4
    v_add_u32 v4, s22, v4
    v_add_u32 v3, s45, v3
    v_lshlrev_b32 v3, 1, v3
    v_lshl_add_u32 v3, v4, 7, v3
    """)
    for q in range(8): e(f"buffer_load_ushort v{8+q}, v3, s[24:27], 0 offen offset:{128*q}")
    e(f"v_and_b32 v5, 63, v0\nv_lshlrev_b32 v5, 4, v5\ns_lshl_b32 s45, s2, 10\ns_add_u32 s45, s45, {WS_WF}\ns_waitcnt vmcnt(0)")
    if opt.get('fold'):
        e(f"s_cmp_ge_u32 s2, 8\ns_cbranch_scc1 K1_fns\ns_mov_b32 s46, {LOG2E}")
        for q in range(8): e(f"v_lshlrev_b32 v{8+q}, 16, v{8+q}")
        for q in range(8): e(f"v_mul_f32 v{8+q}, s46, v{8+q}")
        for q in range(4): e(f"v_cvt_pk_bf16_f32 v{16+q}, v{8+2*q}, v{9+2*q}")
        e("s_branch K1_fst\nK1_fns:")
    for q in range(4): e(f"v_lshl_or_b32 v{16+q}, v{9+2*q}, 16, v{8+2*q}")
    e("K1_fst:\nbuffer_store_dwordx4 v[16:19], v5, s[36:39], s45 offen\nK1_end:\ns_endpgm")
    return e.text(), KD.format(name=nm, vgpr=48, acc=48, sgpr=48)

CAP = 3584
L_REC = 0; L_POSD = 29184; L_OHT = 31232; L_HIST = 31392; L_BASE = 31904; L_FLAG = 32416; L_WDA = 32448
L_MM = 33664; L_ACC = 50048; L_PACC = 105488; L_ATAB = 108848; L_STG = 127360; K2_LDS = 160128
ACS = 528; ATS = 144
W2 = 4; HOWN = 36; ACC0 = 52; ACC1 = 68; PRE0 = 84; PRE1 = 100; TMP = 116; MR = 132; HS = 140; AW = 156
OH1A = 164; OH1B = 168; OH2 = 172; IDX = 180; ZQ = 188; RW = 192; PS = 194; PD = 198; WP = 202
vMA = 204; vPI = 205; vRA = 206; vTA = 207; cRA = 208; cTA = 209; cHS = 210; cM = 214; cMW = 216
vAWA = 217; cAW = 218; cF = 219; cP = 220; wx0 = 221; wx1 = 222; T0 = 223
NVG = 232
sH = 24; sPF = 28; sWS = 32; sOUT = 36; sOP = 40; sWE = 44; sWX = 48; sMASK = 56
s_w = 3; s_b = 4; s_nb0 = 5; s_done = 6; s_take = 7; s_T = 8; s_p = 9; s_pn = 10; s_end = 11; s_p8 = 12
s_lim = 13; s_nbN = 14; s_nbCur = 15; s_nbOld = 16; s_flN = 17; s_flush = 18; s_cntN = 19; s_cntCur = 20
s_t0 = 21; s_t1 = 22; s_stg = 23; sMK = 52; sMV = 54; sC = 88; sLO = 90; sQ = 92; s_rb = 94; s_cb = 95; s_o = 96
s_need = 100; s_t2 = 101; s_mkB = 2

def mfma(d, a, b, c=None):
    cs = "0" if c is None else vr(c, 16)
    return f"v_mfma_f32_32x32x16_bf16 {vr(d,16)}, {vr(a,4)}, {vr(b,4)}, {cs}"

def gen_k2(opt):
    fold = opt.get('fold')
    e = Em(); nm = "egnn_main_kernel"
    stamp, real, fin = mk_stamp(e, opt, 232)
    e(f".globl {nm}\n.p2align 8\n.type {nm},@function\n{nm}:")
    e(f"""
    s_cmp_ge_u32 s2, {NBIN}
    s_cbranch_scc1 K2_end
    s_load_dwordx2 s[56:57], s[0:1], 80
    s_load_dwordx2 s[58:59], s[0:1], 0
    s_load_dwordx4 s[60:63], s[0:1], 40
    s_load_dwordx2 s[64:65], s[0:1], 64
    v_lshrrev_b32 v2, 6, v0
    v_and_b32 v1, 63, v0
    v_readfirstlane_b32 s{s_w}, v2
    s_and_b32 s{s_b}, s2, 7
    s_lshl_b32 s{s_b}, s{s_b}, 5
    s_lshr_b32 s{s_t0}, s2, 3
    s_add_u32 s{s_b}, s{s_b}, s{s_t0}
    s_mul_i32 s{s_nb0}, s{s_b}, {NPB}
    s_lshr_b32 s{s_rb}, s{s_w}, 1
    s_and_b32 s{s_cb}, s{s_w}, 1
    s_lshl_b32 s{s_stg}, s{s_w}, 12
    s_add_u32 s{s_stg}, s{s_stg}, {L_STG}
    s_mov_b32 s{s_done}, 0
    s_mov_b32 s{s_take}, 32
    v_lshrrev_b32 v2, 3, v1
    v_and_b32 v3, 7, v1
    s_waitcnt lgkmcnt(0)
    """)
    srd(e, sWS, 56, 57, WS_SZ)
    real(); stamp('start')
    OFFV = 148; cREC = 152; vT2D = 153; tA = 154; tB = 155
    RECV = PRE0; HADR = TMP; RANK = MR; vMX = T0 + 8
    def offs_loads():
        e(f"""
        v_lshlrev_b32 v{tA}, 10, v2
        s_lshl_b32 s{s_t0}, s{s_w}, 15
        s_lshl_b32 s{s_t1}, s{s_b}, 2
        s_add_u32 s{s_t0}, s{s_t0}, s{s_t1}
        s_add_u32 s{s_o}, s{s_t0}, {WS_OFF}
        s_add_u32 s{s_o+1}, s{s_o}, 8192
        s_add_u32 s{s_o+2}, s{s_o}, 16384
        s_add_u32 s{s_o+3}, s{s_o}, 24576
        """)
        for i in range(4):
            e.v('off', f"buffer_load_dword v{OFFV+i}, v{tA}, {sr(sWS,4)}, s{s_o+i} offen")
    def rec_loads(first=False):
        e(f"""
        s_mov_b32 s{s_t0}, {RECB}
        v_mul_u32_u24 v{cREC}, s{s_t0}, v2
        v_lshl_add_u32 v{cREC}, v3, 4, v{cREC}
        v_lshl_add_u32 v{vT2D}, v3, 1, s{s_done}
        s_mul_i32 s{s_o}, s{s_w}, {32*RECB}
        s_add_u32 s{s_o+1}, s{s_o}, {8*RECB}
        s_add_u32 s{s_o+2}, s{s_o}, {16*RECB}
        s_add_u32 s{s_o+3}, s{s_o}, {24*RECB}
        """)
        e.wvm('off')
        if first: stamp('offs')
        for i in range(4):
            m = sMASK + 8 * i
            e(f"""
            v_lshrrev_b32 v{tB}, 16, v{OFFV+i}
            v_and_b32 v{tA}, 0xffff, v{OFFV+i}
            v_sub_u32 v{HADR+i}, v{tB}, v{vT2D}
            v_add_u32 v{tA}, s{s_done}, v{tA}
            v_cmp_lt_i32 {sr(m,2)}, 0, v{HADR+i}
            v_cmp_lt_i32 {sr(m+4,2)}, 16, v{HADR+i}
            v_lshl_add_u32 v{RANK+i}, v{tA}, 3, v{cREC}
            v_cmp_lt_i32 {sr(m+2,2)}, 1, v{HADR+i}
            v_cmp_lt_i32 {sr(m+6,2)}, 17, v{HADR+i}
            """)
            if i == 0: e(f"v_mov_b32 v{vMX}, v{tB}")
            else: e(f"v_max_u32 v{vMX}, v{vMX}, v{tB}")
            e(f"s_or_b64 exec, {sr(m,2)}, 1")
            e.v('rec', f"buffer_load_dwordx4 {vr(RECV+8*i,4)}, v{RANK+i}, {sr(sWS,4)}, s{s_o+i} offen")
            e(f"s_or_b64 exec, {sr(m+4,2)}, 1")
            e.v('rec', f"buffer_load_dwordx4 {vr(RECV+8*i+4,4)}, v{RANK+i}, {sr(sWS,4)}, s{s_o+i} offen offset:128")
            e("s_mov_b64 exec, -1")
    offs_loads()
    srd(e, sH, 58, 59, N, stride=128)
    srd(e, sPF, 56, 57, N + 216, add=WS_POS, stride=16)
    srd(e, sWE, 60, 61, 130 * 128)
    srd(e, sWX, 62, 63, 128)
    srd(e, sOUT, 64, 65, N * 128)
    srd(e, sOP, 64, 65, N * 6, add=N * 128)
    e(f"""
    s_lshl_b32 s{s_t0}, s{s_rb}, 5
    s_add_u32 s{s_t0}, s{s_t0}, s{s_nb0}
    v_lshrrev_b32 v{tA}, 4, v1
    v_xor_b32 v{tB}, v3, v{tA}
    v_lshlrev_b32 v{IDX+1}, 4, v{tB}
    v_xor_b32 v{IDX+3}, 64, v{IDX+1}
    v_mov_b32 v{IDX+5}, v{IDX+1}
    v_mov_b32 v{IDX+7}, v{IDX+3}
    v_add_u32 v{IDX}, s{s_t0}, v2
    v_add_u32 v{IDX+2}, 8, v{IDX}
    v_add_u32 v{IDX+4}, 16, v{IDX}
    v_add_u32 v{IDX+6}, 24, v{IDX}
    """)
    def dma4(tag):
        r = []
        for j in range(4):
            r.append((f"s_add_u32 m0, s{s_stg}, {1024*j}" if j else f"s_mov_b32 m0, s{s_stg}",
                      f"buffer_load_dwordx4 {vr(IDX+2*j,2)}, {sr(sH,4)}, 0 idxen offen lds"))
        return r
    for a, b in dma4('hown'):
        e(a); e("s_nop 0"); e.v('hown', b)
    e(f"v_lshlrev_b32 v{T0}, 4, v1\ns_lshl_b32 s{s_t0}, s{s_cb}, 12\ns_add_u32 s{s_t0}, s{s_t0}, {WS_WF+8192}")
    for s_ in range(4):
        e.v('w1', f"buffer_load_dwordx4 {vr(ACC1+4*s_,4)}, v{T0}, {sr(sWS,4)}, s{s_t0} offen offset:{1024*s_}")
    e(f"""
    s_cmp_lt_u32 s{s_w}, 6
    s_cbranch_scc1 K2_nopd
    s_sub_u32 s{s_t0}, s{s_w}, 6
    s_lshl_b32 s{s_t1}, s{s_t0}, 6
    s_add_u32 s{s_t1}, s{s_t1}, s{s_nb0}
    v_add_u32 v{T0+1}, s{s_t1}, v1
    s_lshl_b32 s{s_t0}, s{s_t0}, 10
    s_add_u32 m0, s{s_t0}, {L_POSD}
    s_nop 0
    buffer_load_dwordx4 v{T0+1}, {sr(sPF,4)}, 0 idxen lds
    K2_nopd:
    v_lshlrev_b32 v{T0+1}, 1, v1
    s_cmp_lg_u32 s{s_w}, 5
    s_cbranch_scc1 K2_nowd
    s_mov_b32 s{s_t0}, 16384
    buffer_load_ushort v{T0+2}, v{T0+1}, {sr(sWE,4)}, s{s_t0} offen
    buffer_load_ushort v{T0+3}, v{T0+1}, {sr(sWE,4)}, s{s_t0} offen offset:128
    K2_nowd:
    """)
    e(f"""
    v_mov_b32 v{ZQ}, 0
    v_mov_b32 v{ZQ+1}, 0
    v_mov_b32 v{ZQ+2}, 0
    v_mov_b32 v{ZQ+3}, 0
    v_lshlrev_b32 v{T0+4}, 4, v0
    v_add_u32 v{T0+5}, {L_OHT+32768}, v{T0+4}
    """)
    for r in range(4): e(f"ds_write_b128 v{T0+4}, {vr(ZQ,4)} offset:{L_OHT+8192*r}")
    for r in range(6): e(f"ds_write_b128 v{T0+5}, {vr(ZQ,4)} offset:{8192*r}")
    rec_loads(True)
    e(f"s_mov_b32 s{s_t0}, {WS_WF}\ns_mov_b32 s{s_t1}, {WS_WF+4096}")
    for f in range(8):
        e.v('w2', f"buffer_load_dwordx4 {vr(W2+4*f,4)}, v{T0}, {sr(sWS,4)}, s{s_t0 if f<4 else s_t1} offen offset:{1024*(f&3)}")
    e(f"v_and_b32 v{T0+6}, 31, v1\nv_lshlrev_b32 v{T0+7}, 1, v{T0+6}")
    e.v('wx', f"buffer_load_ushort v{wx0}, v{T0+7}, {sr(sWX,4)}, 0 offen")
    e.v('wx', f"buffer_load_ushort v{wx1}, v{T0+7}, {sr(sWX,4)}, 0 offen offset:64")
    rho = T0 + 6; hb = T0 + 7
    e(f"""
    v_lshrrev_b32 v{hb}, 5, v1
    v_lshlrev_b32 v{cRA}, 3, v1
    v_lshlrev_b32 v{cTA}, 3, v2
    v_bfe_u32 v{T0+4}, v1, 1, 3
    v_lshl_add_u32 v{T0+5}, v{rho}, 7, s{s_stg}
    """)
    for s_ in range(4):
        e(f"v_or_b32 v{cHS+s_}, {2*s_}, v{hb}\nv_xor_b32 v{cHS+s_}, v{cHS+s_}, v{T0+4}\nv_lshl_add_u32 v{cHS+s_}, v{cHS+s_}, 4, v{T0+5}")
    e(f"s_lshl_b32 s{s_t0}, s{s_cb}, 2\nv_lshlrev_b32 v{AW+4}, 1, v{hb}\nv_xor_b32 v{AW+4}, s{s_t0}, v{AW+4}\nv_xor_b32 v{AW+4}, v{AW+4}, v{T0+4}")
    for s_ in range(4):
        k = 4 * (s_ >> 1) + (s_ & 1)
        e(f"v_xor_b32 v{AW+s_}, {k}, v{AW+4}\nv_lshl_add_u32 v{AW+s_}, v{AW+s_}, 4, v{T0+5}")
    e(f"""
    s_lshl_b32 s{s_t0}, s{s_w}, 11
    s_add_u32 s{s_t0}, s{s_t0}, {L_MM}
    v_lshl_add_u32 v{cMW}, v{rho}, 6, s{s_t0}
    v_lshl_or_b32 v{cMW}, v{T0+4}, 3, v{cMW}
    v_mov_b32 v{vMA}, v{cMW}
    v_bfe_u32 v{OH2}, v1, 2, 2
    v_lshl_or_b32 v{OH2+1}, v{hb}, 2, v{OH2}
    v_bfe_u32 v{OH2+2}, v1, 4, 1
    v_and_b32 v{OH2+3}, 3, v1
    v_lshl_or_b32 v{OH2+4}, v{OH2+2}, 2, v{OH2+3}
    v_lshrrev_b32 v{OH2+5}, 1, v{OH2+1}
    v_xor_b32 v{OH2+5}, v{OH2+5}, v{OH2+4}
    v_lshl_add_u32 v{OH2+6}, v{OH2+1}, 6, s{s_t0}
    v_lshl_add_u32 v{cM}, v{OH2+5}, 3, v{OH2+6}
    v_xor_b32 v{OH2+5}, 4, v{OH2+5}
    v_lshl_add_u32 v{cM+1}, v{OH2+5}, 3, v{OH2+6}
    v_add_u32 v{cM+1}, 512, v{cM+1}
    v_mul_u32_u24 v{cAW}, {ATS}, v{OH2}
    v_lshl_add_u32 v{cAW}, v{OH2+4}, 3, v{cAW}
    v_mov_b32 v{OH2+5}, {L_WDA}
    v_mov_b32 v{OH2+6}, {L_ATAB}
    v_cmp_gt_u32 vcc, 32, v1
    s_mov_b32 s{sLO}, -1
    s_mov_b32 s{sLO+1}, 0
    v_cndmask_b32 v{OH2+5}, v{OH2+5}, v{OH2+6}, vcc
    v_add_u32 v{cAW}, v{cAW}, v{OH2+5}
    v_mov_b32 v{vAWA}, v{cAW}
    v_mul_u32_u24 v{cF}, {ACS}, v{hb}
    v_lshl_add_u32 v{cF}, v{rho}, 3, v{cF}
    v_add_u32 v{cF}, {L_ACC}, v{cF}
    v_lshl_or_b32 v{cP}, v{OH2}, 1, v{hb}
    v_lshlrev_b32 v{cP}, 5, v{cP}
    v_add_u32 v{cP}, {L_PACC}, v{cP}
    s_mov_b32 s{sQ}, 0x11111111
    s_mov_b32 s{sQ+1}, 0x11111111
    s_mov_b32 s{sC}, {NLOG2E}
    s_mov_b32 s{sC+1}, {NLOG2E}
    s_waitcnt lgkmcnt(0)
    s_barrier
    """)
    e.ds = []
    stamp('B0')
    e.wvm('w1')
    for s_ in range(4): e.d('hown', f"ds_read_b128 {vr(HOWN+4*s_,4)}, v{AW+s_}")
    e(f"""
    s_cmp_lg_u32 s{s_w}, 4
    s_cbranch_scc1 K2_nooh
    v_mul_u32_u24 v{T0+4}, 18, v1
    v_mov_b32 v{T0+5}, 0x3f80
    s_mov_b64 exec, 0xff
    ds_write_b16 v{T0+4}, v{T0+5} offset:{L_OHT}
    s_mov_b64 exec, -1
    K2_nooh:
    s_cmp_lg_u32 s{s_w}, 5
    s_cbranch_scc1 K2_nowd2
    """)
    if not fold:
        e(f"ds_write_b16 v{T0+1}, v{T0+2} offset:{L_WDA}\nds_write_b16 v{T0+1}, v{T0+3} offset:{L_WDA+ATS}")
    else:
        e(f"""
        s_mov_b32 s{s_t0}, {LOG2E}
        v_lshlrev_b32 v{T0+2}, 16, v{T0+2}
        v_lshlrev_b32 v{T0+3}, 16, v{T0+3}
        v_mul_f32 v{T0+2}, s{s_t0}, v{T0+2}
        v_mul_f32 v{T0+3}, s{s_t0}, v{T0+3}
        v_cvt_pk_bf16_f32 v{T0+4}, v{T0+2}, v{T0+3}
        v_lshlrev_b32 v{T0+5}, 16, v{T0+4}
        v_sub_f32 v{T0+2}, v{T0+2}, v{T0+5}
        v_and_b32 v{T0+5}, 0xffff0000, v{T0+4}
        v_sub_f32 v{T0+3}, v{T0+3}, v{T0+5}
        v_cvt_pk_bf16_f32 v{T0+5}, v{T0+2}, v{T0+3}
        ds_write_b16 v{T0+1}, v{T0+4} offset:{L_WDA}
        ds_write_b16_d16_hi v{T0+1}, v{T0+4} offset:{L_WDA+ATS}
        ds_write_b16 v{T0+1}, v{T0+5} offset:{L_WDA+2*ATS}
        ds_write_b16_d16_hi v{T0+1}, v{T0+5} offset:{L_WDA+3*ATS}
        """)
    e("K2_nowd2:")
    e(f"""
    s_lshl_b32 s{s_t0}, s{s_rb}, 5
    v_add_u32 v{T0+4}, s{s_t0}, v{rho}
    v_mul_u32_u24 v{T0+4}, {ATS}, v{T0+4}
    s_lshl_b32 s{s_t0}, s{s_cb}, 6
    s_add_u32 s{s_t0}, s{s_t0}, {L_ATAB}
    v_lshl_add_u32 v{T0+4}, v{hb}, 5, v{T0+4}
    v_add_u32 v{T0+4}, s{s_t0}, v{T0+4}
    """)
    e.wds0()
    for s_ in range(4): e(mfma(ACC0, ACC1 + 4 * s_, HOWN + 4 * s_, None if s_ == 0 else ACC0))
    for r in list(range(OH1A, OH1A + 8)) + list(range(OH2, OH2 + 8)): e(f"v_mov_b32 v{r}, 0")
    e("s_nop 3")
    if fold:
        e(f"s_mov_b32 s{s_t0}, {LOG2E}")
        for r in range(16): e(f"v_mul_f32 v{ACC0+r}, s{s_t0}, v{ACC0+r}")
    for r in range(8): e(f"v_cvt_pk_bf16_f32 v{AW+r}, v{ACC0+2*r}, v{ACC0+2*r+1}")
    e(f"ds_write_b128 v{T0+4}, {vr(AW,4)}\nds_write_b128 v{T0+4}, {vr(AW+4,4)} offset:16")
    for r in range(32): e(f"v_mov_b32 v{ACC0+r}, 0")
    stamp('atab')
    e.wvm('rec')
    stamp('rec')
    slots = [(i, ld, u) for i in range(4) for ld in range(2) for u in range(2)]
    def sreg(k): i, ld, u = slots[k]; return RECV + 8 * i + 4 * ld + 2 * u
    def smask(k): i, ld, u = slots[k]; return sMASK + 8 * i + 4 * ld + 2 * u
    e("K2_hist:")
    e(f"v_mov_b32 v{tA}, 1")
    for k in range(16): e(f"v_lshrrev_b32 v{HADR+k}, 2, v{sreg(k)+1}")
    order = [k for k in range(16) if slots[k][1] == 0] + [k for k in range(16) if slots[k][1] == 1]
    for k in order:
        e(f"s_mov_b64 exec, {sr(smask(k),2)}\nds_add_rtn_u32 v{RANK+k}, v{HADR+k}, v{tA} offset:{L_HIST}")
    e(f"""
    s_mov_b64 exec, -1
    s_waitcnt lgkmcnt(0)
    s_barrier
    """)
    stamp('B1')
    e(f"""
    ds_read_b64 v[{OFFV}:{OFFV+1}], v{cRA} offset:{L_HIST}
    s_waitcnt lgkmcnt(0)
    v_add_u32 v{tA}, v{OFFV}, v{OFFV+1}
    v_mov_b32 v{tB}, v{tA}
    """)
    wave_scan(e, tB)
    e(f"""
    v_sub_u32 v{OFFV+2}, v{tB}, v{tA}
    v_readlane_b32 s{s_T}, v{tB}, 63
    v_add_u32 v{OFFV+3}, v{OFFV+2}, v{OFFV}
    ds_write_b64 v{cRA}, v[{OFFV+2}:{OFFV+3}] offset:{L_BASE}
    s_cmp_gt_u32 s{s_T}, {CAP}
    s_cbranch_scc1 K2_retry
    """)
    BASV = PS
    BASV = HS
    for k in order:
        e(f"s_mov_b64 exec, {sr(smask(k),2)}\nds_read_b32 v{HADR+k}, v{HADR+k} offset:{L_BASE}")
    e(f"""
    s_mov_b64 exec, -1
    s_add_u32 s{s_t0}, s{s_done}, s{s_take}
    v_cmp_lt_u32 vcc, s{s_t0}, v{vMX}
    s_add_u32 s{s_t1}, s{s_T}, 31
    s_lshr_b32 s{s_t1}, s{s_t1}, 5
    s_cbranch_vccz K2_noflag
    v_mov_b32 v{tA}, 1
    v_mov_b32 v{tB}, {L_FLAG}
    ds_write_b32 v{tB}, v{tA}
    K2_noflag:
    s_lshr_b32 s{s_t0}, s{s_t1}, 3
    s_and_b32 s{s_t1}, s{s_t1}, 7
    s_mul_i32 s{s_p}, s{s_w}, s{s_t0}
    s_min_u32 s{s_t2}, s{s_w}, s{s_t1}
    s_add_u32 s{s_p}, s{s_p}, s{s_t2}
    s_add_u32 s{s_end}, s{s_p}, s{s_t0}
    s_cmp_lt_u32 s{s_w}, s{s_t1}
    s_addc_u32 s{s_end}, s{s_end}, 0
    s_lshl_b32 s{s_p}, s{s_p}, 5
    s_lshl_b32 s{s_end}, s{s_end}, 5
    s_min_u32 s{s_end}, s{s_end}, s{s_T}
    s_lshl_b32 s{s_t0}, s{s_T}, 3
    v_add_u32 v{tA}, s{s_t0}, v{cRA}
    s_cmp_lg_u32 s{s_w}, 7
    s_cbranch_scc1 K2_nopad
    ds_write_b64 v{tA}, v[{ZQ}:{ZQ+1}] offset:{L_REC}
    K2_nopad:
    s_waitcnt lgkmcnt(0)
    """)
    for k in range(16): e(f"v_add_lshl_u32 v{HADR+k}, v{HADR+k}, v{RANK+k}, 3")
    for k in order:
        e(f"s_mov_b64 exec, {sr(smask(k),2)}\nds_write_b64 v{HADR+k}, v[{sreg(k)}:{sreg(k)+1}] offset:{L_REC}")
    e(f"s_mov_b64 exec, -1")
    for r in range(8): e(f"v_mov_b32 v{MR+r}, 0")
    e(f"s_waitcnt vmcnt(0) lgkmcnt(0)")
    e(f"s_cmp_lg_u32 s{s_done}, 0\ns_cbranch_scc1 K2_nowx\nv_lshlrev_b32 v{wx0}, 16, v{wx0}\nv_lshlrev_b32 v{wx1}, 16, v{wx1}")
    if fold: e(f"v_mul_f32 v{wx0}, {LN2}, v{wx0}\nv_mul_f32 v{wx1}, {LN2}, v{wx1}")
    e("K2_nowx:\ns_barrier")
    e.ds = []; e.vm = []
    stamp('B2')
    e(f"s_cmp_ge_u32 s{s_p}, s{s_end}\ns_cbranch_scc1 K2_wavedone")

    def rec_read():
        e(f"v_add_u32 v{vRA}, s{s_p8}, v{cRA}\nv_add_u32 v{vTA}, s{s_p8}, v{cTA}")
        e.d('rw', f"ds_read_b64 v[{RW}:{RW+1}], v{vRA} offset:{L_REC}")
        e.d('rw', f"ds_read_u16 v{vPI}, v{vRA} offset:{L_REC}")
    def window():
        e.wds('rw')
        e.v('ps', f"buffer_load_dwordx3 {vr(PS,3)}, v{vPI}, {sr(sPF,4)}, 0 idxen")
        e.d('pd', f"ds_read_b128 {vr(PD,4)}, v{RW+1} offset:{L_POSD}")
        l = e.lab("K2_win")
        e(f"""
        v_cmp_gt_u32 vcc, s{s_lim}, v{RW+1}
        s_sub_u32 s{s_t0}, s{s_end}, s{s_p}
        s_min_u32 s{s_need}, s{s_t0}, 64
        s_bfm_b64 {sr(sMV,2)}, s{s_t0}, 0
        s_cmp_ge_u32 s{s_t0}, 64
        s_cselect_b64 {sr(sMV,2)}, -1, {sr(sMV,2)}
        s_mov_b32 s{s_flN}, 0
        s_and_b64 {sr(sMK,2)}, vcc, {sr(sMV,2)}
        s_bcnt1_i32_b64 s{s_cntN}, {sr(sMK,2)}
        s_cmp_eq_u32 s{s_cntN}, s{s_need}
        s_cbranch_scc1 {l}
        v_readfirstlane_b32 s{s_nbN}, v{RW+1}
        s_mov_b32 s{s_flN}, 1
        s_add_u32 s{s_lim}, s{s_nbN}, 128
        v_cmp_gt_u32 vcc, s{s_lim}, v{RW+1}
        s_nop 0
        s_and_b64 {sr(sMK,2)}, vcc, {sr(sMV,2)}
        s_bcnt1_i32_b64 s{s_cntN}, {sr(sMK,2)}
        {l}:
        s_add_u32 s{s_pn}, s{s_p}, s{s_cntN}
        """)
    def idx_read(off):
        for j in range(4): e.d('idx', f"ds_read_u16 v{IDX+2*j}, v{vTA} offset:{L_REC+off+64*j}")
    def hs_read():
        for s_ in range(4): e.d('hs', f"ds_read_b128 {vr(HS+4*s_,4)}, v{cHS+s_}")
    def oh2_read(grp):
        for s_ in range(2):
            for t in range(2):
                e.d('oh2', f"ds_read_b64_tr_b16 {vr(OH2+4*s_+2*t,2)}, v{cM+t} offset:{1024*s_}")
    def aw_read():
        e(f"s_mul_i32 s{s_t0}, s{s_nbN}, {ATS//16}\ns_mov_b64 exec, {sr(sLO,2)}\nv_add_u32 v{vAWA}, s{s_t0}, v{cAW}\ns_mov_b64 exec, -1")
        for blk in range(2):
            for t in range(2):
                e.d('aw', f"ds_read_b64_tr_b16 {vr(AW+4*blk+2*t,2)}, v{vAWA} offset:{4*ATS*t+64*blk}")
    def misc_list():
        t0, t1, t2, t3, t4 = T0, T0 + 1, T0 + 2, T0 + 3, T0 + 4
        L = [lambda: e.d('mc', f"ds_write_b64 v{vMA}, v[{ZQ}:{ZQ+1}]"),
             f"v_subrev_u32 v{t0}, s{s_nbN}, v{RW+1}",
             f"v_sub_f32 v{t1}, v{PD}, v{PS}",
             f"v_sub_f32 v{t2}, v{PD+1}, v{PS+1}",
             f"v_sub_f32 v{t3}, v{PD+2}, v{PS+2}",
             f"v_min_u32 v{OH1A}, 0x80, v{t0}",
             f"v_mul_f32 v{t4}, v{t1}, v{t1}",
             f"v_lshrrev_b32 v{t0}, 1, v{OH1A}",
             f"v_fmac_f32 v{t4}, v{t2}, v{t2}",
             f"v_cvt_pk_bf16_f32 v{WP}, 1.0, v{t1}",
             f"v_fmac_f32 v{t4}, v{t3}, v{t3}",
             f"v_cvt_pk_bf16_f32 v{WP+1}, v{t2}, v{t3}",
             f"v_cvt_pk_bf16_f32 v{OH1B}, v{t4}, v{RW}",
             f"v_xor_b32 v{vMA}, v{t0}, v{cMW}",
             f"s_and_b64 exec, {sr(sMK,2)}, {sr(sLO,2)}\ns_mov_b32 s{s_mkB}, s{sMK+1}",
             f"ds_write_b64 v{vMA}, v[{WP}:{WP+1}]",
             f"s_mov_b64 exec, -1\nv_permlane32_swap_b32 v{OH1A}, v{OH1B}"]
        if fold:
            L.append(f"v_mov_b32 v{OH1A+1}, v{OH1A}\nv_mov_b32 v{OH1B+1}, v{OH1B}")
        L += [f"s_mov_b64 exec, {sr(sLO,2)}",
              lambda: e.d('oh1', f"ds_read_b128 {vr(OH1A,4)}, v{OH1A} offset:{L_OHT}"),
              lambda: e.d('oh1', f"ds_read_b128 {vr(OH1B,4)}, v{OH1B} offset:{L_OHT}"),
              "s_mov_b64 exec, -1"]
        return L
    def m_b():
        e.d('mc', f"ds_write_b64 v{vMA}, v[{ZQ}:{ZQ+1}]")
        e(f"s_mov_b32 exec_lo, 0\ns_mov_b32 exec_hi, s{s_mkB}\nds_write_b64 v{vMA}, v[{WP}:{WP+1}]\ns_mov_b64 exec, -1")
    def run(L):
        for x in L:
            if callable(x): x()
            else: e(x)
    def flush(snb):
        e(f"s_mul_i32 s{s_t0}, s{snb}, {ACS//16}\nv_add_u32 v{T0}, s{s_t0}, v{cF}\nv_lshl_add_u32 v{T0+1}, s{snb}, 1, v{cP}")
        for j in range(4):
            e(f"v_cvt_f64_f32 {vr(TMP+4*j,2)}, v{ACC0+4*j}\nv_cvt_f64_f32 {vr(TMP+4*j+2,2)}, v{ACC1+4*j}")
        for j in range(4):
            e(f"ds_add_f64 v{T0}, {vr(TMP+4*j,2)} offset:{2*ACS*j}\nds_add_f64 v{T0}, {vr(TMP+4*j+2,2)} offset:{2*ACS*j+256}")
        R = [4 * j + 1 + c for j in range(4) for c in range(3)]
        for r in R: e(f"v_mul_f32 v{ACC0+r}, v{ACC0+r}, v{wx0}")
        for r in R: e(f"v_fmac_f32 v{ACC0+r}, v{ACC1+r}, v{wx1}")
        lo = [ACC0 + 4 * j + 1 + c for j in range(2) for c in range(3)]
        for r in lo: e(f"v_add_f32_dpp v{r}, v{r}, v{r} row_ror:8 row_mask:0xf bank_mask:0x3")
        for r in lo: e(f"v_add_f32_dpp v{r}, v{r+8}, v{r+8} row_ror:8 row_mask:0xf bank_mask:0xc")
        lo = [ACC0 + 1 + c for c in range(3)]
        for r in lo: e(f"v_add_f32_dpp v{r}, v{r}, v{r} row_half_mirror row_mask:0xf bank_mask:0x5")
        for r in lo: e(f"v_add_f32_dpp v{r}, v{r+4}, v{r+4} row_half_mirror row_mask:0xf bank_mask:0xa")
        for r in lo: e(f"v_add_f32_dpp v{r}, v{r}, v{r} quad_perm:[1,0,3,2] row_mask:0xf bank_mask:0xf")
        for r in lo: e(f"v_add_f32_dpp v{r}, v{r}, v{r} quad_perm:[2,3,0,1] row_mask:0xf bank_mask:0xf")
        for c in range(3): e(f"v_cvt_f64_f32 {vr(TMP+2*c,2)}, v{ACC0+1+c}")
        e(f"s_mov_b64 exec, {sr(sQ,2)}")
        for c in range(3): e(f"ds_add_f64 v{T0+1}, {vr(TMP+2*c,2)} offset:{8*c}")
        e("s_mov_b64 exec, -1")
        e(mfma(ACC0, ZQ, ZQ)); e(mfma(ACC1, ZQ, ZQ))
    def gemm1(q, blk, oh1):
        L = [mfma(q, HS + 4 * s_, W2 + 16 * blk + 4 * s_, None if s_ == 0 else q) for s_ in range(4)]
        L.append(mfma(q, oh1, AW + 4 * blk, q))
        return L
    def seg(acc): return [mfma(acc, OH2 + 4 * s_, MR + 4 * s_, acc) for s_ in range(2)]
    def phase(P, G, S, ins):
        base = []
        if not fold:
            base += [f"v_pk_mul_f32 {vr(TMP+i,2)}, {vr(P+i,2)}, {sr(sC,2)}" for i in range(0, 16, 2)]
            ex = [f"v_exp_f32 v{TMP+i}, v{TMP+i}" for i in range(16)]
        else:
            base += [None] * 8
            ex = [f"v_exp_f32 v{TMP+i}, -v{P+i}" for i in range(16)]
        for m in range(4): base += [G[m]] + ex[3 * m:3 * m + 3]
        base += ex[12:]
        base += [f"v_pk_add_f32 {vr(TMP+i,2)}, {vr(TMP+i,2)}, 1.0 op_sel_hi:[1,0]" for i in range(0, 16, 2)]
        rc = [f"v_rcp_f32 v{TMP+i}, v{TMP+i}" for i in range(16)]
        for m, x in enumerate([G[4], S[0], S[1]]): base += [x] + rc[3 * m:3 * m + 3]
        base += rc[9:]
        base += [f"v_pk_mul_f32 {vr(TMP+i,2)}, {vr(P+i,2)}, {vr(TMP+i,2)}" for i in range(0, 16, 2)]
        base += [f"v_cvt_pk_bf16_f32 v{MR+i//2}, v{TMP+i}, v{TMP+i+1}" for i in range(0, 16, 2)]
        assert len(base) == 71
        for i, x in enumerate(base):
            if i in ins: run(ins[i])
            if x: e(x)
    def dma_ins(ins, at):
        for (a, b), k in zip(dma4('x'), at):
            ins.setdefault(k, []).append(a)
            ins.setdefault(k + 1, []).append(lambda b=b: e.v('dma', b))

    e(f"s_lshl_b32 s{s_p8}, s{s_p}, 3\ns_mov_b32 s{s_lim}, 0\ns_mov_b32 s{s_nbCur}, 0")
    rec_read(); idx_read(0)
    e.wds('idx')
    for a, b in dma4('x'): e(a); e("s_nop 0"); e.v('dma', b)
    e.ds = ['rw']
    window()
    e(f"s_mov_b32 s{s_flN}, 0")
    aw_read()
    e.wvm0(); e.wds('pd')
    hs_read(); idx_read(256)
    run(misc_list())
    e.wds('idx')
    for a, b in dma4('x'): e(a); e("s_nop 0"); e.v('dma', b)
    e.wds0()
    for x in gemm1(PRE0, 0, OH1A): e(x)
    e("s_nop 7\ns_nop 3")
    stamp('wprol')
    if opt.get('stamp'): e("s_mov_b32 s56, 0")
    e(".p2align 4\nK2_loop:")
    loop_start = len(e.L)
    if opt.get('stamp'): e("s_add_u32 s56, s56, 1")
    e.ds = []; e.vm = ['dma'] * 4
    e(f"""
    s_mov_b32 s{s_flush}, s{s_flN}
    s_mov_b32 s{s_nbOld}, s{s_nbCur}
    s_mov_b32 s{s_nbCur}, s{s_nbN}
    s_mov_b32 s{s_cntCur}, s{s_cntN}
    s_mov_b32 s{s_p}, s{s_pn}
    s_lshl_b32 s{s_p8}, s{s_pn}, 3
    """)
    ins = {0: [rec_read], 14: [window], 46: [lambda: oh2_read(0), m_b], 48: [lambda: e.wvm('dma'), hs_read]}
    phase(PRE0, gemm1(PRE1, 1, OH1A), seg(ACC1), ins)
    e(f"s_cmp_eq_u32 s{s_flush}, 0\ns_cbranch_scc1 K2_nofl")
    sv = list(e.ds)
    if opt.get('stamp'): e("s_add_u32 s56, s56, 0x10000")
    flush(s_nbOld)
    e.ds = sv
    e("K2_nofl:")
    ins = {0: [lambda: idx_read(0)], 8: [lambda: e.wds('idx')]}
    dma_ins(ins, (9, 13, 17, 21))
    phase(PRE1, gemm1(PRE0, 0, OH1B), seg(ACC0), ins)
    e(f"""
    s_cmp_gt_u32 s{s_cntCur}, 32
    s_cselect_b32 s{s_t0}, 1, s{s_cntN}
    s_cmp_eq_u32 s{s_t0}, 0
    s_cbranch_scc1 K2_drain
    """)
    ins = {38: [aw_read], 46: [lambda: oh2_read(1)], 48: [e.wvm0, hs_read]}
    phase(PRE0, gemm1(PRE1, 1, OH1B), seg(ACC1), ins)
    ml = misc_list()
    ins = {0: [lambda: idx_read(256)] + ml, 8: [lambda: e.wds('idx')], 36: [e.wds0]}
    dma_ins(ins, (9, 13, 17, 21))
    phase(PRE1, gemm1(PRE0, 0, OH1A), seg(ACC0), ins)
    e(f"s_cmp_lg_u32 s{s_cntN}, 0\ns_cbranch_scc1 K2_loop")
    assert e.vm == ['dma'] * 4, e.vm
    def xf(l):
        if opt.get('x_novm') and ('buffer_load' in l or 'vmcnt' in l): return False
        if opt.get('x_nodma') and (' lds' in l): return False
        if opt.get('x_nops') and ('dwordx3' in l): return False
        if opt.get('x_noadd') and 'ds_add' in l: return False
        if opt.get('x_notr') and '_tr_' in l: return False
        if opt.get('x_nohs') and 'ds_read_b128' in l: return False
        if opt.get('x_nomw') and 'ds_write' in l: return False
        if opt.get('x_nomf') and 'v_mfma' in l: return False
        if opt.get('x_nodpp') and '_dpp' in l: return False
        if opt.get('x_nopk') and 'v_pk_' in l: return False
        if opt.get('x_nocvt') and 'v_cvt_pk' in l: return False
        if opt.get('x_nolgkm') and 'lgkmcnt' in l: return False
        if opt.get('x_notrans') and ('v_exp' in l or 'v_rcp' in l): return False
        return True
    e.L = e.L[:loop_start] + [l for l in e.L[loop_start:] if xf(l)]
    e("K2_drain:\ns_nop 0")
    stamp('loop')
    if opt.get('stamp'): e("v_writelane_b32 v232, s56, 28")
    for x in seg(ACC1): e(x)
    e(f"ds_write_b64 v{vMA}, v[{ZQ}:{ZQ+1}]")
    e("s_nop 7\ns_nop 7")
    flush(s_nbCur)
    for r in range(8): e(f"v_mov_b32 v{OH2+r}, 0")
    e("K2_wavedone:")
    e(f"s_waitcnt vmcnt(0)\nv_lshlrev_b32 v{T0}, 4, v1\ns_lshl_b32 s{s_t0}, s{s_cb}, 13\ns_add_u32 s{s_t0}, s{s_t0}, {WS_WF+16384}\ns_add_u32 s{s_t1}, s{s_t0}, 4096")
    for f in range(8):
        e(f"buffer_load_dwordx4 {vr(PRE0+4*f,4)}, v{T0}, {sr(sWS,4)}, s{s_t0 if f<4 else s_t1} offen offset:{1024*(f&3)}")
    e(f"""
    v_and_b32 v{T0+1}, 31, v1
    v_lshrrev_b32 v{T0+2}, 5, v1
    s_lshl_b32 s{s_t0}, s{s_rb}, 5
    v_add_u32 v{T0+1}, s{s_t0}, v{T0+1}
    v_mul_u32_u24 v{T0+3}, {ACS}, v{T0+1}
    v_lshl_add_u32 v{T0+3}, v{T0+2}, 6, v{T0+3}
    v_add_u32 v{T0+3}, {L_ACC}, v{T0+3}
    v_lshlrev_b32 v{T0+4}, 2, v0
    v_lshlrev_b32 v{T0+5}, 3, v0
    v_add_u32 v{T0+5}, {L_PACC}, v{T0+5}
    v_mov_b32 v{T0+6}, {L_FLAG}
    s_waitcnt lgkmcnt(0)
    """)
    stamp('drain')
    e("s_barrier")
    stamp('B3')
    e(f"ds_read_b32 v{T0+6}, v{T0+6}")
    for s_ in range(4):
        e(f"ds_read_b128 {vr(W2+8*s_,4)}, v{T0+3} offset:{64*s_}" if False else "")
    e(f"""
    s_waitcnt lgkmcnt(0)
    v_readfirstlane_b32 s{s_t0}, v{T0+6}
    s_nop 0
    s_cmp_lg_u32 s{s_t0}, 0
    s_cbranch_scc1 K2_more
    """)
    dreg = lambda k: (W2 + 4 * k) if k < 8 else (ACC0 + 4 * (k - 8))
    for k in range(16):
        e(f"ds_read_b128 {vr(dreg(k),4)}, v{T0+3} offset:{128*(k>>2)+16*(k&3)}")
    e(f"ds_read_b64 {vr(PD,2)}, v{T0+5}\nds_read_b32 v{T0+7}, v{T0+4} offset:{L_POSD}")
    e("s_waitcnt vmcnt(4)")
    for s_ in range(4): e(mfma(TMP, PRE0 + 4 * s_, HOWN + 4 * s_, None if s_ == 0 else TMP))
    for k in range(16):
        if k % 4 == 0: e(f"s_waitcnt lgkmcnt({14-k})")
        r = dreg(k)
        e(f"v_cvt_f32_f64 v{r}, {vr(r,2)}\nv_cvt_f32_f64 v{r+1}, {vr(r+2,2)}")
        if fold: e(f"v_mul_f32 v{r}, {LN2}, v{r}\nv_mul_f32 v{r+1}, {LN2}, v{r+1}")
        if k: e(f"v_cvt_pk_bf16_f32 v{HS+k-1}, v{dreg(k-1)}, v{dreg(k-1)+1}")
    e(f"v_cvt_pk_bf16_f32 v{HS+15}, v{dreg(15)}, v{dreg(15)+1}")
    e("s_waitcnt vmcnt(0)\ns_nop 0")
    for s_ in range(4): e(mfma(TMP, PRE0 + 16 + 4 * s_, HS + 4 * s_, TMP))
    e(f"""
    v_lshrrev_b32 v{W2}, 2, v0
    v_and_b32 v{W2+1}, 3, v0
    v_cmp_gt_u32 vcc, {NPB}, v{W2}
    v_cmp_gt_u32 {sr(sMK,2)}, 3, v{W2+1}
    v_add_u32 v{W2}, s{s_nb0}, v{W2}
    v_mul_u32_u24 v{W2}, 6, v{W2}
    v_lshl_add_u32 v{W2}, v{W2+1}, 1, v{W2}
    s_waitcnt lgkmcnt(0)
    v_cvt_f32_f64 v{T0+6}, {vr(PD,2)}
    s_nop 0
    v_add_f32 v{T0+6}, v{T0+6}, v{T0+7}
    s_and_b64 {sr(sMK,2)}, {sr(sMK,2)}, vcc
    v_cvt_pk_bf16_f32 v{T0+6}, v{T0+6}, v{T0+6}
    s_mov_b64 exec, {sr(sMK,2)}
    s_cbranch_execz K2_nopos
    buffer_store_short v{T0+6}, v{W2}, {sr(sOP,4)}, 0 offen
    K2_nopos:
    s_mov_b64 exec, -1
    v_cmp_gt_u32 vcc, {NPB}, v{T0+1}
    v_add_u32 v{T0+1}, s{s_nb0}, v{T0+1}
    v_lshlrev_b32 v{T0+1}, 7, v{T0+1}
    v_lshl_add_u32 v{T0+1}, v{T0+2}, 5, v{T0+1}
    s_lshl_b32 s{s_t0}, s{s_cb}, 6
    """)
    for r in range(8):
        e(f"v_lshlrev_b32 v{ACC0+2*r}, 16, v{HOWN+r}\nv_and_b32 v{ACC0+2*r+1}, 0xffff0000, v{HOWN+r}")
    X = W2 + 4
    for i in range(0, 16, 2): e(f"v_pk_mul_f32 {vr(X+i,2)}, {vr(TMP+i,2)}, {sr(sC,2)}")
    for i in range(16): e(f"v_exp_f32 v{X+i}, v{X+i}")
    for i in range(0, 16, 2): e(f"v_pk_add_f32 {vr(X+i,2)}, {vr(X+i,2)}, 1.0 op_sel_hi:[1,0]")
    for i in range(16): e(f"v_rcp_f32 v{X+i}, v{X+i}")
    for i in range(0, 16, 2): e(f"v_pk_fma_f32 {vr(X+i,2)}, {vr(TMP+i,2)}, {vr(X+i,2)}, {vr(ACC0+i,2)}")
    for i in range(8): e(f"v_cvt_pk_bf16_f32 v{HS+i}, v{X+2*i}, v{X+2*i+1}")
    stamp('epi')
    fin(s_b, s_w, 8, sWS, WS_STAMP, T0)
    e(f"""
    s_mov_b64 exec, vcc
    s_cbranch_execz K2_end
    buffer_store_dwordx4 {vr(HS,4)}, v{T0+1}, {sr(sOUT,4)}, s{s_t0} offen
    buffer_store_dwordx4 {vr(HS+4,4)}, v{T0+1}, {sr(sOUT,4)}, s{s_t0} offen offset:16
    K2_end:
    s_endpgm
    """)
    def zero_hist():
        e(f"""
        v_cmp_gt_u32 vcc, 65, v0
        v_lshlrev_b32 v{tA}, 4, v0
        s_nop 0
        s_mov_b64 exec, vcc
        ds_write_b128 v{tA}, {vr(ZQ,4)} offset:{L_HIST}
        s_mov_b64 exec, -1
        s_waitcnt lgkmcnt(0)
        s_barrier
        """)
    e("K2_retry:\ns_waitcnt lgkmcnt(0)\ns_barrier")
    zero_hist()
    e(f"s_mov_b32 s{s_take}, 8\ns_mov_b32 s{sMV}, 0x0f0f0f0f\ns_mov_b32 s{sMV+1}, 0x0f0f0f0f")
    for i in range(4):
        e(f"s_mov_b64 {sr(sMASK+8*i+4,2)}, 0\ns_mov_b64 {sr(sMASK+8*i+6,2)}, 0")
        e(f"s_and_b64 {sr(sMASK+8*i,2)}, {sr(sMASK+8*i,2)}, {sr(sMV,2)}\ns_and_b64 {sr(sMASK+8*i+2,2)}, {sr(sMASK+8*i+2,2)}, {sr(sMV,2)}")
    e("s_branch K2_hist")
    e("K2_more:\ns_waitcnt vmcnt(0)\ns_barrier")
    zero_hist()
    e(f"s_add_u32 s{s_done}, s{s_done}, s{s_take}\ns_mov_b32 s{s_take}, 32")
    e.vm = []
    offs_loads(); rec_loads()
    e("s_waitcnt vmcnt(0)\ns_branch K2_hist")
    return e.text(), KD.format(name=nm, vgpr=NVG+8, acc=NVG+8, sgpr=102)

HEADER = open("standalone__cheap_equivariant_egnn__graph.s.ref").read().split("; Override launch")[0]

def gen(opt):
    k1, d1 = gen_k1(opt); k2, d2 = gen_k2(opt)
    s = HEADER
    s += f"; @launch kernel=egnn_part_kernel grid=({NCH},1,1) block=(1024,1,1) lds={K1_LDS}\n"
    s += f"; @launch kernel=egnn_main_kernel grid=({NBIN},1,1) block=(512,1,1) lds={K2_LDS}\n"
    s += '.amdgcn_target "amdgcn-amd-amdhsa--gfx950"\n.text\n'
    s += k1 + "\n" + k2 + d1 + d2
    return s

if __name__ == "__main__":
    opt = {}
    out = sys.argv[1]
    for a in sys.argv[2:]:
        k, _, v = a.partition("="); opt[k] = int(v) if v else 1
    open(out, "w").write(gen(opt))
    if opt.get('stamp'): print(opt['names'])
```

```python
import sys
from gen import Em, vr, sr, srd, wave_scan, KD, mk_stamp, mfma, HEADER, LOG2E, NLOG2E, LN2

N = 25000; E = 800000; NPB = 98; NW = 256; CH = 3128; NQ = CH // 4
RECB = 15744; DOFF = 12544
WS_REC = 0; WS_OFF = 0x620000; WS_POS = 0x6A0000; WS_TOK = 0x710000; WS_FLG = 0x720000; WS_B = 0x800000; WS_SZ = 0xC00000; WS_STAMP = 0x780000
CAP = 3584
L_REC = 0; L_H1 = 25088; L_B1 = 26112
L_POSD = 29184; L_OHT = 31232; L_HIST = 31392; L_BASE = 31904; L_FLAG = 32416; L_WDA = 32448
L_MM = 33664; L_ACC = 50048; L_PACC = 105488; L_ATAB = 108848; L_STG = 127360; LDS = 160128
L_W = L_ACC
ACS = 528; ATS = 144
ID = 2; SCR = 10; DH = 34; WHM = 50; HR = 66; ACC0 = 74; ACC1 = 90; PRE0 = 106; PRE1 = 122; TMP = 138; MR = 154
HS = 162; AW = 178; OH1A = 186; OH1B = 190; OH2 = 194; IDX = 202; ZQ = 210; RW = 214; PS = 216; vPI = 219
PD = 220; WP = 224; vMA = 226; vRA = 227; vTA = 228; cRA = 229; cTA = 230; cHS = 231; cM = 235; cMW = 237
vAWA = 238; cAW = 239; cF = 240; cP = 241; wx0 = 242; wx1 = 243; vMX = 244; T0 = 245; vST = 255
sDST = 28; sSRC = 32; sEA = 36; sWS = 40; sH = 44; sPF = 48; sOUT = 52; sOP = 56; sDBG = 60
sWE = 64; sWH = 68; sPOS = 72; sWX = 76; sM0 = 80; sM1 = 82; sMASK = 4
s_w = 3; s_b = 84; s_nb0 = 85; s_rb = 86; s_cb = 87; s_stg = 88; s_t0 = 89; s_t1 = 90; s_t2 = 91
sC = 92; sLO = 94; sQ = 96; s_done = 98; s_take = 99; s_T = 100; s_c = 101
s_p = 64; s_pn = 65; s_end = 66; s_p8 = 67; s_lim = 68; s_nbN = 69; s_nbCur = 70; s_nbOld = 71
s_flN = 72; s_flush = 73; s_cntN = 74; s_cntCur = 75; s_need = 76; s_mkB = 77; sMK = 78; sMV = 80; s_o = 36; s_dbg = 82; L_TOK = L_FLAG + 16; L_BST = L_STG + 16384

NLN2 = LN2 | 0x80000000
s_rem = 83

def gen(opt):
    opt.setdefault('pfp', 1); opt.setdefault('pfb', 12); opt.setdefault('cpf', 16)
    fold = opt.get('fold', 1)
    dhs = fold and opt.get('dhs', 0)
    ordr = opt.get('ord', 1)
    FL = {0: "", 1: " nt", 2: " sc1", 3: " sc1 nt", 4: " sc0 sc1 nt", 5: " sc0 sc1"}
    EN = FL[opt.get('en', 3)]; ON = FL[opt.get('on', 3)]; RN = FL[opt.get('rn', 2)]; SN = FL[opt.get('sn', 2)]; BN = FL[opt.get('bn', 2)]
    SC = " sc1"
    OF = {0: "", 1: " sc1", 2: " nt", 3: " sc0 sc1", 4: " sc1 nt", 5: " sc0 sc1 nt"}[opt.get("of", 5)]
    e = Em(); nm = "standalone__cheap_equivariant_egnn__graph_kernel"
    stamp, real, fin = mk_stamp(e, opt, vST)
    e(f".globl {nm}\n.p2align 8\n.type {nm},@function\n{nm}:")
    cpf = ""
    if opt.get('cpf', 0):
        n2 = opt.get('cpf')
        cpf = f"s_getpc_b64 s[26:27]\nv_lshlrev_b32 v{HS}, 7, v1\nv_add_u32 v{HS+1}, 0x2000, v{HS}\nglobal_load_dword v{HS+2}, v{HS}, s[26:27] offset:512\n"
        cpf += f"s_mov_b64 exec, {hex((1 << n2) - 1)}\nglobal_load_dword v{HS+3}, v{HS+1}, s[26:27] offset:512\ns_mov_b64 exec, -1"
    o8 = T0 + 4; t8 = T0 + 5
    rho = PD; hb = PD + 1; f3 = PD + 2; r4 = PD + 3; slot = WP; g1 = WP + 1; c4 = RW; tq = RW + 1
    e(f"""
    s_cmp_ge_u32 s2, {NW}
    s_cbranch_scc1 K_end
    {'s_memrealtime s[26:27]' if opt.get('x_pad') else ''}
    s_load_dwordx16 s[4:19], s[0:1], 0
    s_load_dwordx4 s[20:23], s[0:1], 64
    s_load_dwordx2 s[24:25], s[0:1], 80
    v_lshrrev_b32 v{T0}, 6, v0
    v_and_b32 v1, 63, v0
    v_readfirstlane_b32 s{s_w}, v{T0}
    s_mov_b32 s{s_c}, s2
    s_and_b32 s{s_b}, s2, 7
    s_lshl_b32 s{s_b}, s{s_b}, 5
    s_lshr_b32 s{s_t0}, s2, 3
    s_add_u32 s{s_b}, s{s_b}, s{s_t0}
    s_mul_i32 s{s_nb0}, s{s_b}, {NPB}
    s_lshr_b32 s{s_rb}, s{s_w}, 1
    s_and_b32 s{s_cb}, s{s_w}, 1
    s_mul_i32 s{s_t0}, s2, {NQ}
    v_add_u32 v{T0}, s{s_t0}, v0
    v_add_u32 v{T0+1}, 0x200, v{T0}
    s_mov_b32 s{s_t1}, {E//4}
    v_cmp_gt_u32 {sr(sM0,2)}, s{s_t1}, v{T0}
    v_cmp_gt_u32 {sr(sM1,2)}, s{s_t1}, v{T0+1}
    v_cmp_gt_u32 vcc, {NQ-512}, v0
    v_lshlrev_b32 v{ID+2}, 3, v{T0}
    v_lshlrev_b32 v{ID+3}, 3, v{T0+1}
    v_lshlrev_b32 v{ID}, 4, v{T0}
    v_lshlrev_b32 v{ID+1}, 4, v{T0+1}
    s_and_b64 {sr(sM1,2)}, {sr(sM1,2)}, vcc
    v_lshrrev_b32 v{o8}, 3, v1
    v_and_b32 v{t8}, 7, v1
    v_mov_b32 v{ZQ}, 0
    v_mov_b32 v{ZQ+1}, 0
    v_mov_b32 v{ZQ+2}, 0
    v_mov_b32 v{ZQ+3}, 0
    v_lshlrev_b32 v{tq}, 4, v0
    s_cmp_lg_u32 s{s_w}, 7
    s_cbranch_scc1 K_nh1
    ds_write_b128 v{tq}, {vr(ZQ,4)} offset:{L_H1-7*1024}
    {cpf}
    K_nh1:
    s_waitcnt lgkmcnt(0)
    s_barrier
    """)
    def spin(tag):
        if opt.get('x_spin') == tag:
            e(f"""
            s_memtime s[0:1]
            s_waitcnt lgkmcnt(0)
            s_add_u32 s2, s0, 20000
            KX_spin:
            s_memtime s[0:1]
            s_waitcnt lgkmcnt(0)
            s_sub_u32 s0, s0, s2
            s_cmp_lt_i32 s0, 0
            s_cbranch_scc1 KX_spin
            """)
    stamp0 = stamp
    def stamp(name):
        stamp0(name)
        if opt.get('x_pad') == name:
            e(f"""
            KX_pad:
            s_memrealtime s[0:1]
            s_waitcnt lgkmcnt(0)
            s_sub_u32 s0, s0, s2
            s_cmp_lt_u32 s0, 5000
            s_cbranch_scc1 KX_pad
            """)
    if opt.get('x_pad'): e("s_mov_b32 s2, s26")
    spin(1)
    real(); stamp('start')
    def rt(lane):
        if opt.get('stamp'): e(f"s_memrealtime s[0:1]\ns_waitcnt lgkmcnt(0)\nv_writelane_b32 v{vST}, s0, {lane}")


    D0, S0, E0, D1, S1, E1 = 106, 110, 114, 116, 120, 124
    REC1 = 126; HA = 142; RK = 150; SCN = 158; PO = OH2; TK = OH1A; RWV = SCR + 16
    vRO = 251; vBG = 252; vBW = 253; nd = vBG; nd2 = 254
    sHR = sH; sBS = sPOS
    HA4 = AW; vONE = PS + 1; vL16 = PS + 2
    aE = ID
    HO = [HR, HR + 4, ACC1, ACC1 + 4]
    def rd(tag, dst, off):
        for s_ in range(4):
            for t in range(2): e.d(tag, f"ds_read_b64_tr_b16 {vr(dst+4*s_+2*t,2)}, v{T0+1+(s_>>1)} offset:{off+1024*(s_&1)+512*t}")
    def mm(d, a):
        for s_ in range(4): e(mfma(d, a + 4 * s_, HO[s_], None if s_ == 0 else d))
    def scale_pack(src):
        if fold:
            for r in range(16): e(f"v_mul_f32 v{src+r}, s7, v{src+r}")
        for r in range(8): e(f"v_cvt_pk_bf16_f32 v{AW+r}, v{src+2*r}, v{src+2*r+1}")
    srd(e, sDST, 12, 13, E * 4)
    e.v('dst', f"buffer_load_dwordx4 {vr(D0,4)}, v{aE}, {sr(sDST,4)}, 0 offen{EN}")
    e(f"s_mov_b64 exec, {sr(sM1,2)}")
    e.v('dst', f"buffer_load_dwordx4 {vr(D1,4)}, v{aE+1}, {sr(sDST,4)}, 0 offen{EN}")
    srd(e, sWS, 24, 25, WS_SZ)
    e(f"""
    s_lshl_b32 s{s_t0}, s{s_c}, 3
    s_add_u32 s{s_t0}, s{s_t0}, s{s_w}
    s_cmp_eq_u32 s{s_t0}, 5
    s_cselect_b64 {sr(26,2)}, 1, 0
    s_mov_b32 s{s_t2}, {WS_TOK}
    s_mov_b64 exec, {sr(26,2)}
    """)
    e.v('dst', f"buffer_load_dwordx2 {vr(TK,2)}, v{ZQ}, {sr(sWS,4)}, s{s_t2} offen{SC}")
    e("s_mov_b64 exec, -1")
    srd(e, sHR, 4, 5, N, stride=128); srd(e, sWE, 14, 15, 130 * 128)
    e(f"""
    s_lshl_b32 s12, s{s_w}, 11
    s_lshl_b32 s13, s{s_w}, 10
    s_mov_b32 s14, 8192
    s_lshl_b32 s{s_t0}, s{s_w}, 4
    s_add_u32 s{s_t0}, s{s_t0}, s{s_nb0}
    v_lshrrev_b32 v{vPI}, 4, v1
    v_xor_b32 v{vPI}, v{t8}, v{vPI}
    v_lshlrev_b32 v{IDX+1}, 4, v{vPI}
    v_add_u32 v{IDX}, s{s_t0}, v{o8}
    v_xor_b32 v{IDX+3}, 64, v{IDX+1}
    v_add_u32 v{IDX+2}, 8, v{IDX}
    v_mov_b32 v{IDX+5}, v{IDX+1}
    """)
    if opt.get('own98', 1):
        e(f"""
        s_add_u32 s{s_t0}, s{s_nb0}, {NPB}
        v_cmp_gt_u32 vcc, s{s_t0}, v{IDX}
        v_cmp_gt_u32 {sr(0,2)}, s{s_t0}, v{IDX+2}
        v_mov_b32 v{vPI}, 0x100000
        v_cndmask_b32 v{IDX}, v{vPI}, v{IDX}, vcc
        v_cndmask_b32 v{IDX+2}, v{vPI}, v{IDX+2}, {sr(0,2)}
        """)
    def own_loads():
        e(f"s_add_u32 m0, s12, {L_STG}\ns_nop 0")
        e.v('own', f"buffer_load_dwordx4 {vr(IDX,2)}, {sr(sHR,4)}, 0 idxen offen{ON} lds")
        e(f"s_add_u32 m0, s12, {L_STG+1024}\ns_nop 0")
        e.v('own', f"buffer_load_dwordx4 {vr(IDX+2,2)}, {sr(sHR,4)}, 0 idxen offen{ON} lds")
        e(f"s_add_u32 m0, s13, {L_W+8192}\ns_nop 0")
        e.v('own', f"buffer_load_dwordx4 v{tq}, {sr(sWE,4)}, s14 offen lds")
    oe = opt.get('oe', 1)
    if not ordr or oe in (1, 2): own_loads()
    def src_loads():
        e.v('src', f"buffer_load_dwordx4 {vr(S0,4)}, v{aE}, {sr(sSRC,4)}, 0 offen{EN}")
        e.v('src', f"buffer_load_dwordx2 {vr(E0,2)}, v{aE+2}, {sr(sEA,4)}, 0 offen{EN}")
        e(f"s_mov_b64 exec, {sr(sM1,2)}")
        e.v('src', f"buffer_load_dwordx4 {vr(S1,4)}, v{aE+1}, {sr(sSRC,4)}, 0 offen{EN}")
        e.v('src', f"buffer_load_dwordx2 {vr(E1,2)}, v{aE+3}, {sr(sEA,4)}, 0 offen{EN}")
        e(f"s_cmp_ge_u32 s{s_w}, 6\ns_cselect_b64 exec, -1, 0")
        for k in range(3): e.v('src', f"buffer_load_ushort v{PO+k}, v{PO+6}, {sr(sPOS,4)}, 0 offen offset:{2*k}")
        e(f"s_cmp_eq_u32 s{s_w}, 5\ns_cselect_b64 exec, -1, 0\ns_mov_b32 s{s_t0}, 16384")
        for k in range(2): e.v('src', f"buffer_load_ushort v{PO+k}, v{PO+7}, {sr(sWE,4)}, s{s_t0} offen offset:{128*k}")
        e("s_mov_b64 exec, -1")
    stamp('iss')
    srd(e, sSRC, 10, 11, E * 4); srd(e, sEA, 8, 9, E * 2)
    srd(e, sPOS, 6, 7, N * 6); srd(e, sDBG, 22, 23, 256)
    e(f"""
    v_mov_b32 v{IDX+7}, v{IDX+3}
    v_and_b32 v{rho}, 31, v1
    v_lshrrev_b32 v{hb}, 5, v1
    v_bfe_u32 v{f3}, v1, 1, 3
    v_bfe_u32 v{r4}, v1, 2, 2
    v_bfe_u32 v{g1}, v1, 4, 1
    v_and_b32 v{c4}, 3, v1
    v_subrev_u32 v{PO+5}, 0x180, v0
    v_add_u32 v{PO+4}, s{s_nb0}, v{PO+5}
    v_mul_u32_u24 v{PO+6}, 6, v{PO+4}
    v_lshlrev_b32 v{PO+7}, 1, v1
    v_cmp_gt_u32 vcc, 152, v0
    ds_write_b128 v{tq}, {vr(ZQ,4)} offset:{L_OHT}
    ds_write_b128 v{tq}, {vr(ZQ,4)} offset:{L_OHT+8192}
    s_mov_b64 exec, vcc
    ds_write_b128 v{tq}, {vr(ZQ,4)} offset:{L_OHT+16384}
    s_mov_b64 exec, -1
    """)
    if ordr and oe != 1: src_loads()
    if oe == 3: own_loads()
    srd(e, sWH, 18, 19, 128 * 128); srd(e, sWX, 16, 17, 128)
    srd(e, sPF, 24, 25, N + 216, add=WS_POS, stride=16)
    srd(e, sOUT, 20, 21, N * 128); srd(e, sOP, 20, 21, N * 6, add=N * 128)
    if opt.get('tlb'):
        st_ = opt.get('tlb')
        e(f"""
        v_lshlrev_b32 v{HS+4}, {st_}, v1
        v_lshlrev_b32 v{HS+5}, {st_-7}, v1
        s_cmp_eq_u32 s{s_w}, 7
        s_cselect_b64 exec, -1, 0
        """)
        e.v('src', f"buffer_load_dword v{HS+6}, v{HS+5}, {sr(sHR,4)}, 0 idxen")
        e.v('src', f"buffer_load_dword v{HS+7}, v{HS+4}, {sr(sWS,4)}, 0 offen")
        e.v('src', f"buffer_load_dword v{HS+8}, v{HS+4}, {sr(sOUT,4)}, 0 offen")
        e("s_mov_b64 exec, -1")
    e(f"""
    s_mov_b32 s4, 42800
    s_mov_b32 s5, -98
    s_mov_b32 s6, 0xffff0000
    s_mov_b32 s7, {NLOG2E}
    s_mul_i32 s8, s{s_c}, {RECB}
    s_add_u32 s9, s8, 8192
    v_mov_b32 v{vONE}, 1
    v_lshlrev_b32 v{vL16}, 4, v1
    v_lshl_or_b32 v{slot}, v{g1}, 2, v{c4}
    v_lshl_or_b32 v{T0}, v{hb}, 3, v{r4}
    v_lshlrev_b32 v{T0}, 7, v{T0}
    v_and_b32 v{T0+1}, 1, v{c4}
    v_lshrrev_b32 v{T0+2}, 1, v{c4}
    v_lshlrev_b32 v{T0+1}, 5, v{T0+1}
    v_lshl_or_b32 v{T0+1}, v{g1}, 4, v{T0+1}
    v_lshl_or_b32 v{T0+1}, v{T0+2}, 3, v{T0+1}
    s_lshl_b32 s{s_t0}, s{s_cb}, 6
    s_add_u32 s{s_t0}, s{s_t0}, {L_W}
    v_add3_u32 v{T0+3}, v{T0}, v{T0+1}, s{s_t0}
    v_lshl_add_u32 v{T0+1}, v{hb}, 10, v{T0+3}
    s_lshl_b32 s{s_t0}, s{s_cb}, 12
    s_xor_b32 s{s_t1}, s{s_t0}, 4096
    v_add_u32 v{T0+2}, s{s_t1}, v{T0+1}
    v_add_u32 v{T0+1}, s{s_t0}, v{T0+1}
    s_lshl_b32 s{s_t0}, s{s_rb}, 12
    s_add_u32 s{s_t1}, s{s_t0}, {L_STG}
    v_lshl_add_u32 v{HA4+5}, v{rho}, 7, s{s_t1}
    s_lshl_b32 s{s_t1}, s{s_cb}, 2
    v_lshlrev_b32 v{HA4+4}, 1, v{hb}
    v_xor_b32 v{HA4+4}, s{s_t1}, v{HA4+4}
    v_xor_b32 v{HA4+4}, v{HA4+4}, v{f3}
    """)
    for s_ in range(4):
        k = 4 * (s_ >> 1) + (s_ & 1)
        e(f"v_xor_b32 v{HA4+s_}, {k}, v{HA4+4}\nv_lshl_add_u32 v{HA4+s_}, v{HA4+s_}, 4, v{HA4+5}")
    e(f"""
    s_add_u32 s{s_t1}, s12, {L_BST}
    v_and_b32 v{T0}, 3, v{f3}
    v_lshlrev_b32 v{vBW}, 1, v{hb}
    v_xor_b32 v{vBW}, v{vBW}, v{T0}
    v_lshlrev_b32 v{vBW}, 4, v{vBW}
    v_lshl_add_u32 v{vBW}, v{rho}, 6, v{vBW}
    v_add_u32 v{vBW}, s{s_t1}, v{vBW}
    v_add_u32 v{ID+5}, s{s_t1}, v{vL16}
    s_lshl_b32 s{s_t0}, s{s_rb}, 5
    v_lshrrev_b32 v{T0}, 2, v1
    v_add_u32 v{T0}, s{s_t0}, v{T0}
    v_cmp_gt_u32 vcc, {NPB}, v{T0}
    s_movk_i32 s{s_t1}, {NPB-16}
    v_cmp_gt_u32 {sr(18,2)}, s{s_t1}, v{T0}
    v_add_u32 v{T0}, s{s_nb0}, v{T0}
    v_xor_b32 v{vBG}, v{o8}, v1
    v_and_b32 v{vBG}, 3, v{vBG}
    v_lshlrev_b32 v{T0}, 7, v{T0}
    v_lshl_add_u32 v{T0}, v{vBG}, 4, v{T0}
    s_lshl_b32 s{s_t1}, s{s_cb}, 6
    v_add_u32 v{T0}, s{s_t1}, v{T0}
    v_mov_b32 v{vPI}, 0x1000000
    v_cndmask_b32 v{vBG}, v{vPI}, v{T0}, vcc
    v_cndmask_b32 v{nd2}, v{vPI}, v{T0}, {sr(18,2)}
    v_cmp_gt_u32 vcc, 468, v0
    v_lshlrev_b32 v{vRO}, 5, v1
    s_lshl_b32 s15, s{s_c}, 11
    s_add_u32 s15, s15, {WS_OFF}
    v_cndmask_b32 v{vPI}, v{vPI}, v{tq}, vcc
    v_lshlrev_b32 v{ID+4}, 1, v{rho}
    """)
    srcpos = opt.get('srcpos', 1) if (not ordr or oe == 1) else -1
    stamp('Ba')
    e.wvm('dst')
    stamp('dst')
    if srcpos == 1: src_loads()
    e(f"""
    s_mov_b64 exec, {sr(26,2)}
    s_cbranch_execz K_notok
    v_add_u32 v{TK}, 1, v{TK}
    v_add_u32 v{TK+1}, 1, v{TK+1}
    v_mov_b32 v{TK+4}, v{TK}
    v_lshl_or_b32 v{TK+5}, v{TK+1}, 24, 1
    buffer_store_dwordx2 {vr(TK+4,2)}, v{ZQ}, {sr(sDBG,4)}, 0 offen{SC}
    buffer_store_dwordx2 {vr(TK,2)}, v{ZQ}, {sr(sWS,4)}, s{s_t2} offen{SC}
    K_notok:
    """)
    for r, D in enumerate((D0, D1)):
        if r: e(f"s_mov_b64 exec, {sr(sM1,2)}\ns_cbranch_execz K_h1")
        else: e(f"s_mov_b64 exec, {sr(sM0,2)}")
        for k in range(4): e(f"v_mul_u32_u24 v{HA+4*r+k}, s4, v{D+k}")
        for k in range(4): e(f"v_lshrrev_b32 v{HA+4*r+k}, 22, v{HA+4*r+k}")
        for k in range(4): e(f"v_mad_i32_i24 v{REC1+8*r+2*k+1}, v{HA+4*r+k}, s5, v{D+k}")
        for k in range(4): e(f"v_lshlrev_b32 v{HA+4*r+k}, 2, v{HA+4*r+k}\nds_add_rtn_u32 v{RK+4*r+k}, v{HA+4*r+k}, v{vONE} offset:{L_H1}")
    e("K_h1:\ns_mov_b64 exec, -1")
    if srcpos == 2: src_loads()
    def w1_loads():
        e(f"s_add_u32 m0, s13, {L_W}\ns_nop 0")
        e.v('w1', f"buffer_load_dwordx4 v{tq}, {sr(sWE,4)}, 0 offen lds")
        e.v('w1', f"buffer_load_ushort v{wx0}, v{ID+4}, {sr(sWX,4)}, 0 offen")
        e.v('w1', f"buffer_load_ushort v{wx1}, v{ID+4}, {sr(sWX,4)}, 0 offen offset:64")
    def wh_loads():
        if ordr != 4: tok_load()
        e(f"s_add_u32 m0, s12, {L_W+16384}\ns_nop 0")
        e.v('wh', f"buffer_load_dwordx4 v{vL16}, {sr(sWH,4)}, s12 offen lds")
        e.v('wh', f"buffer_load_dwordx4 v{vL16}, {sr(sWH,4)}, s12 offen offset:1024 lds")
    def tok_load():
        e(f"s_cmp_eq_u32 s{s_w}, 4\ns_cselect_b64 exec, -1, 0")
        e.v('tok', f"buffer_load_dwordx2 {vr(TK,2)}, v{ZQ}, {sr(sDBG,4)}, 0 offen{SC}")
        e("s_mov_b64 exec, -1")
    def b_reads():
        for s_ in range(4): e.d('ho', f"ds_read_b128 {vr(HO[s_],4)}, v{HA4+s_}")
        rd('w2', SCR, 8192)
    def b_out(pre):
        scale_pack(ACC0)
        e(f"ds_write_b128 v{vBW}, {vr(AW,4)}\nds_write_b128 v{T0}, {vr(AW+4,4)}")
        e(f"ds_read_b128 {vr(ACC0,4)}, v{ID+5}\nds_read_b128 {vr(ACC0+4,4)}, v{ID+5} offset:1024")
        pre()
        srd(e, sBS, 24, 25, N * 128, add=WS_B)
        e("s_waitcnt lgkmcnt(1)")
        e.v('bst', f"buffer_store_dwordx4 {vr(ACC0,4)}, v{nd}, {sr(sBS,4)}, 0 offen{BN}")
        e("s_waitcnt lgkmcnt(0)")
        e.v('bst', f"buffer_store_dwordx4 {vr(ACC0+4,4)}, v{nd2}, {sr(sBS,4)}, 0 offen offset:2048{BN}")
        e.ds = []
    if not ordr: e.wvm('own')
    e("s_waitcnt lgkmcnt(0)\ns_barrier")
    e.ds = []
    stamp('Bb')
    e.d('h', f"ds_read_b128 {vr(SCN,4)}, v{vL16} offset:{L_H1}")
    late = ordr == 4
    if not late and not oe: own_loads()
    e.wds('h')
    e(f"""
    v_add_u32 v{SCN+4}, v{SCN}, v{SCN+1}
    v_add_u32 v{SCN+5}, v{SCN+4}, v{SCN+2}
    v_add_u32 v{SCN+6}, v{SCN+5}, v{SCN+3}
    v_mov_b32 v{SCN+7}, v{SCN+6}
    """)
    wave_scan(e, SCN + 7)
    e(f"""
    v_sub_u32 v{SCN+8}, v{SCN+7}, v{SCN+6}
    v_add_u32 v{SCN+9}, v{SCN+8}, v{SCN}
    v_add_u32 v{SCN+10}, v{SCN+8}, v{SCN+4}
    v_add_u32 v{SCN+11}, v{SCN+8}, v{SCN+5}
    """)
    e.d('bw', f"ds_write_b128 v{vL16}, {vr(SCN+8,4)} offset:{L_B1}")
    e(f"s_mov_b64 exec, {sr(sM0,2)}")
    for k in range(4): e.d('b0', f"ds_read_b32 v{HA+k}, v{HA+k} offset:{L_B1}")
    e(f"s_mov_b64 exec, {sr(sM1,2)}")
    for k in range(4, 8): e.d('b1', f"ds_read_b32 v{HA+k}, v{HA+k} offset:{L_B1}")
    e("s_mov_b64 exec, -1")
    if not ordr:
        e.wds('w2')
        mm(ACC0, SCR)
    def rec_words():
        for r, (S, EE) in enumerate(((S0, E0), (S1, E1))):
            e(f"""
            v_lshl_or_b32 v{REC1+8*r}, v{EE}, 16, v{S}
            v_and_or_b32 v{REC1+8*r+2}, v{EE}, s6, v{S+1}
            v_lshl_or_b32 v{REC1+8*r+4}, v{EE+1}, 16, v{S+2}
            v_and_or_b32 v{REC1+8*r+6}, v{EE+1}, s6, v{S+3}
            """)
    if ordr:
        e.wvm('src'); rec_words()
    e.wds('b1')
    for k in range(8): e(f"v_add_u32 v{HA+k}, v{HA+k}, v{RK+k}")
    e(f"s_mov_b64 exec, {sr(sM0,2)}")
    for k in range(4): e(f"ds_write_b8 v{HA+k}, v{REC1+2*k+1} offset:{L_REC+DOFF}")
    e(f"s_mov_b64 exec, {sr(sM1,2)}")
    for k in range(4, 8): e(f"ds_write_b8 v{HA+k}, v{REC1+2*k+1} offset:{L_REC+DOFF}")
    e(f"s_mov_b64 exec, -1\nv_xor_b32 v{T0}, 16, v{vBW}")
    for k in range(8): e(f"v_lshlrev_b32 v{HA+k}, 2, v{HA+k}")
    if not ordr: b_out(wh_loads)
    stamp('scan')
    if not ordr:
        e.wvm('src'); rec_words()
    stamp('src')
    for r in range(2):
        e(f"s_mov_b64 exec, {sr(sM0 if r == 0 else sM1,2)}")
        for k in range(4 * r, 4 * r + 4): e(f"ds_write_b32 v{HA+k}, v{REC1+2*k} offset:{L_REC}")
    e("s_mov_b64 exec, -1")
    e(f"""
    s_cmp_lt_u32 s{s_w}, 6
    s_cbranch_scc1 K_nopf
    s_mov_b32 s{s_t0}, {N}
    v_cmp_gt_u32 vcc, {NPB}, v{PO+5}
    v_cmp_gt_u32 {sr(16,2)}, s{s_t0}, v{PO+4}
    v_lshlrev_b32 v{PO}, 16, v{PO}
    v_lshlrev_b32 v{PO+1}, 16, v{PO+1}
    v_lshlrev_b32 v{PO+2}, 16, v{PO+2}
    v_mov_b32 v{PO+3}, 0
    v_lshlrev_b32 v{PO+5}, 4, v{PO+5}
    ds_write_b128 v{PO+5}, {vr(PO,4)} offset:{L_POSD}
    s_and_b64 {sr(16,2)}, {sr(16,2)}, vcc
    K_nopf:
    """)
    nobx = opt.get('nobx', 0)
    if late: tok_load()
    elif ordr == 1:
        w1_loads(); wh_loads()
        if 'own' in e.vm: e.wvm('own')
    elif ordr == 2:
        w1_loads(); wh_loads()
    else: e.wvm('wh' if nobx else 'w1')
    e("s_waitcnt lgkmcnt(0)\ns_barrier")
    e.ds = []
    stamp('Bc')
    for r in range(2): e.d(f'c{r}', f"ds_read_b128 {vr(PRE0+4*r,4)}, v{tq} offset:{L_REC+8192*r}")
    if ordr == 1: b_reads()
    if not ordr: rd('w1', SCR, 0)
    for r in range(2):
        e.wds(f'c{r}')
        e.v('st', f"buffer_store_dwordx4 {vr(PRE0+4*r,4)}, v{tq if r < 1 else vPI}, {sr(sWS,4)}, s{8+r} offen{SN}")
    def posf_store():
        e(f"s_cmp_ge_u32 s{s_w}, 6\ns_cselect_b64 exec, {sr(16,2)}, 0")
        e.v('bst', f"buffer_store_dwordx4 {vr(PO,4)}, v{PO+4}, {sr(sPF,4)}, 0 idxen{SC}")
        e("s_mov_b64 exec, -1")
    def row_prep():
        e(f"""
        s_cmp_lg_u32 s{s_w}, 4
        s_cbranch_scc1 K_row_done
        s_mov_b32 s{s_t0}, 0
        K_tk:
        v_readfirstlane_b32 s{s_t1}, v{TK+1}
        s_add_u32 s{s_t0}, s{s_t0}, 1
        s_cmp_gt_u32 s{s_t0}, 0x40000
        s_cbranch_scc1 K_tkok
        s_bitcmp1_b32 s{s_t1}, 0
        s_cbranch_scc1 K_tkok
        buffer_load_dwordx2 {vr(TK,2)}, v{ZQ}, {sr(sDBG,4)}, 0 offen{SC}
        s_waitcnt vmcnt(0)
        s_branch K_tk
        K_tkok:
        v_and_b32 v{TK+1}, 0xff000000, v{TK+1}
        v_mov_b32 v{TK+2}, {L_TOK}
        ds_write_b64 v{TK+2}, {vr(TK,2)}
        """)
        for k in range(4):
            e(f"v_lshl_or_b32 v{RWV+2*k}, v{SCN+k}, 12, v{SCN+8+k}\nv_mov_b32 v{RWV+2*k+1}, v{TK}\nv_or_b32 v{RWV+2*k}, v{RWV+2*k}, v{TK+1}")

        e("K_row_done:")
    def row_store():
        e(f"s_cmp_eq_u32 s{s_w}, 4\ns_cselect_b64 exec, -1, 0")
        e.v('row', f"buffer_store_dwordx4 {vr(RWV,4)}, v{vRO}, {sr(sWS,4)}, s15 offen{SC}")
        e.v('row', f"buffer_store_dwordx4 {vr(RWV+4,4)}, v{vRO}, {sr(sWS,4)}, s15 offen offset:16{SC}")
        e("s_mov_b64 exec, -1")
    if not late:
        posf_store()
        e.wds('w2')
        mm(ACC0, SCR)
        e.wvm('wh')
        e("s_nop 6")
        row_prep()
        e("s_nop 2")
        b_out(lambda: None)
        stamp('Bx')
        e.wvm('st')
        e("s_barrier")
        stamp('Bd'); rt(27)
        row_store()
        nrow = 2
    else:
        own_loads(); posf_store(); w1_loads(); wh_loads()
        sv = list(e.vm); e.wvm('tok'); e.vm = sv
        row_prep()
        stamp('Bx')
        e.wvm('st')
        e("s_waitcnt lgkmcnt(0)\ns_barrier")
        stamp('Bd'); rt(27)
        row_store()
        e.wvm('wh')
        e("s_barrier")
        b_reads()
        e.wds('w2')
        mm(ACC0, SCR)
        rd('w1', SCR, 0)
        e("s_nop 4")
        b_out(lambda: None)
        nrow = 0
    e.d('tk', f"ds_read_b64 {vr(TK,2)}, v{ZQ} offset:{L_TOK}")
    if not late: rd('w1', SCR, 0)
    e.wds0()
    mm(ACC0, SCR)
    e(f"v_readfirstlane_b32 s60, v{TK}\nv_readfirstlane_b32 s61, v{TK+1}")
    srd(e, sH, 24, 25, N, add=WS_B, stride=128)
    e(f"""
    s_lshl_b32 s{s_t0}, s{s_rb}, 5
    v_add_u32 v{PS}, s{s_t0}, v{rho}
    v_mul_u32_u24 v{PS}, {ATS}, v{PS}
    s_lshl_b32 s{s_t0}, s{s_cb}, 6
    s_add_u32 s{s_t0}, s{s_t0}, {L_ATAB}
    v_lshl_add_u32 v{PS}, v{hb}, 5, v{PS}
    v_add_u32 v{PS}, s{s_t0}, v{PS}
    """)
    rd('wh', TMP, 16384)
    for s_ in range(4):
        for t in range(2): e.d('wm', f"ds_read_b64_tr_b16 {vr(WHM+4*s_+2*t,2)}, v{T0+3} offset:{24576+2048*s_+512*t}")
    scale_pack(ACC0)
    e.wds('wh')
    mm(DH, TMP)
    e(f"ds_write_b128 v{PS}, {vr(AW,4)}\nds_write_b128 v{PS}, {vr(AW+4,4)} offset:16")
    e(mfma(ACC0, ZQ, ZQ)); e(mfma(ACC1, ZQ, ZQ))
    e(f"""
    s_cmp_eq_u32 s{s_w}, 5
    s_cbranch_scc1 K_side5
    s_cmp_lg_u32 s{s_w}, 4
    s_cbranch_scc1 K_side_done
    v_mul_u32_u24 v{PO}, 18, v1
    v_mov_b32 v{PO+1}, 0x3f80
    s_mov_b64 exec, 0xff
    ds_write_b16 v{PO}, v{PO+1} offset:{L_OHT}
    s_mov_b64 exec, -1
    """)
    e("s_branch K_side_done\nK_side5:")
    if not fold:
        e(f"ds_write_b16 v{PO+7}, v{PO} offset:{L_WDA}\nds_write_b16 v{PO+7}, v{PO+1} offset:{L_WDA+ATS}")
    else:
        e(f"""
        v_lshlrev_b32 v{PO}, 16, v{PO}
        v_lshlrev_b32 v{PO+1}, 16, v{PO+1}
        v_mul_f32 v{PO}, s7, v{PO}
        v_mul_f32 v{PO+1}, s7, v{PO+1}
        v_cvt_pk_bf16_f32 v{PO+2}, v{PO}, v{PO+1}
        v_lshlrev_b32 v{PO+3}, 16, v{PO+2}
        v_sub_f32 v{PO}, v{PO}, v{PO+3}
        v_and_b32 v{PO+3}, s6, v{PO+2}
        v_sub_f32 v{PO+1}, v{PO+1}, v{PO+3}
        v_cvt_pk_bf16_f32 v{PO+3}, v{PO}, v{PO+1}
        ds_write_b16 v{PO+7}, v{PO+2} offset:{L_WDA}
        ds_write_b16_d16_hi v{PO+7}, v{PO+2} offset:{L_WDA+ATS}
        ds_write_b16 v{PO+7}, v{PO+3} offset:{L_WDA+2*ATS}
        ds_write_b16_d16_hi v{PO+7}, v{PO+3} offset:{L_WDA+3*ATS}
        """)
    e(f"""
    K_side_done:
    v_lshlrev_b32 v{ID}, 3, v{hb}
    v_sub_u32 v{ID}, v{rho}, v{ID}
    v_subrev_u32 v{ID+4}, 16, v{ID}
    v_min_u32 v{ID}, 8, v{ID}
    v_min_u32 v{ID+4}, 8, v{ID+4}
    v_lshlrev_b32 v{ID}, 4, v{ID}
    v_lshlrev_b32 v{ID+4}, 4, v{ID+4}
    s_mov_b32 s{s_done}, 0
    s_mov_b32 s{s_take}, 32
    v_add_u32 v{T0+3}, {L_ACC}, v{tq}
    v_cmp_gt_u32 vcc, 91, v0
    s_lshl_b32 s14, s{s_c}, 7
    s_add_u32 s14, s14, {WS_FLG}
    """)
    OFFV = 162; cREC = 174; vT2D = 175; tA = 176; tB = 177
    RECV = PRE0; HADR = TMP; RANK = MR
    def offs_pre():
        e(f"""
        v_lshlrev_b32 v{tA}, 11, v{o8}
        s_lshl_b32 s{s_t0}, s{s_w}, 16
        s_lshl_b32 s{s_t1}, s{s_b}, 3
        s_add_u32 s{s_t0}, s{s_t0}, s{s_t1}
        s_add_u32 s16, s{s_t0}, {WS_OFF}
        s_add_u32 s17, s16, 16384
        s_add_u32 s18, s16, 32768
        s_add_u32 s19, s16, 49152
        """)
    def offs_loads():
        for i in range(4):
            e.v('off', f"buffer_load_dwordx2 {vr(OFFV+2*i,2)}, v{tA}, {sr(sWS,4)}, s{16+i} offen{SC}")
    cRD = 173; RA = PRE0; RD = PRE1; aAr = PRE1 + 8; aDr = PRE1 + 12
    def rec_pre():
        e(f"""
        s_mov_b32 s{s_t0}, {RECB}
        v_mul_u32_u24 v{cREC}, s{s_t0}, v{o8}
        v_lshl_add_u32 v{vT2D}, v{t8}, 1, s{s_done}
        v_add_u32 v{cRD}, v{cREC}, v{vT2D}
        v_add_u32 v{cRD}, {DOFF}, v{cRD}
        v_lshl_add_u32 v{cREC}, v{vT2D}, 2, v{cREC}
        s_mul_i32 s{s_o}, s{s_w}, {32*RECB}
        s_add_u32 s{s_o+1}, s{s_o}, {8*RECB}
        s_add_u32 s{s_o+2}, s{s_o}, {16*RECB}
        s_add_u32 s{s_o+3}, s{s_o}, {24*RECB}
        """)
    def rec_loads(waits):
        if waits: e("s_waitcnt vmcnt(0)")
        for i in range(4):
            m = sMASK + 8 * i
            e(f"""
            v_bfe_u32 v{tB}, v{OFFV+2*i}, 12, 12
            v_and_b32 v{tA}, 0xfff, v{OFFV+2*i}
            v_sub_u32 v{HADR+i}, v{tB}, v{vT2D}
            v_add_u32 v{aDr+i}, v{tA}, v{cRD}
            v_cmp_lt_i32 {sr(m,2)}, 0, v{HADR+i}
            v_cmp_lt_i32 {sr(m+4,2)}, 16, v{HADR+i}
            v_lshl_add_u32 v{aAr+i}, v{tA}, 2, v{cREC}
            """)
            e(f"v_mov_b32 v{vMX}, v{tB}" if i == 0 else f"v_max_u32 v{vMX}, v{vMX}, v{tB}")
            e(f"s_mov_b64 exec, {sr(m,2)}")
            e(f"buffer_load_ushort v{RD+2*i}, v{aDr+i}, {sr(sWS,4)}, s{s_o+i} offen{RN}")
            e(f"s_mov_b64 exec, {sr(m+4,2)}")
            e(f"buffer_load_ushort v{RD+2*i+1}, v{aDr+i}, {sr(sWS,4)}, s{s_o+i} offen offset:16{RN}")
            e("s_mov_b64 exec, -1")
        for i in range(4):
            m = sMASK + 8 * i
            e(f"s_mov_b64 exec, {sr(m,2)}")
            e(f"buffer_load_dwordx2 {vr(RA+4*i,2)}, v{aAr+i}, {sr(sWS,4)}, s{s_o+i} offen{RN}")
            e(f"s_mov_b64 exec, {sr(m+4,2)}")
            e(f"buffer_load_dwordx2 {vr(RA+4*i+2,2)}, v{aAr+i}, {sr(sWS,4)}, s{s_o+i} offen offset:64{RN}")
        e("s_mov_b64 exec, -1")
        for i in range(4):
            m = sMASK + 8 * i
            e(f"v_cmp_lt_i32 {sr(m+2,2)}, 1, v{HADR+i}\nv_cmp_lt_i32 {sr(m+6,2)}, 17, v{HADR+i}")
        e.vm = []
    def sdwa(d, sh, k):
        return f"v_lshlrev_b32_sdwa v{d}, {sh}, v{RD+(k>>1)} dst_sel:DWORD dst_unused:UNUSED_PAD src0_sel:DWORD src1_sel:BYTE_{k&1}"
    def loop_consts():
        e(f"""
        s_lshl_b32 s{s_stg}, s{s_w}, 12
        s_add_u32 s{s_stg}, s{s_stg}, {L_STG}
        v_lshlrev_b32 v{cRA}, 3, v1
        v_lshlrev_b32 v{cTA}, 3, v{o8}
        v_lshl_add_u32 v{HADR+8}, v{rho}, 7, s{s_stg}
        v_xor_b32 v{HADR+9}, v{hb}, v{f3}
        """)
        for s_ in range(4):
            if s_: e(f"v_xor_b32 v{cHS+s_}, {2*s_}, v{HADR+9}\nv_lshl_add_u32 v{cHS+s_}, v{cHS+s_}, 4, v{HADR+8}")
            else: e(f"v_lshl_add_u32 v{cHS}, v{HADR+9}, 4, v{HADR+8}")
        e(f"""
        s_lshl_b32 s{s_t0}, s{s_w}, 11
        s_add_u32 s{s_t0}, s{s_t0}, {L_MM}
        v_lshl_add_u32 v{cMW}, v{rho}, 6, s{s_t0}
        v_lshl_or_b32 v{cMW}, v{f3}, 3, v{cMW}
        v_mov_b32 v{vMA}, v{cMW}
        v_lshl_or_b32 v{HADR+8}, v{hb}, 2, v{r4}
        v_lshrrev_b32 v{HADR+9}, 1, v{HADR+8}
        v_xor_b32 v{HADR+9}, v{HADR+9}, v{slot}
        v_lshl_add_u32 v{HADR+8}, v{HADR+8}, 6, s{s_t0}
        v_lshl_add_u32 v{cM}, v{HADR+9}, 3, v{HADR+8}
        v_xor_b32 v{HADR+9}, 4, v{HADR+9}
        v_lshl_add_u32 v{cM+1}, v{HADR+9}, 3, v{HADR+8}
        v_add_u32 v{cM+1}, 0x200, v{cM+1}
        v_mul_u32_u24 v{cAW}, {ATS}, v{r4}
        v_lshl_add_u32 v{cAW}, v{slot}, 3, v{cAW}
        s_mov_b32 s{s_t0}, {L_WDA-L_ATAB}
        v_mad_i32_i24 v{cAW}, v{hb}, s{s_t0}, v{cAW}
        v_add_u32 v{cAW}, {L_ATAB}, v{cAW}
        v_mov_b32 v{vAWA}, v{cAW}
        v_mul_u32_u24 v{cF}, {ACS}, v{hb}
        v_lshl_add_u32 v{cF}, v{rho}, 3, v{cF}
        v_add_u32 v{cF}, {L_ACC}, v{cF}
        v_lshl_or_b32 v{cP}, v{r4}, 1, v{hb}
        v_lshlrev_b32 v{cP}, 5, v{cP}
        v_add_u32 v{cP}, {L_PACC}, v{cP}
        v_lshlrev_b32 v{wx0}, 16, v{wx0}
        v_lshlrev_b32 v{wx1}, 16, v{wx1}
        s_mov_b32 s{sLO}, -1
        v_mov_b32 v{SCR+19}, 0x1000000
        s_mov_b32 s{sLO+1}, 0
        s_mov_b32 s{sQ}, 0x11111111
        s_mov_b32 s{sQ+1}, 0x11111111
        s_mov_b32 s{sC}, {NLOG2E}
        s_mov_b32 s{sC+1}, {NLOG2E}
        """)
        if fold: e(f"v_mul_f32 v{wx0}, {NLN2}, v{wx0}\nv_mul_f32 v{wx1}, {NLN2}, v{wx1}")
        for r in list(range(OH1A, OH1A + 8)) + list(range(OH2, OH2 + 8)): e(f"v_mov_b32 v{r}, 0")

    cpos = opt.get('cpos', 2)
    offs_pre()
    if cpos == 0: loop_consts(); rec_pre()
    stamp('side')
    e(f"s_waitcnt vmcnt({nrow}) lgkmcnt(0)\ns_barrier")
    e.ds = []; e.vm = []
    stamp('Bd2')
    e(f"""
    s_cmp_eq_u32 s{s_w}, 3
    s_cselect_b64 exec, 1, 0
    buffer_store_dwordx2 {vr(TK,2)}, v{ZQ}, {sr(sWS,4)}, s14 offen{SC}
    s_mov_b64 exec, -1
    ds_read_b128 {vr(ID,4)}, v{ID} offset:{L_OHT}
    ds_read_b128 {vr(ID+4,4)}, v{ID+4} offset:{L_OHT}
    """)
    RS = SCR; aA = SCR + 16; aPO = SCR + 17; aPA = SCR + 18; oP = SCR + 19; aW = SCR + 20; aR = SCR + 22
    def epi_consts():
        t0_, t1_, t2_, rho, hb, f3, c4 = range(TMP, TMP + 7)
        e(f"""
        v_and_b32 v{rho}, 31, v1
        v_lshrrev_b32 v{hb}, 5, v1
        v_bfe_u32 v{f3}, v1, 1, 3
        v_and_b32 v{c4}, 3, v1
        s_lshl_b32 s{s_t0}, s{s_rb}, 5
        v_add_u32 v{t0_}, s{s_t0}, v{rho}
        v_mul_u32_u24 v{aA}, {ACS}, v{t0_}
        v_lshl_add_u32 v{aA}, v{hb}, 6, v{aA}
        v_add_u32 v{aA}, {L_ACC}, v{aA}
        v_lshlrev_b32 v{aPO}, 2, v0
        v_lshlrev_b32 v{aPA}, 3, v0
        v_add_u32 v{aPA}, {L_PACC}, v{aPA}
        v_lshrrev_b32 v{oP}, 2, v0
        v_cmp_gt_u32 vcc, {NPB}, v{oP}
        v_cmp_gt_u32 {sr(s_o,2)}, 3, v{c4}
        v_add_u32 v{oP}, s{s_nb0}, v{oP}
        v_mul_u32_u24 v{oP}, 6, v{oP}
        v_lshl_add_u32 v{oP}, v{c4}, 1, v{oP}
        s_and_b64 vcc, {sr(s_o,2)}, vcc
        v_mov_b32 v{t2_}, 0x1000000
        v_and_b32 v{t0_}, 3, v{f3}
        v_cndmask_b32 v{oP}, v{t2_}, v{oP}, vcc
        v_lshlrev_b32 v{t1_}, 1, v{hb}
        v_xor_b32 v{t1_}, v{t1_}, v{t0_}
        v_lshl_add_u32 v{aW}, v{rho}, 6, s{s_stg}
        v_lshl_add_u32 v{aW}, v{t1_}, 4, v{aW}
        v_xor_b32 v{aW+1}, 16, v{aW}
        v_lshl_add_u32 v{aR}, v1, 4, s{s_stg}
        """)
        for r in range(8):
            e(f"v_lshlrev_b32 v{RS+2*r}, 16, v{HR+r}\nv_and_b32 v{RS+2*r+1}, 0xffff0000, v{HR+r}")
        if dhs:
            for i in range(0, 16, 2): e(f"v_pk_mul_f32 {vr(DH+i,2)}, {vr(DH+i,2)}, {sr(sC,2)}")
            e(f"s_mov_b32 s{sC}, {NLN2}\ns_mov_b32 s{sC+1}, {NLN2}")

    epos = opt.get('epos', 1)
    nz = opt.get('nz', 8)
    Z = [f"ds_write_b128 v{T0+3}, {vr(ZQ,4)} offset:{8192*r}" for r in range(7)]
    Z.append(f"s_mov_b64 exec, vcc\nds_write_b128 v{T0+3}, {vr(ZQ,4)} offset:{8192*7}\ns_mov_b64 exec, -1")
    for z in Z[:nz]: e(z)
    early = opt.get('early', 0)
    if early == 1: offs_loads()
    if cpos == 2: loop_consts()
    if early == 2: offs_loads()
    if epos == 2: epi_consts()
    if cpos == 2: rec_pre()
    if opt.get('isl'): e(f"s_sleep {opt.get('isl')}")
    if not early:
        if opt.get('zw', 1): e("s_waitcnt lgkmcnt(0)")
        offs_loads()
    for z in Z[nz:]: e(z)
    if cpos == 1: loop_consts(); rec_pre()
    e(f"s_mov_b32 s{s_t0}, 0\nK_poll:\ns_waitcnt vmcnt(0)")
    if opt.get('pst'): e(f"s_memrealtime s[0:1]\ns_min_u32 s2, s{s_t0}, 20\ns_add_u32 m0, s2, 32\ns_waitcnt lgkmcnt(0)\nv_writelane_b32 v{vST}, s0, m0\nv_writelane_b32 v{vST}, s{s_t0}, 24")
    for i in range(4):
        e(f"v_xor_b32 v{HADR+2*i}, s61, v{OFFV+2*i}\nv_xor_b32 v{HADR+2*i+1}, s60, v{OFFV+2*i+1}")
    for i in range(4): e(f"v_lshrrev_b32 v{HADR+2*i}, 24, v{HADR+2*i}")
    for i in range(4): e(f"v_or_b32 v{HADR+2*i}, v{HADR+2*i}, v{HADR+2*i+1}")
    for i in range(4): e(f"v_cmp_ne_u32 {sr(4+2*i,2)}, 0, v{HADR+2*i}")
    e(f"""
    s_add_u32 s{s_t0}, s{s_t0}, 1
    s_or_b64 {sr(12,2)}, {sr(4,2)}, {sr(6,2)}
    s_or_b64 {sr(14,2)}, {sr(8,2)}, {sr(10,2)}
    s_cmp_gt_u32 s{s_t0}, 0x40000
    s_cbranch_scc1 K_pollx
    s_or_b64 {sr(12,2)}, {sr(12,2)}, {sr(14,2)}
    s_cbranch_scc1 K_repoll
    K_pollx:
    """)
    stamp('Be'); rt(26)
    rec_loads(False)
    if epos == 0: epi_consts()
    e.ds = []
    slots = [(i, ld, u) for i in range(4) for ld in range(2) for u in range(2)]
    def sreg(k): i, ld, u = slots[k]; return RECV + 8 * i + 4 * ld + 2 * u
    def smask(k): i, ld, u = slots[k]; return sMASK + 8 * i + 4 * ld + 2 * u
    e(f"K_hist:\nv_mov_b32 v{tA}, 1")
    for i in range(4):
        e(f"s_waitcnt vmcnt({14-2*i})")
        if i == 0: stamp('rec')
        for k in range(4 * i, 4 * i + 4): e(sdwa(HADR + k, 2, k))
        for k in range(4 * i, 4 * i + 4):
            e(f"s_mov_b64 exec, {sr(smask(k),2)}\nds_add_rtn_u32 v{RANK+k}, v{HADR+k}, v{tA} offset:{L_HIST}")
        e("s_mov_b64 exec, -1")
    FLV = PS; aFL = T0
    e(f"""
    v_and_b32 v{aFL}, 31, v1
    v_lshlrev_b32 v{aFL}, 7, v{aFL}
    s_lshl_b32 s62, s{s_w}, 12
    s_add_u32 s62, s62, {WS_FLG}
    buffer_load_dwordx2 {vr(FLV,2)}, v{aFL}, {sr(sWS,4)}, s62 offen{SC}
    s_waitcnt lgkmcnt(0)
    s_barrier
    """)
    stamp('B1')
    e(f"""
    ds_read_b64 v[{OFFV+8}:{OFFV+9}], v{cRA} offset:{L_HIST}
    s_add_u32 s{s_t0}, s{s_done}, s{s_take}
    v_cmp_lt_u32 vcc, s{s_t0}, v{vMX}
    s_waitcnt lgkmcnt(0)
    v_add_u32 v{tA}, v{OFFV+8}, v{OFFV+9}
    v_mov_b32 v{tB}, v{tA}
    """)
    wave_scan(e, tB)
    e(f"""
    v_sub_u32 v{OFFV+10}, v{tB}, v{tA}
    v_readlane_b32 s{s_T}, v{tB}, 63
    v_add_u32 v{OFFV+11}, v{OFFV+10}, v{OFFV+8}
    ds_write_b64 v{cRA}, v[{OFFV+10}:{OFFV+11}] offset:{L_BASE}
    s_cmp_gt_u32 s{s_T}, {CAP}
    s_cbranch_scc1 K_retry
    """)
    for k in range(16):
        e(f"s_mov_b64 exec, {sr(smask(k),2)}\nds_read_b32 v{HADR+k}, v{HADR+k} offset:{L_BASE}")
    e(f"""
    s_mov_b64 exec, -1
    s_cbranch_vccnz K_setflag
    K_flagset:
    s_add_u32 s{s_t1}, s{s_T}, 31
    s_lshr_b32 s{s_t1}, s{s_t1}, 5
    s_lshr_b32 s{s_t0}, s{s_t1}, 3
    s_and_b32 s{s_t1}, s{s_t1}, 7
    s_mul_i32 s{s_p}, s{s_w}, s{s_t0}
    s_min_u32 s{s_t2}, s{s_w}, s{s_t1}
    s_add_u32 s{s_p}, s{s_p}, s{s_t2}
    s_add_u32 s{s_end}, s{s_p}, s{s_t0}
    s_cmp_lt_u32 s{s_w}, s{s_t1}
    s_addc_u32 s{s_end}, s{s_end}, 0
    s_lshl_b32 s{s_p}, s{s_p}, 5
    s_lshl_b32 s{s_end}, s{s_end}, 5
    s_min_u32 s{s_end}, s{s_end}, s{s_T}
    s_lshl_b32 s{s_t0}, s{s_T}, 3
    v_add_u32 v{tA}, s{s_t0}, v{cRA}
    s_mov_b32 s63, 0
    K_flg:
    s_waitcnt vmcnt(0)
    v_cmp_ne_u32 vcc, s60, v{FLV}
    v_cmp_ne_u32 {sr(0,2)}, s61, v{FLV+1}
    s_lshr_b32 s{s_t0}, s{s_c}, 3
    s_lshl_b32 s{s_t1}, s{s_w}, 5
    s_or_b64 vcc, vcc, {sr(0,2)}
    s_cbranch_scc1 K_reflg
    K_flgok:
    s_add_u32 s{s_t0}, s{s_t0}, s{s_t1}
    s_and_b32 s{s_t1}, s{s_t0}, 7
    s_lshl_b32 s{s_t1}, s{s_t1}, 5
    s_lshr_b32 s{s_t0}, s{s_t0}, 3
    s_add_u32 s{s_t0}, s{s_t0}, s{s_t1}
    s_mul_i32 s{s_t0}, s{s_t0}, {NPB}
    """)
    if opt.get('pfp'):
        e(f"v_lshl_add_u32 v{PS}, v1, 3, s{s_t0}\ns_mov_b64 exec, 0x1fff\nbuffer_load_dword v{PS}, v{PS}, {sr(sPF,4)}, 0 idxen{SC}\ns_mov_b64 exec, -1")
    if opt.get('pfb'):
        e(f"v_add_u32 v{PS+1}, s{s_t0}, v1\ns_bfm_b64 exec, {opt.get('pfb')}, 0\nbuffer_load_dword v{PS+1}, v{PS+1}, {sr(sH,4)}, 0 idxen{SC}\ns_mov_b64 exec, -1")
    for q in range(4):
        e("s_waitcnt lgkmcnt(12)")
        for k in range(4 * q, 4 * q + 4): e(f"v_add_lshl_u32 v{HADR+k}, v{HADR+k}, v{RANK+k}, 3")
        for k in range(4 * q, 4 * q + 4): e(sdwa(RANK + k, 4, k))
        for k in range(4 * q, 4 * q + 4):
            e(f"s_mov_b64 exec, {sr(smask(k),2)}\nds_write2_b32 v{HADR+k}, v{RA+k}, v{RANK+k} offset0:0 offset1:1")
        e("s_mov_b64 exec, -1")
    e(f"""
    s_cmp_lg_u32 s{s_w}, 7
    s_cbranch_scc1 K_nopad
    ds_write_b64 v{tA}, v[{ZQ}:{ZQ+1}] offset:{L_REC}
    K_nopad:
    s_lshl_b32 s{s_p8}, s{s_p}, 3
    s_mov_b32 s{s_lim}, 0
    s_mov_b32 s{s_nbCur}, 0
    v_add_u32 v{vRA}, s{s_p8}, v{cRA}
    v_add_u32 v{vTA}, s{s_p8}, v{cTA}
    """)
    for r in range(8): e(f"v_mov_b32 v{MR+r}, 0")
    e("s_waitcnt lgkmcnt(0)\ns_barrier")
    e.ds = []; e.vm = []
    spin(3)
    stamp('B2')
    e(f"s_cmp_ge_u32 s{s_p}, s{s_end}\ns_cbranch_scc1 {'K_skip' if epos == 1 else 'K_wavedone'}")

    tail = []
    D = lambda tag, t: (lambda: e.d(tag, t))
    V = lambda tag, t: (lambda: e.v(tag, t))
    def rec_read():
        return [D('rw', f"ds_read_b64 v[{RW}:{RW+1}], v{vRA} offset:{L_REC}"), D('rw', f"ds_read_u16 v{vPI}, v{vRA} offset:{L_REC}")]
    def window_pre():
        return [f"s_sub_u32 s{s_rem}, s{s_end}, s{s_p}", f"s_min_u32 s{s_need}, s{s_rem}, 64", f"s_bfm_b64 {sr(sMV,2)}, s{s_rem}, 0",
                f"s_cmp_ge_u32 s{s_rem}, 64", f"s_cselect_b64 {sr(sMV,2)}, -1, {sr(sMV,2)}", f"s_mov_b32 s{s_flN}, 0"]
    def window():
        l = e.lab("K_win")
        tail.append(f"""
        {l}a:
        v_readfirstlane_b32 s{s_nbN}, v{RW+1}
        s_mov_b32 s{s_flN}, 1
        s_add_u32 s{s_lim}, s{s_nbN}, 128
        v_cmp_gt_u32 vcc, s{s_lim}, v{RW+1}
        s_nop 0
        s_and_b64 {sr(sMK,2)}, vcc, {sr(sMV,2)}
        s_bcnt1_i32_b64 s{s_cntN}, {sr(sMK,2)}
        s_branch {l}b
        """)
        return [lambda: (e.wds('rw'), e(f"v_cmp_gt_u32 vcc, s{s_lim}, v{RW+1}")),
                V('ps', f"buffer_load_dwordx3 {vr(PS,3)}, v{vPI}, {sr(sPF,4)}, 0 idxen{SC}"),
                D('pd', f"ds_read_b128 {vr(PD,4)}, v{RW+1} offset:{L_POSD}"),
                f"s_and_b64 {sr(sMK,2)}, vcc, {sr(sMV,2)}",
                f"s_bcnt1_i32_b64 s{s_cntN}, {sr(sMK,2)}",
                f"s_cmp_lg_u32 s{s_cntN}, s{s_need}",
                f"s_cbranch_scc1 {l}a\n{l}b:",
                f"s_add_u32 s{s_pn}, s{s_p}, s{s_cntN}" + (f"\ns_and_b32 s0, s{s_dbg}, 7\ns_cselect_b32 s{s_pn}, s{s_p}, s{s_pn}" if opt.get('x_rep') else "")]
    def idx_read(off): return [D('idx', f"ds_read_u16 v{IDX+2*j}, v{vTA} offset:{L_REC+off+64*j}") for j in range(4)]
    def hs_read(): return [D('hs', f"ds_read_b128 {vr(HS+4*s_,4)}, v{cHS+s_}") for s_ in range(4)]
    def oh2_read(): return [D('oh2', f"ds_read_b64_tr_b16 {vr(OH2+4*s_+2*t,2)}, v{cM+t} offset:{1024*s_}") for s_ in range(2) for t in range(2)]
    def aw_read():
        return [f"s_mul_i32 s{s_t0}, s{s_nbN}, {ATS//16}",
                f"s_mov_b64 exec, {sr(sLO,2)}\nv_add_u32 v{vAWA}, s{s_t0}, v{cAW}\ns_mov_b64 exec, -1"] + \
               [D('aw', f"ds_read_b64_tr_b16 {vr(AW+4*blk+2*t,2)}, v{vAWA} offset:{4*ATS*t+64*blk}") for blk in range(2) for t in range(2)]
    def aw_cond():
        t = f"K_aw:\ns_mul_i32 s{s_t0}, s{s_nbN}, {ATS//16}\ns_mov_b64 exec, {sr(sLO,2)}\nv_add_u32 v{vAWA}, s{s_t0}, v{cAW}\ns_mov_b64 exec, -1\n"
        t += "\n".join(f"ds_read_b64_tr_b16 {vr(AW+4*blk+2*t_,2)}, v{vAWA} offset:{4*ATS*t_+64*blk}" for blk in range(2) for t_ in range(2))
        tail.append(t + "\ns_branch K_awb")
        return [f"s_cmp_lg_u32 s{s_flN}, 0", "s_cbranch_scc1 K_aw\nK_awb:"]
    def m_b():
        return [D('mc', f"ds_write_b64 v{vMA}, v[{ZQ}:{ZQ+1}]"),
                f"s_mov_b32 exec_lo, 0\ns_mov_b32 exec_hi, s{s_mkB}\nds_write_b64 v{vMA}, v[{WP}:{WP+1}]\ns_mov_b64 exec, -1"]
    def misc():
        t0, t1, t2, t3 = T0, T0 + 1, T0 + 2, T0 + 3
        t4 = PD + 3
        L = [D('mc', f"ds_write_b64 v{vMA}, v[{ZQ}:{ZQ+1}]"),
             f"""v_subrev_u32 v{t0}, s{s_nbN}, v{RW+1}
             v_sub_f32 v{t1}, v{PD}, v{PS}
             v_sub_f32 v{t2}, v{PD+1}, v{PS+1}
             v_sub_f32 v{t3}, v{PD+2}, v{PS+2}
             v_min_u32 v{OH1A}, 0x80, v{t0}
             v_mul_f32 v{t4}, v{t1}, v{t1}
             v_lshrrev_b32 v{t0}, 1, v{OH1A}
             v_fmac_f32 v{t4}, v{t2}, v{t2}
             v_cvt_pk_bf16_f32 v{WP}, 1.0, v{t1}
             v_fmac_f32 v{t4}, v{t3}, v{t3}
             v_cvt_pk_bf16_f32 v{WP+1}, v{t2}, v{t3}
             v_cvt_pk_bf16_f32 v{OH1B}, v{t4}, v{RW}
             v_xor_b32 v{vMA}, v{t0}, v{cMW}""",
             f"s_mov_b32 s{s_mkB}, s{sMK+1}",
             f"s_and_b64 exec, {sr(sMK,2)}, {sr(sLO,2)}\nds_write_b64 v{vMA}, v[{WP}:{WP+1}]\ns_mov_b64 exec, -1",
             f"v_permlane32_swap_b32 v{OH1A}, v{OH1B}" + (f"\nv_mov_b32 v{OH1A+1}, v{OH1A}\nv_mov_b32 v{OH1B+1}, v{OH1B}" if fold and opt.get('lo', 1) else ""),
             lambda: (e(f"s_mov_b64 exec, {sr(sLO,2)}"), e.d('oh1', f"ds_read_b128 {vr(OH1A,4)}, v{OH1A} offset:{L_OHT}"),
                      e.d('oh1', f"ds_read_b128 {vr(OH1B,4)}, v{OH1B} offset:{L_OHT}"), e("s_mov_b64 exec, -1"))]
        return L
    def dma():
        L = []
        for j in range(4):
            L.append(f"s_add_u32 m0, s{s_stg}, {1024*j}" if j else f"s_mov_b32 m0, s{s_stg}")
            L.append(V('dma', f"buffer_load_dwordx4 {vr(IDX+2*j,2)}, {sr(sH,4)}, 0 idxen offen{SC} lds"))
        return L
    def run(L, gap=False):
        for x in L:
            if callable(x): x()
            else:
                e(x)
                if gap and 'm0' in x: e("s_nop 0")
    def flush(snb):
        e(f"s_mul_i32 s{s_t0}, s{snb}, {ACS//16}\nv_lshl_add_u32 v{T0+1}, s{snb}, 1, v{cP}\nv_add_u32 v{T0}, s{s_t0}, v{cF}")
        if fold and not dhs:
            for j in range(4): e(f"v_mul_f32 v{ACC0+4*j}, {NLN2}, v{ACC0+4*j}\nv_mul_f32 v{ACC1+4*j}, {NLN2}, v{ACC1+4*j}")
        for j in range(4):
            e(f"v_cvt_f64_f32 {vr(TMP+4*j,2)}, v{ACC0+4*j}\nv_cvt_f64_f32 {vr(TMP+4*j+2,2)}, v{ACC1+4*j}")
        for j in range(4):
            e(f"ds_add_f64 v{T0}, {vr(TMP+4*j,2)} offset:{2*ACS*j}\nds_add_f64 v{T0}, {vr(TMP+4*j+2,2)} offset:{2*ACS*j+256}")
        R = [4 * j + 1 + c for j in range(4) for c in range(3)]
        for r in R: e(f"v_mul_f32 v{ACC0+r}, v{ACC0+r}, v{wx0}")
        for r in R: e(f"v_fmac_f32 v{ACC0+r}, v{ACC1+r}, v{wx1}")
        e(mfma(ACC1, ZQ, ZQ))
        lo = [ACC0 + 4 * j + 1 + c for j in range(2) for c in range(3)]
        for r in lo: e(f"v_add_f32_dpp v{r}, v{r}, v{r} row_ror:8 row_mask:0xf bank_mask:0x3")
        for r in lo: e(f"v_add_f32_dpp v{r}, v{r+8}, v{r+8} row_ror:8 row_mask:0xf bank_mask:0xc")
        lo = [ACC0 + 1 + c for c in range(3)]
        for r in lo: e(f"v_add_f32_dpp v{r}, v{r}, v{r} row_half_mirror row_mask:0xf bank_mask:0x5")
        for r in lo: e(f"v_add_f32_dpp v{r}, v{r+4}, v{r+4} row_half_mirror row_mask:0xf bank_mask:0xa")
        for r in lo: e(f"v_add_f32_dpp v{r}, v{r}, v{r} quad_perm:[1,0,3,2] row_mask:0xf bank_mask:0xf")
        for r in lo: e(f"v_add_f32_dpp v{r}, v{r}, v{r} quad_perm:[2,3,0,1] row_mask:0xf bank_mask:0xf")
        for c in range(3): e(f"v_cvt_f64_f32 {vr(TMP+2*c,2)}, v{ACC0+1+c}")
        e(mfma(ACC0, ZQ, ZQ))
        e(f"s_mov_b64 exec, {sr(sQ,2)}")
        for c in range(3): e(f"ds_add_f64 v{T0+1}, {vr(TMP+2*c,2)} offset:{8*c}")
        e("s_mov_b64 exec, -1")
    def gemm1(q, blk, oh1):
        return [mfma(q, oh1, AW + 4 * blk, None)] + [mfma(q, HS + 8 * blk + 4 * s_, ID + 4 * s_, q) for s_ in range(2)]
    def seg(acc): return [mfma(acc, OH2 + 4 * s_, MR + 4 * s_, acc) for s_ in range(2)]
    def phase(P, G, S, pre, side):
        head = []
        if not fold:
            head = [f"v_pk_mul_f32 {vr(TMP+i,2)}, {vr(P+i,2)}, {sr(sC,2)}" for i in range(0, 16, 2)]
            ex = [f"v_exp_f32 v{TMP+i}, v{TMP+i}" for i in range(16)]
        else:
            ex = [f"v_exp_f32 v{TMP+i}, v{P+i}" for i in range(16)]
        base = []
        for m, x in enumerate([G[0], S[0], S[1]]): base += [x] + ex[4 * m:4 * m + 4]
        base += ex[12:]
        base += [f"v_pk_add_f32 {vr(TMP+i,2)}, {vr(TMP+i,2)}, 1.0 op_sel_hi:[1,0]" for i in range(0, 16, 2)]
        rc = [f"v_rcp_f32 v{TMP+i}, v{TMP+i}" for i in range(16)]
        for m, x in enumerate(G[1:3]): base += [x] + rc[4 * m:4 * m + 4]
        base += rc[8:]
        base += [f"v_pk_mul_f32 {vr(TMP+i,2)}, {vr(P+i,2)}, {vr(TMP+i,2)}" for i in range(0, 16, 2)]
        base += [f"v_cvt_pk_bf16_f32 v{MR+i//2}, v{TMP+i}, v{TMP+i+1}" for i in range(0, 16, 2)]
        assert len(base) == 61
        for x in head: e(x)
        q = [(st, it) for st, L in side for it in L]
        for i, x in enumerate(base):
            if i in pre: run(pre[i])
            e(x)
            if ('v_exp' in x or 'v_rcp' in x) and q and q[0][0] <= i:
                run([q.pop(0)[1]])
        assert not q, q

    if opt.get('x_rep'): e(f"s_mov_b32 s{s_dbg}, 0")
    run(rec_read()); run(idx_read(0)); run(window_pre())
    e.wds('idx')
    e.ds = ['rw']
    W = window()
    run(W[:3])
    run(dma(), True)
    run(W[3:])
    e(f"s_mov_b32 s{s_flN}, 0")
    run(aw_read())
    run(idx_read(256))
    if epos == 1:
        e(f"s_cmp_lg_u32 s{s_done}, 0\ns_cbranch_scc1 K_noepi")
        epi_consts()
        e("K_noepi:")
    e.wvm('ps'); e.wds('pd')
    M = misc()
    run(M[:2])
    e.wvm0()
    run(hs_read())
    run(M[2:])
    e.wds('hs')
    G = [mfma(PRE0, HS, ID, None), mfma(PRE0, HS + 4, ID + 4, PRE0), mfma(PRE0, OH1A, AW, PRE0)]
    dm = dma()
    for k in range(4):
        e(dm[2 * k])
        if k == 2: e.wds0()
        e(G[k] if k < 3 else "s_nop 0"); dm[2 * k + 1]()
    if opt.get('prio', 3): e("s_setprio 3")
    e("s_nop 7\ns_nop 3")
    stamp('wprol')
    if opt.get('stamp'): e(f"s_mov_b32 s{s_dbg}, 0")
    e(".p2align 4\nK_loop:")
    loop_start = len(e.L)
    e.ds = []; e.vm = ['dma'] * 4
    if opt.get('stamp'): e(f"s_add_u32 s{s_dbg}, s{s_dbg}, 1")
    if opt.get('itst'): e(f"s_memtime s[0:1]\ns_add_u32 m0, s{s_dbg}, 31\ns_waitcnt lgkmcnt(0)\nv_writelane_b32 v{vST}, s0, m0")
    top = [f"s_lshl_b32 s{s_p8}, s{s_pn}, 3",
           f"v_add_u32 v{vRA}, s{s_p8}, v{cRA}\nv_add_u32 v{vTA}, s{s_p8}, v{cTA}\ns_mov_b32 s{s_p}, s{s_pn}"] + rec_read()
    shift = [f"s_mov_b32 s{s_flush}, s{s_flN}", f"s_mov_b32 s{s_nbOld}, s{s_nbCur}", f"s_mov_b32 s{s_nbCur}, s{s_nbN}",
             f"s_mov_b32 s{s_cntCur}, s{s_cntN}"]
    pm = opt.get('prio', 1)
    def prio_check(tag, reg, th):
        e(f"s_cmp_le_u32 s{reg}, {th[0]}\ns_cbranch_scc1 K_prio{tag}\nK_priob{tag}:")
        tail.append(f"""
        K_prio{tag}:
        s_setprio 2
        s_cmp_le_u32 s{reg}, {th[1]}
        s_cbranch_scc0 K_priob{tag}
        s_setprio 1
        s_cmp_le_u32 s{reg}, {th[2]}
        s_cbranch_scc0 K_priob{tag}
        s_setprio 0
        s_branch K_priob{tag}
        """)
    wp = window_pre()
    phase(PRE0, gemm1(PRE1, 1, OH1A), seg(ACC1), {},
          [(1, top + shift), (11, oh2_read() + m_b() + wp[:2]), (28, wp[2:] + window())])
    if pm == 1: prio_check('a', s_rem, (128, 64, 0))
    if pm == 2:
        e(f"s_max_u32 s{s_t0}, s{s_cntCur}, 32\ns_add_u32 s{s_t0}, s{s_t0}, s{s_rem}")
        prio_check('a', s_t0, (96, 64, 32))
    if pm == 3:
        e(f"s_max_u32 s{s_t0}, s{s_cntCur}, 32\ns_add_u32 s{s_t0}, s{s_t0}, s{s_rem}")
        prio_check('a', s_t0, (160, 96, 32))
    e(f"s_cmp_lg_u32 s{s_flush}, 0\ns_cbranch_scc1 K_flush\nK_flushb:")
    hw = opt.get('hw', 11)
    phase(PRE1, gemm1(PRE0, 0, OH1B), seg(ACC0), {5: [lambda: e.wds('oh2')]},
          [(1, [lambda: e.wvm('dma')] + hs_read() + idx_read(0)[:3]), (hw, idx_read(0)[3:]), (hw + 2, [lambda: e.wds('idx')] + dma())])
    e(f"""
    s_cmp_gt_u32 s{s_cntCur}, 32
    s_cselect_b32 s{s_t0}, 1, s{s_cntN}
    s_cmp_eq_u32 s{s_t0}, 0
    s_cbranch_scc1 K_drain
    """)
    phase(PRE0, gemm1(PRE1, 1, OH1B), seg(ACC1), {},
          [(1, aw_cond() if opt.get('awc', 1) else aw_read()), (11, oh2_read() + [lambda: e.wvm('ps')] + misc()[:2]), (28, misc()[2:])])
    if pm == 2: prio_check('b', s_rem, (64, 32, 0))
    if pm == 3: prio_check('b', s_rem, (128, 64, 0))
    phase(PRE1, gemm1(PRE0, 0, OH1A), seg(ACC0), {0: [lambda: e.wds('oh1')]},
          [(1, [lambda: e.wvm('dma')] + hs_read() + idx_read(256)[:3]), (hw, idx_read(256)[3:]), (hw + 2, [lambda: e.wds('idx')] + dma())])
    e(f"s_cmp_lg_u32 s{s_cntN}, 0\ns_cbranch_scc1 K_loop")
    assert e.vm == ['dma'] * 4, e.vm
    def xf(l):
        if opt.get('x_novm') and ('buffer_load' in l or 'vmcnt' in l): return False
        if opt.get('x_nods') and ('_tr_' in l or 'ds_read_b128' in l or 'ds_write' in l): return False
        rm = {'hs': [f"ds_read_b128 v[{HS+4*i}:" for i in range(4)], 'oh2': [f"ds_read_b64_tr_b16 v[{OH2+2*i}:" for i in range(4)],
              'aw': [f"ds_read_b64_tr_b16 v[{AW+2*i}:" for i in range(4)], 'pd': [f"ds_read_b128 v[{PD}:"],
              'oh1': [f"ds_read_b128 v[{OH1A}:", f"ds_read_b128 v[{OH1B}:"], 'mw': ["ds_write_b64"], 'dma': [" lds"], 'ps': ["dwordx3"],
              'mf': ['v_mfma'], 'tr': ['v_exp', 'v_rcp'], 'idx': [f"ds_read_u16 v{IDX+2*j}," for j in range(4)], 'm0': [' m0,'],
              'vmw': ['vmcnt'], 'pk': ['v_pk_'], 'cvt': [f"v_cvt_pk_bf16_f32 v{MR+i}," for i in range(8)], 'perm': ['permlane'],
              'seg': [f"v_mfma_f32_32x32x16_bf16 v[{ACC0}:", f"v_mfma_f32_32x32x16_bf16 v[{ACC1}:"]}
        for k in str(opt.get('x_rm', '')).split('+'):
            if k in rm and any(t in l for t in rm[k]): return False
        return True
    e.L = e.L[:loop_start] + [l for l in e.L[loop_start:] if xf(l)]
    e("K_drain:\ns_nop 0")
    stamp('loop')
    if opt.get('stamp'): e(f"v_writelane_b32 v{vST}, s{s_dbg}, 28")
    for x in seg(ACC1): e(x)
    e(f"ds_write_b64 v{vMA}, v[{ZQ}:{ZQ+1}]")
    e("s_nop 7\ns_nop 3")
    flush(s_nbCur)
    e("K_wavedone:")
    e("s_setprio 0")
    e("s_waitcnt vmcnt(0) lgkmcnt(0)")
    stamp('drain')
    e("s_barrier")
    stamp('B3')
    dreg = lambda k: (PRE0 + 4 * k) if k < 8 else (ACC0 + 4 * (k - 8))
    aF = T0
    e(f"ds_read_b32 v{aF}, v{ZQ} offset:{L_FLAG}")
    for k in range(16): e(f"ds_read_b128 {vr(dreg(k),4)}, v{aA} offset:{128*(k>>2)+16*(k&3)}")
    e(f"ds_read_b64 {vr(PD,2)}, v{aPA}\nds_read_b32 v{PD+2}, v{aPO} offset:{L_POSD}")
    e(f"s_waitcnt lgkmcnt(14)\nv_readfirstlane_b32 s{s_t0}, v{aF}")
    for k in range(16):
        if k % 4 == 0 and k: e(f"s_waitcnt lgkmcnt({14-k})")
        r = dreg(k)
        e(f"v_cvt_f32_f64 v{r}, {vr(r,2)}\nv_cvt_f32_f64 v{r+1}, {vr(r+2,2)}")
        if k == 0: e(f"s_cmp_lg_u32 s{s_t0}, 0\ns_cbranch_scc1 K_more")
        if k: e(f"v_cvt_pk_bf16_f32 v{HS+k-1}, v{dreg(k-1)}, v{dreg(k-1)+1}")
        if k % 4 == 1 and k > 4: e(mfma(DH, WHM + 4 * (k // 4 - 1), HS + 4 * (k // 4 - 1), DH))
    e(f"v_cvt_pk_bf16_f32 v{HS+15}, v{dreg(15)}, v{dreg(15)+1}")
    e(f"s_waitcnt lgkmcnt(0)\nv_cvt_f32_f64 v{PD}, {vr(PD,2)}")
    e(mfma(DH, WHM + 12, HS + 12, DH))
    e(f"""
    v_add_f32 v{PD}, v{PD}, v{PD+2}
    v_cvt_pk_bf16_f32 v{PD}, v{PD}, v{PD}
    buffer_store_short v{PD}, v{oP}, {sr(sOP,4)}, 0 offen{OF}
    """)
    e("s_nop 7\ns_nop 1")
    X = TMP
    if not dhs:
        for i in range(0, 16, 2): e(f"v_pk_mul_f32 {vr(X+i,2)}, {vr(DH+i,2)}, {sr(sC,2)}")
    for i in range(16): e(f"v_exp_f32 v{X+i}, v{(DH if dhs else X)+i}")
    for i in range(0, 16, 2): e(f"v_pk_add_f32 {vr(X+i,2)}, {vr(X+i,2)}, 1.0 op_sel_hi:[1,0]")
    for i in range(16): e(f"v_rcp_f32 v{X+i}, v{X+i}")
    for hf in range(2):
        if dhs:
            for i in range(8 * hf, 8 * hf + 8, 2): e(f"v_pk_mul_f32 {vr(X+i,2)}, {vr(DH+i,2)}, {vr(X+i,2)}")
            for i in range(8 * hf, 8 * hf + 8, 2): e(f"v_pk_fma_f32 {vr(X+i,2)}, {vr(X+i,2)}, {sr(sC,2)}, {vr(RS+i,2)}")
        else:
            for i in range(8 * hf, 8 * hf + 8, 2): e(f"v_pk_fma_f32 {vr(X+i,2)}, {vr(DH+i,2)}, {vr(X+i,2)}, {vr(RS+i,2)}")
        for i in range(4 * hf, 4 * hf + 4): e(f"v_cvt_pk_bf16_f32 v{HS+i}, v{X+2*i}, v{X+2*i+1}")
        e(f"ds_write_b128 v{aW+hf}, {vr(HS+4*hf,4)}")
    e(f"ds_read_b128 {vr(HS+8,4)}, v{aR}\nds_read_b128 {vr(HS+12,4)}, v{aR} offset:1024")
    spin(2)
    stamp('epi'); rt(25)
    fin(s_b, s_w, 8, sWS, WS_STAMP, T0 + 1)
    e(f"""
    s_waitcnt lgkmcnt(1)
    buffer_store_dwordx4 {vr(HS+8,4)}, v{nd}, {sr(sOUT,4)}, 0 offen{OF}
    s_waitcnt lgkmcnt(0)
    buffer_store_dwordx4 {vr(HS+12,4)}, v{nd2}, {sr(sOUT,4)}, 0 offen offset:2048{OF}
    K_fin:
    """)
    if opt.get('x_pad') == 'fin': e("s_waitcnt vmcnt(0)"); stamp('fin')
    e("K_end:\ns_endpgm")
    e("K_flush:")
    flush(s_nbOld)
    e("s_branch K_flushb")
    for t in tail: e(t)
    e(f"""
    K_reflg:
    s_add_u32 s63, s63, 1
    s_cmp_gt_u32 s63, 0x40000
    s_cbranch_scc1 K_flgok
    s_sleep 4
    buffer_load_dwordx2 {vr(FLV,2)}, v{aFL}, {sr(sWS,4)}, s62 offen{SC}
    s_branch K_flg
    """)
    e("K_repoll:")
    if opt.get('sleep', 4): e(f"s_sleep {opt.get('sleep', 4)}")
    for i in range(4):
        e(f"s_mov_b64 exec, {sr(4+2*i,2)}\nbuffer_load_dwordx2 {vr(OFFV+2*i,2)}, v{tA}, {sr(sWS,4)}, s{16+i} offen{SC}")
    e("s_mov_b64 exec, -1\ns_branch K_poll")
    e(f"K_setflag:\nv_mov_b32 v{tA}, 1\nv_mov_b32 v{tB}, {L_FLAG}\nds_write_b32 v{tB}, v{tA}\ns_waitcnt lgkmcnt(0)\ns_branch K_flagset")
    def zero_hist():
        e(f"""
        v_cmp_gt_u32 vcc, 65, v0
        v_lshlrev_b32 v{tA}, 4, v0
        s_nop 0
        s_mov_b64 exec, vcc
        ds_write_b128 v{tA}, {vr(ZQ,4)} offset:{L_HIST}
        s_mov_b64 exec, -1
        s_waitcnt lgkmcnt(0)
        s_barrier
        """)
    if epos == 1:
        e(f"K_skip:\ns_cmp_lg_u32 s{s_done}, 0\ns_cbranch_scc1 K_wavedone")
        epi_consts()
        e("s_branch K_wavedone")
    e("K_retry:\ns_waitcnt lgkmcnt(0)\ns_barrier")
    zero_hist()
    e(f"s_mov_b32 s{s_take}, 8\ns_mov_b32 s{sMV}, 0x0f0f0f0f\ns_mov_b32 s{sMV+1}, 0x0f0f0f0f")
    for i in range(4):
        e(f"s_mov_b64 {sr(sMASK+8*i+4,2)}, 0\ns_mov_b64 {sr(sMASK+8*i+6,2)}, 0")
        e(f"s_and_b64 {sr(sMASK+8*i,2)}, {sr(sMASK+8*i,2)}, {sr(sMV,2)}\ns_and_b64 {sr(sMASK+8*i+2,2)}, {sr(sMASK+8*i+2,2)}, {sr(sMV,2)}")
    e("s_branch K_hist")
    e("K_more:\ns_waitcnt lgkmcnt(0)\ns_barrier")
    zero_hist()
    e(mfma(ACC0, ZQ, ZQ)); e(mfma(ACC1, ZQ, ZQ))
    for r in range(16): e(f"v_mov_b32 v{OH1A+r}, 0")
    e(f"s_add_u32 s{s_done}, s{s_done}, s{s_take}\ns_mov_b32 s{s_take}, 32")
    e.vm = []
    offs_pre(); offs_loads(); rec_pre(); rec_loads(True)
    e("s_branch K_hist")
    s = HEADER + f"; @launch grid=({NW},1,1) block=(512,1,1) lds={LDS}\n"
    s += '.amdgcn_target "amdgcn-amd-amdhsa--gfx950"\n.text\n' + e.text()
    s += KD.format(name=nm, vgpr=256, acc=256, sgpr=102)
    return s

if __name__ == "__main__":
    opt = {}
    for a in sys.argv[2:]:
        k, _, v = a.partition("="); opt[k] = (int(v) if v.isdigit() else v) if v else 1
    open(sys.argv[1], "w").write(gen(opt))
    if opt.get('stamp'): print(",".join(opt['names']))
```

```python
import sys
from gen import Em, vr, sr, srd, wave_scan, KD, mk_stamp, mfma, HEADER, LOG2E, NLOG2E, LN2

N = 25000; E = 800000; NPB = 98; NW = 256; CH = 3128; NQ = CH // 4
RECB = 15744; DOFF = 12544
WS_REC = 0; WS_OFF = 0x620000; WS_POS = 0x6A0000; WS_TOK = 0x710000; WS_FLG = 0x720000; WS_B = 0x800000; WS_SZ = 0xC00000; WS_STAMP = 0x780000
CAP = 3584
L_REC = 0; L_H1 = 25088; L_B1 = 26112
L_POSD = 29184; L_OHT = 31232; L_HIST = 31392; L_BASE = 31904; L_FLAG = 32416; L_WDA = 32448
L_MM = 33664; L_ACC = 50048; L_PACC = 105488; L_ATAB = 108848; L_STG = 127360; LDS = 160128
L_W = L_ACC
ACS = 528; ATS = 144
ID = 2; SCR = 10; DH = 34; WHM = 50; HR = 66; ACC0 = 74; ACC1 = 90; PRE0 = 106; PRE1 = 122; TMP = 138; MR = 154
HS = 162; AW = 178; OH1A = 186; OH1B = 190; OH2 = 194; IDX = 202; ZQ = 210; RW = 214; PS = 216; vPI = 219
PD = 220; WP = 224; vMA = 226; vRA = 227; vTA = 228; cRA = 229; cTA = 230; cHS = 231; cM = 235; cMW = 237
vAWA = 238; cAW = 239; cF = 240; cP = 241; wx0 = 242; wx1 = 243; vMX = 244; T0 = 245; vST = 255
sDST = 28; sSRC = 32; sEA = 36; sWS = 40; sH = 44; sPF = 48; sOUT = 52; sOP = 56; sDBG = 60
sWE = 64; sWH = 68; sPOS = 72; sWX = 76; sM0 = 80; sM1 = 82; sMASK = 4
s_w = 3; s_b = 84; s_nb0 = 85; s_rb = 86; s_cb = 87; s_stg = 88; s_t0 = 89; s_t1 = 90; s_t2 = 91
sC = 92; sLO = 94; sQ = 96; s_done = 98; s_take = 99; s_T = 100; s_c = 101
s_p = 64; s_pn = 65; s_end = 66; s_p8 = 67; s_lim = 68; s_nbN = 69; s_nbCur = 70; s_nbOld = 71
s_flN = 72; s_flush = 73; s_cntN = 74; s_cntCur = 75; s_need = 76; s_mkB = 77; sMK = 78; sMV = 80; s_o = 36; s_dbg = 82; L_TOK = L_FLAG + 16; L_BST = L_STG + 16384

NLN2 = LN2 | 0x80000000
s_rem = 83

def gen(opt):
    opt.setdefault('pfp', 1); opt.setdefault('pfb', 12); opt.setdefault('cpf', 16)
    fold = opt.get('fold', 1)
    dhs = fold and opt.get('dhs', 0)
    ordr = opt.get('ord', 1)
    FL = {0: "", 1: " nt", 2: " sc1", 3: " sc1 nt", 4: " sc0 sc1 nt", 5: " sc0 sc1"}
    EN = FL[opt.get('en', 3)]; ON = FL[opt.get('on', 3)]; RN = FL[opt.get('rn', 2)]; SN = FL[opt.get('sn', 2)]; BN = FL[opt.get('bn', 2)]
    SC = " sc1"
    OF = {0: "", 1: " sc1", 2: " nt", 3: " sc0 sc1", 4: " sc1 nt", 5: " sc0 sc1 nt"}[opt.get("of", 5)]
    e = Em(); nm = "standalone__cheap_equivariant_egnn__graph_kernel"
    stamp, real, fin = mk_stamp(e, opt, vST)
    e(f".globl {nm}\n.p2align 8\n.type {nm},@function\n{nm}:")
    cpf = ""
    if opt.get('cpf', 0):
        n2 = opt.get('cpf')
        cpf = f"s_getpc_b64 s[26:27]\nv_lshlrev_b32 v{HS}, 7, v1\nv_add_u32 v{HS+1}, 0x2000, v{HS}\nglobal_load_dword v{HS+2}, v{HS}, s[26:27] offset:512\n"
        cpf += f"s_mov_b64 exec, {hex((1 << n2) - 1)}\nglobal_load_dword v{HS+3}, v{HS+1}, s[26:27] offset:512\ns_mov_b64 exec, -1"
    o8 = T0 + 4; t8 = T0 + 5
    rho = PD; hb = PD + 1; f3 = PD + 2; r4 = PD + 3; slot = WP; g1 = WP + 1; c4 = RW; tq = RW + 1
    e(f"""
    s_cmp_ge_u32 s2, {NW}
    s_cbranch_scc1 K_end
    {'s_memrealtime s[26:27]' if opt.get('x_pad') else ''}
    s_load_dwordx16 s[4:19], s[0:1], 0
    s_load_dwordx4 s[20:23], s[0:1], 64
    s_load_dwordx2 s[24:25], s[0:1], 80
    v_lshrrev_b32 v{T0}, 6, v0
    v_and_b32 v1, 63, v0
    v_readfirstlane_b32 s{s_w}, v{T0}
    s_mov_b32 s{s_c}, s2
    s_and_b32 s{s_b}, s2, 7
    s_lshl_b32 s{s_b}, s{s_b}, 5
    s_lshr_b32 s{s_t0}, s2, 3
    s_add_u32 s{s_b}, s{s_b}, s{s_t0}
    s_mul_i32 s{s_nb0}, s{s_b}, {NPB}
    s_lshr_b32 s{s_rb}, s{s_w}, 1
    s_and_b32 s{s_cb}, s{s_w}, 1
    s_mul_i32 s{s_t0}, s2, {NQ}
    v_add_u32 v{T0}, s{s_t0}, v0
    v_add_u32 v{T0+1}, 0x200, v{T0}
    s_mov_b32 s{s_t1}, {E//4}
    v_cmp_gt_u32 {sr(sM0,2)}, s{s_t1}, v{T0}
    v_cmp_gt_u32 {sr(sM1,2)}, s{s_t1}, v{T0+1}
    v_cmp_gt_u32 vcc, {NQ-512}, v0
    v_lshlrev_b32 v{ID+2}, 3, v{T0}
    v_lshlrev_b32 v{ID+3}, 3, v{T0+1}
    v_lshlrev_b32 v{ID}, 4, v{T0}
    v_lshlrev_b32 v{ID+1}, 4, v{T0+1}
    s_and_b64 {sr(sM1,2)}, {sr(sM1,2)}, vcc
    v_lshrrev_b32 v{o8}, 3, v1
    v_and_b32 v{t8}, 7, v1
    v_mov_b32 v{ZQ}, 0
    v_mov_b32 v{ZQ+1}, 0
    v_mov_b32 v{ZQ+2}, 0
    v_mov_b32 v{ZQ+3}, 0
    v_lshlrev_b32 v{tq}, 4, v0
    s_cmp_lg_u32 s{s_w}, 7
    s_cbranch_scc1 K_nh1
    ds_write_b128 v{tq}, {vr(ZQ,4)} offset:{L_H1-7*1024}
    {cpf}
    K_nh1:
    s_waitcnt lgkmcnt(0)
    s_barrier
    """)
    def spin(tag):
        if opt.get('x_spin') == tag:
            e(f"""
            s_memtime s[0:1]
            s_waitcnt lgkmcnt(0)
            s_add_u32 s2, s0, 20000
            KX_spin:
            s_memtime s[0:1]
            s_waitcnt lgkmcnt(0)
            s_sub_u32 s0, s0, s2
            s_cmp_lt_i32 s0, 0
            s_cbranch_scc1 KX_spin
            """)
    stamp0 = stamp
    def stamp(name):
        stamp0(name)
        if opt.get('x_pad') == name:
            e(f"""
            KX_pad:
            s_memrealtime s[0:1]
            s_waitcnt lgkmcnt(0)
            s_sub_u32 s0, s0, s2
            s_cmp_lt_u32 s0, 5000
            s_cbranch_scc1 KX_pad
            """)
    if opt.get('x_pad'): e("s_mov_b32 s2, s26")
    spin(1)
    real(); stamp('start')
    def rt(lane):
        if opt.get('stamp'): e(f"s_memrealtime s[0:1]\ns_waitcnt lgkmcnt(0)\nv_writelane_b32 v{vST}, s0, {lane}")


    D0, S0, E0, D1, S1, E1 = 106, 110, 114, 116, 120, 124
    REC1 = 126; HA = 142; RK = 150; SCN = 158; PO = OH2; TK = OH1A; RWV = SCR + 16
    vRO = 251; vBG = 252; vBW = 253; nd = vBG; nd2 = 254
    sHR = sH; sBS = sPOS
    HA4 = AW; vONE = PS + 1; vL16 = PS + 2
    aE = ID
    HO = [HR, HR + 4, ACC1, ACC1 + 4]
    def rd(tag, dst, off):
        for s_ in range(4):
            for t in range(2): e.d(tag, f"ds_read_b64_tr_b16 {vr(dst+4*s_+2*t,2)}, v{T0+1+(s_>>1)} offset:{off+1024*(s_&1)+512*t}")
    def mm(d, a):
        for s_ in range(4): e(mfma(d, a + 4 * s_, HO[s_], None if s_ == 0 else d))
    def scale_pack(src):
        if fold:
            for r in range(16): e(f"v_mul_f32 v{src+r}, s7, v{src+r}")
        for r in range(8): e(f"v_cvt_pk_bf16_f32 v{AW+r}, v{src+2*r}, v{src+2*r+1}")
    srd(e, sDST, 12, 13, E * 4)
    e.v('dst', f"buffer_load_dwordx4 {vr(D0,4)}, v{aE}, {sr(sDST,4)}, 0 offen{EN}")
    e(f"s_mov_b64 exec, {sr(sM1,2)}")
    e.v('dst', f"buffer_load_dwordx4 {vr(D1,4)}, v{aE+1}, {sr(sDST,4)}, 0 offen{EN}")
    srd(e, sWS, 24, 25, WS_SZ)
    e(f"""
    s_lshl_b32 s{s_t0}, s{s_c}, 3
    s_add_u32 s{s_t0}, s{s_t0}, s{s_w}
    s_cmp_eq_u32 s{s_t0}, 5
    s_cselect_b64 {sr(26,2)}, 1, 0
    s_mov_b32 s{s_t2}, {WS_TOK}
    s_mov_b64 exec, {sr(26,2)}
    """)
    e.v('dst', f"buffer_load_dwordx2 {vr(TK,2)}, v{ZQ}, {sr(sWS,4)}, s{s_t2} offen{SC}")
    e("s_mov_b64 exec, -1")
    srd(e, sHR, 4, 5, N, stride=128); srd(e, sWE, 14, 15, 130 * 128)
    e(f"""
    s_lshl_b32 s12, s{s_w}, 11
    s_lshl_b32 s13, s{s_w}, 10
    s_mov_b32 s14, 8192
    s_lshl_b32 s{s_t0}, s{s_w}, 4
    s_add_u32 s{s_t0}, s{s_t0}, s{s_nb0}
    v_lshrrev_b32 v{vPI}, 4, v1
    v_xor_b32 v{vPI}, v{t8}, v{vPI}
    v_lshlrev_b32 v{IDX+1}, 4, v{vPI}
    v_add_u32 v{IDX}, s{s_t0}, v{o8}
    v_xor_b32 v{IDX+3}, 64, v{IDX+1}
    v_add_u32 v{IDX+2}, 8, v{IDX}
    v_mov_b32 v{IDX+5}, v{IDX+1}
    """)
    if opt.get('own98', 1):
        e(f"""
        s_add_u32 s{s_t0}, s{s_nb0}, {NPB}
        v_cmp_gt_u32 vcc, s{s_t0}, v{IDX}
        v_cmp_gt_u32 {sr(0,2)}, s{s_t0}, v{IDX+2}
        v_mov_b32 v{vPI}, 0x100000
        v_cndmask_b32 v{IDX}, v{vPI}, v{IDX}, vcc
        v_cndmask_b32 v{IDX+2}, v{vPI}, v{IDX+2}, {sr(0,2)}
        """)
    def own_loads():
        e(f"s_add_u32 m0, s12, {L_STG}\ns_nop 0")
        e.v('own', f"buffer_load_dwordx4 {vr(IDX,2)}, {sr(sHR,4)}, 0 idxen offen{ON} lds")
        e(f"s_add_u32 m0, s12, {L_STG+1024}\ns_nop 0")
        e.v('own', f"buffer_load_dwordx4 {vr(IDX+2,2)}, {sr(sHR,4)}, 0 idxen offen{ON} lds")
        e(f"s_add_u32 m0, s13, {L_W+8192}\ns_nop 0")
        e.v('own', f"buffer_load_dwordx4 v{tq}, {sr(sWE,4)}, s14 offen lds")
    oe = opt.get('oe', 1)
    if not ordr or oe in (1, 2): own_loads()
    def src_loads():
        e.v('src', f"buffer_load_dwordx4 {vr(S0,4)}, v{aE}, {sr(sSRC,4)}, 0 offen{EN}")
        e.v('src', f"buffer_load_dwordx2 {vr(E0,2)}, v{aE+2}, {sr(sEA,4)}, 0 offen{EN}")
        e(f"s_mov_b64 exec, {sr(sM1,2)}")
        e.v('src', f"buffer_load_dwordx4 {vr(S1,4)}, v{aE+1}, {sr(sSRC,4)}, 0 offen{EN}")
        e.v('src', f"buffer_load_dwordx2 {vr(E1,2)}, v{aE+3}, {sr(sEA,4)}, 0 offen{EN}")
        e(f"s_cmp_ge_u32 s{s_w}, 6\ns_cselect_b64 exec, -1, 0")
        for k in range(3): e.v('src', f"buffer_load_ushort v{PO+k}, v{PO+6}, {sr(sPOS,4)}, 0 offen offset:{2*k}")
        e(f"s_cmp_eq_u32 s{s_w}, 5\ns_cselect_b64 exec, -1, 0\ns_mov_b32 s{s_t0}, 16384")
        for k in range(2): e.v('src', f"buffer_load_ushort v{PO+k}, v{PO+7}, {sr(sWE,4)}, s{s_t0} offen offset:{128*k}")
        e("s_mov_b64 exec, -1")
    stamp('iss')
    srd(e, sSRC, 10, 11, E * 4); srd(e, sEA, 8, 9, E * 2)
    srd(e, sPOS, 6, 7, N * 6); srd(e, sDBG, 22, 23, 256)
    e(f"""
    v_mov_b32 v{IDX+7}, v{IDX+3}
    v_and_b32 v{rho}, 31, v1
    v_lshrrev_b32 v{hb}, 5, v1
    v_bfe_u32 v{f3}, v1, 1, 3
    v_bfe_u32 v{r4}, v1, 2, 2
    v_bfe_u32 v{g1}, v1, 4, 1
    v_and_b32 v{c4}, 3, v1
    v_subrev_u32 v{PO+5}, 0x180, v0
    v_add_u32 v{PO+4}, s{s_nb0}, v{PO+5}
    v_mul_u32_u24 v{PO+6}, 6, v{PO+4}
    v_lshlrev_b32 v{PO+7}, 1, v1
    v_cmp_gt_u32 vcc, 152, v0
    ds_write_b128 v{tq}, {vr(ZQ,4)} offset:{L_OHT}
    ds_write_b128 v{tq}, {vr(ZQ,4)} offset:{L_OHT+8192}
    s_mov_b64 exec, vcc
    ds_write_b128 v{tq}, {vr(ZQ,4)} offset:{L_OHT+16384}
    s_mov_b64 exec, -1
    """)
    if ordr and oe != 1: src_loads()
    if oe == 3: own_loads()
    srd(e, sWH, 18, 19, 128 * 128); srd(e, sWX, 16, 17, 128)
    srd(e, sPF, 24, 25, N + 216, add=WS_POS, stride=16)
    srd(e, sOUT, 20, 21, N * 128); srd(e, sOP, 20, 21, N * 6, add=N * 128)
    if opt.get('tlb'):
        st_ = opt.get('tlb')
        e(f"""
        v_lshlrev_b32 v{HS+4}, {st_}, v1
        v_lshlrev_b32 v{HS+5}, {st_-7}, v1
        s_cmp_eq_u32 s{s_w}, 7
        s_cselect_b64 exec, -1, 0
        """)
        e.v('src', f"buffer_load_dword v{HS+6}, v{HS+5}, {sr(sHR,4)}, 0 idxen")
        e.v('src', f"buffer_load_dword v{HS+7}, v{HS+4}, {sr(sWS,4)}, 0 offen")
        e.v('src', f"buffer_load_dword v{HS+8}, v{HS+4}, {sr(sOUT,4)}, 0 offen")
        e("s_mov_b64 exec, -1")
    e(f"""
    s_mov_b32 s4, 42800
    s_mov_b32 s5, -98
    s_mov_b32 s6, 0xffff0000
    s_mov_b32 s7, {NLOG2E}
    s_mul_i32 s8, s{s_c}, {RECB}
    s_add_u32 s9, s8, 8192
    v_mov_b32 v{vONE}, 1
    v_lshlrev_b32 v{vL16}, 4, v1
    v_lshl_or_b32 v{slot}, v{g1}, 2, v{c4}
    v_lshl_or_b32 v{T0}, v{hb}, 3, v{r4}
    v_lshlrev_b32 v{T0}, 7, v{T0}
    v_and_b32 v{T0+1}, 1, v{c4}
    v_lshrrev_b32 v{T0+2}, 1, v{c4}
    v_lshlrev_b32 v{T0+1}, 5, v{T0+1}
    v_lshl_or_b32 v{T0+1}, v{g1}, 4, v{T0+1}
    v_lshl_or_b32 v{T0+1}, v{T0+2}, 3, v{T0+1}
    s_lshl_b32 s{s_t0}, s{s_cb}, 6
    s_add_u32 s{s_t0}, s{s_t0}, {L_W}
    v_add3_u32 v{T0+3}, v{T0}, v{T0+1}, s{s_t0}
    v_lshl_add_u32 v{T0+1}, v{hb}, 10, v{T0+3}
    s_lshl_b32 s{s_t0}, s{s_cb}, 12
    s_xor_b32 s{s_t1}, s{s_t0}, 4096
    v_add_u32 v{T0+2}, s{s_t1}, v{T0+1}
    v_add_u32 v{T0+1}, s{s_t0}, v{T0+1}
    s_lshl_b32 s{s_t0}, s{s_rb}, 12
    s_add_u32 s{s_t1}, s{s_t0}, {L_STG}
    v_lshl_add_u32 v{HA4+5}, v{rho}, 7, s{s_t1}
    s_lshl_b32 s{s_t1}, s{s_cb}, 2
    v_lshlrev_b32 v{HA4+4}, 1, v{hb}
    v_xor_b32 v{HA4+4}, s{s_t1}, v{HA4+4}
    v_xor_b32 v{HA4+4}, v{HA4+4}, v{f3}
    """)
    for s_ in range(4):
        k = 4 * (s_ >> 1) + (s_ & 1)
        e(f"v_xor_b32 v{HA4+s_}, {k}, v{HA4+4}\nv_lshl_add_u32 v{HA4+s_}, v{HA4+s_}, 4, v{HA4+5}")
    e(f"""
    s_add_u32 s{s_t1}, s12, {L_BST}
    v_and_b32 v{T0}, 3, v{f3}
    v_lshlrev_b32 v{vBW}, 1, v{hb}
    v_xor_b32 v{vBW}, v{vBW}, v{T0}
    v_lshlrev_b32 v{vBW}, 4, v{vBW}
    v_lshl_add_u32 v{vBW}, v{rho}, 6, v{vBW}
    v_add_u32 v{vBW}, s{s_t1}, v{vBW}
    v_add_u32 v{ID+5}, s{s_t1}, v{vL16}
    s_lshl_b32 s{s_t0}, s{s_rb}, 5
    v_lshrrev_b32 v{T0}, 2, v1
    v_add_u32 v{T0}, s{s_t0}, v{T0}
    v_cmp_gt_u32 vcc, {NPB}, v{T0}
    s_movk_i32 s{s_t1}, {NPB-16}
    v_cmp_gt_u32 {sr(18,2)}, s{s_t1}, v{T0}
    v_add_u32 v{T0}, s{s_nb0}, v{T0}
    v_xor_b32 v{vBG}, v{o8}, v1
    v_and_b32 v{vBG}, 3, v{vBG}
    v_lshlrev_b32 v{T0}, 7, v{T0}
    v_lshl_add_u32 v{T0}, v{vBG}, 4, v{T0}
    s_lshl_b32 s{s_t1}, s{s_cb}, 6
    v_add_u32 v{T0}, s{s_t1}, v{T0}
    v_mov_b32 v{vPI}, 0x1000000
    v_cndmask_b32 v{vBG}, v{vPI}, v{T0}, vcc
    v_cndmask_b32 v{nd2}, v{vPI}, v{T0}, {sr(18,2)}
    v_cmp_gt_u32 vcc, 468, v0
    v_lshlrev_b32 v{vRO}, 5, v1
    s_lshl_b32 s15, s{s_c}, 11
    s_add_u32 s15, s15, {WS_OFF}
    v_cndmask_b32 v{vPI}, v{vPI}, v{tq}, vcc
    v_lshlrev_b32 v{ID+4}, 1, v{rho}
    """)
    srcpos = opt.get('srcpos', 1) if (not ordr or oe == 1) else -1
    stamp('Ba')
    e.wvm('dst')
    stamp('dst')
    if srcpos == 1: src_loads()
    e(f"""
    s_mov_b64 exec, {sr(26,2)}
    s_cbranch_execz K_notok
    v_add_u32 v{TK}, 1, v{TK}
    v_add_u32 v{TK+1}, 1, v{TK+1}
    v_mov_b32 v{TK+4}, v{TK}
    v_lshl_or_b32 v{TK+5}, v{TK+1}, 24, 1
    buffer_store_dwordx2 {vr(TK+4,2)}, v{ZQ}, {sr(sDBG,4)}, 0 offen{SC}
    buffer_store_dwordx2 {vr(TK,2)}, v{ZQ}, {sr(sWS,4)}, s{s_t2} offen{SC}
    K_notok:
    """)
    for r, D in enumerate((D0, D1)):
        if r: e(f"s_mov_b64 exec, {sr(sM1,2)}\ns_cbranch_execz K_h1")
        else: e(f"s_mov_b64 exec, {sr(sM0,2)}")
        for k in range(4): e(f"v_mul_u32_u24 v{HA+4*r+k}, s4, v{D+k}")
        for k in range(4): e(f"v_lshrrev_b32 v{HA+4*r+k}, 22, v{HA+4*r+k}")
        for k in range(4): e(f"v_mad_i32_i24 v{REC1+8*r+2*k+1}, v{HA+4*r+k}, s5, v{D+k}")
        for k in range(4): e(f"v_lshlrev_b32 v{HA+4*r+k}, 2, v{HA+4*r+k}\nds_add_rtn_u32 v{RK+4*r+k}, v{HA+4*r+k}, v{vONE} offset:{L_H1}")
    e("K_h1:\ns_mov_b64 exec, -1")
    if srcpos == 2: src_loads()
    def w1_loads():
        e(f"s_add_u32 m0, s13, {L_W}\ns_nop 0")
        e.v('w1', f"buffer_load_dwordx4 v{tq}, {sr(sWE,4)}, 0 offen lds")
        e.v('w1', f"buffer_load_ushort v{wx0}, v{ID+4}, {sr(sWX,4)}, 0 offen")
        e.v('w1', f"buffer_load_ushort v{wx1}, v{ID+4}, {sr(sWX,4)}, 0 offen offset:64")
    def wh_loads():
        if ordr != 4: tok_load()
        e(f"s_add_u32 m0, s12, {L_W+16384}\ns_nop 0")
        e.v('wh', f"buffer_load_dwordx4 v{vL16}, {sr(sWH,4)}, s12 offen lds")
        e.v('wh', f"buffer_load_dwordx4 v{vL16}, {sr(sWH,4)}, s12 offen offset:1024 lds")
    def tok_load():
        e(f"s_cmp_eq_u32 s{s_w}, 4\ns_cselect_b64 exec, -1, 0")
        e.v('tok', f"buffer_load_dwordx2 {vr(TK,2)}, v{ZQ}, {sr(sDBG,4)}, 0 offen{SC}")
        e("s_mov_b64 exec, -1")
    def b_reads():
        for s_ in range(4): e.d('ho', f"ds_read_b128 {vr(HO[s_],4)}, v{HA4+s_}")
        rd('w2', SCR, 8192)
    def b_out(pre):
        scale_pack(ACC0)
        e(f"ds_write_b128 v{vBW}, {vr(AW,4)}\nds_write_b128 v{T0}, {vr(AW+4,4)}")
        e(f"ds_read_b128 {vr(ACC0,4)}, v{ID+5}\nds_read_b128 {vr(ACC0+4,4)}, v{ID+5} offset:1024")
        pre()
        srd(e, sBS, 24, 25, N * 128, add=WS_B)
        e("s_waitcnt lgkmcnt(1)")
        e.v('bst', f"buffer_store_dwordx4 {vr(ACC0,4)}, v{nd}, {sr(sBS,4)}, 0 offen{BN}")
        e("s_waitcnt lgkmcnt(0)")
        e.v('bst', f"buffer_store_dwordx4 {vr(ACC0+4,4)}, v{nd2}, {sr(sBS,4)}, 0 offen offset:2048{BN}")
        e.ds = []
    if not ordr: e.wvm('own')
    e("s_waitcnt lgkmcnt(0)\ns_barrier")
    e.ds = []
    stamp('Bb')
    e.d('h', f"ds_read_b128 {vr(SCN,4)}, v{vL16} offset:{L_H1}")
    late = ordr == 4
    if not late and not oe: own_loads()
    e.wds('h')
    e(f"""
    v_add_u32 v{SCN+4}, v{SCN}, v{SCN+1}
    v_add_u32 v{SCN+5}, v{SCN+4}, v{SCN+2}
    v_add_u32 v{SCN+6}, v{SCN+5}, v{SCN+3}
    v_mov_b32 v{SCN+7}, v{SCN+6}
    """)
    wave_scan(e, SCN + 7)
    e(f"""
    v_sub_u32 v{SCN+8}, v{SCN+7}, v{SCN+6}
    v_add_u32 v{SCN+9}, v{SCN+8}, v{SCN}
    v_add_u32 v{SCN+10}, v{SCN+8}, v{SCN+4}
    v_add_u32 v{SCN+11}, v{SCN+8}, v{SCN+5}
    """)
    e.d('bw', f"ds_write_b128 v{vL16}, {vr(SCN+8,4)} offset:{L_B1}")
    e(f"s_mov_b64 exec, {sr(sM0,2)}")
    for k in range(4): e.d('b0', f"ds_read_b32 v{HA+k}, v{HA+k} offset:{L_B1}")
    e(f"s_mov_b64 exec, {sr(sM1,2)}")
    for k in range(4, 8): e.d('b1', f"ds_read_b32 v{HA+k}, v{HA+k} offset:{L_B1}")
    e("s_mov_b64 exec, -1")
    if not ordr:
        e.wds('w2')
        mm(ACC0, SCR)
    def rec_words():
        for r, (S, EE) in enumerate(((S0, E0), (S1, E1))):
            e(f"""
            v_lshl_or_b32 v{REC1+8*r}, v{EE}, 16, v{S}
            v_and_or_b32 v{REC1+8*r+2}, v{EE}, s6, v{S+1}
            v_lshl_or_b32 v{REC1+8*r+4}, v{EE+1}, 16, v{S+2}
            v_and_or_b32 v{REC1+8*r+6}, v{EE+1}, s6, v{S+3}
            """)
    if ordr:
        e.wvm('src'); rec_words()
    e.wds('b1')
    for k in range(8): e(f"v_add_u32 v{HA+k}, v{HA+k}, v{RK+k}")
    e(f"s_mov_b64 exec, {sr(sM0,2)}")
    for k in range(4): e(f"ds_write_b8 v{HA+k}, v{REC1+2*k+1} offset:{L_REC+DOFF}")
    e(f"s_mov_b64 exec, {sr(sM1,2)}")
    for k in range(4, 8): e(f"ds_write_b8 v{HA+k}, v{REC1+2*k+1} offset:{L_REC+DOFF}")
    e(f"s_mov_b64 exec, -1\nv_xor_b32 v{T0}, 16, v{vBW}")
    for k in range(8): e(f"v_lshlrev_b32 v{HA+k}, 2, v{HA+k}")
    if not ordr: b_out(wh_loads)
    stamp('scan')
    if not ordr:
        e.wvm('src'); rec_words()
    stamp('src')
    for r in range(2):
        e(f"s_mov_b64 exec, {sr(sM0 if r == 0 else sM1,2)}")
        for k in range(4 * r, 4 * r + 4): e(f"ds_write_b32 v{HA+k}, v{REC1+2*k} offset:{L_REC}")
    e("s_mov_b64 exec, -1")
    e(f"""
    s_cmp_lt_u32 s{s_w}, 6
    s_cbranch_scc1 K_nopf
    s_mov_b32 s{s_t0}, {N}
    v_cmp_gt_u32 vcc, {NPB}, v{PO+5}
    v_cmp_gt_u32 {sr(16,2)}, s{s_t0}, v{PO+4}
    v_lshlrev_b32 v{PO}, 16, v{PO}
    v_lshlrev_b32 v{PO+1}, 16, v{PO+1}
    v_lshlrev_b32 v{PO+2}, 16, v{PO+2}
    v_mov_b32 v{PO+3}, 0
    v_lshlrev_b32 v{PO+5}, 4, v{PO+5}
    ds_write_b128 v{PO+5}, {vr(PO,4)} offset:{L_POSD}
    s_and_b64 {sr(16,2)}, {sr(16,2)}, vcc
    K_nopf:
    """)
    nobx = opt.get('nobx', 0)
    if late: tok_load()
    elif ordr == 1:
        w1_loads(); wh_loads()
        if 'own' in e.vm: e.wvm('own')
    elif ordr == 2:
        w1_loads(); wh_loads()
    else: e.wvm('wh' if nobx else 'w1')
    e("s_waitcnt lgkmcnt(0)\ns_barrier")
    e.ds = []
    stamp('Bc')
    for r in range(2): e.d(f'c{r}', f"ds_read_b128 {vr(PRE0+4*r,4)}, v{tq} offset:{L_REC+8192*r}")
    if ordr == 1: b_reads()
    if not ordr: rd('w1', SCR, 0)
    for r in range(2):
        e.wds(f'c{r}')
        e.v('st', f"buffer_store_dwordx4 {vr(PRE0+4*r,4)}, v{tq if r < 1 else vPI}, {sr(sWS,4)}, s{8+r} offen{SN}")
    def posf_store():
        e(f"s_cmp_ge_u32 s{s_w}, 6\ns_cselect_b64 exec, {sr(16,2)}, 0")
        e.v('bst', f"buffer_store_dwordx4 {vr(PO,4)}, v{PO+4}, {sr(sPF,4)}, 0 idxen{SC}")
        e("s_mov_b64 exec, -1")
    def row_prep():
        e(f"""
        s_cmp_lg_u32 s{s_w}, 4
        s_cbranch_scc1 K_row_done
        s_mov_b32 s{s_t0}, 0
        K_tk:
        v_readfirstlane_b32 s{s_t1}, v{TK+1}
        s_add_u32 s{s_t0}, s{s_t0}, 1
        s_cmp_gt_u32 s{s_t0}, 0x40000
        s_cbranch_scc1 K_tkok
        s_bitcmp1_b32 s{s_t1}, 0
        s_cbranch_scc1 K_tkok
        buffer_load_dwordx2 {vr(TK,2)}, v{ZQ}, {sr(sDBG,4)}, 0 offen{SC}
        s_waitcnt vmcnt(0)
        s_branch K_tk
        K_tkok:
        v_and_b32 v{TK+1}, 0xff000000, v{TK+1}
        v_mov_b32 v{TK+2}, {L_TOK}
        ds_write_b64 v{TK+2}, {vr(TK,2)}
        """)
        for k in range(4):
            e(f"v_lshl_or_b32 v{RWV+2*k}, v{SCN+k}, 12, v{SCN+8+k}\nv_mov_b32 v{RWV+2*k+1}, v{TK}\nv_or_b32 v{RWV+2*k}, v{RWV+2*k}, v{TK+1}")

        e("K_row_done:")
    def row_store():
        e(f"s_cmp_eq_u32 s{s_w}, 4\ns_cselect_b64 exec, -1, 0")
        e.v('row', f"buffer_store_dwordx4 {vr(RWV,4)}, v{vRO}, {sr(sWS,4)}, s15 offen{SC}")
        e.v('row', f"buffer_store_dwordx4 {vr(RWV+4,4)}, v{vRO}, {sr(sWS,4)}, s15 offen offset:16{SC}")
        e("s_mov_b64 exec, -1")
    if not late:
        posf_store()
        e.wds('w2')
        mm(ACC0, SCR)
        e.wvm('wh')
        e("s_nop 6")
        row_prep()
        e("s_nop 2")
        b_out(lambda: None)
        stamp('Bx')
        e.wvm('st')
        e("s_barrier")
        stamp('Bd'); rt(27)
        row_store()
        nrow = 2
    else:
        own_loads(); posf_store(); w1_loads(); wh_loads()
        sv = list(e.vm); e.wvm('tok'); e.vm = sv
        row_prep()
        stamp('Bx')
        e.wvm('st')
        e("s_waitcnt lgkmcnt(0)\ns_barrier")
        stamp('Bd'); rt(27)
        row_store()
        e.wvm('wh')
        e("s_barrier")
        b_reads()
        e.wds('w2')
        mm(ACC0, SCR)
        rd('w1', SCR, 0)
        e("s_nop 4")
        b_out(lambda: None)
        nrow = 0
    e.d('tk', f"ds_read_b64 {vr(TK,2)}, v{ZQ} offset:{L_TOK}")
    if not late: rd('w1', SCR, 0)
    e.wds0()
    mm(ACC0, SCR)
    e(f"v_readfirstlane_b32 s60, v{TK}\nv_readfirstlane_b32 s61, v{TK+1}")
    srd(e, sH, 24, 25, N, add=WS_B - 3072, stride=128)
    e(f"""
    s_lshl_b32 s{s_t0}, s{s_rb}, 5
    v_add_u32 v{PS}, s{s_t0}, v{rho}
    v_mul_u32_u24 v{PS}, {ATS}, v{PS}
    s_lshl_b32 s{s_t0}, s{s_cb}, 6
    s_add_u32 s{s_t0}, s{s_t0}, {L_ATAB}
    v_lshl_add_u32 v{PS}, v{hb}, 5, v{PS}
    v_add_u32 v{PS}, s{s_t0}, v{PS}
    """)
    rd('wh', TMP, 16384)
    for s_ in range(4):
        for t in range(2): e.d('wm', f"ds_read_b64_tr_b16 {vr(WHM+4*s_+2*t,2)}, v{T0+3} offset:{24576+2048*s_+512*t}")
    scale_pack(ACC0)
    e.wds('wh')
    mm(DH, TMP)
    e(f"ds_write_b128 v{PS}, {vr(AW,4)}\nds_write_b128 v{PS}, {vr(AW+4,4)} offset:16")
    e(mfma(ACC0, ZQ, ZQ)); e(mfma(ACC1, ZQ, ZQ))
    e(f"""
    s_cmp_eq_u32 s{s_w}, 5
    s_cbranch_scc1 K_side5
    s_cmp_lg_u32 s{s_w}, 4
    s_cbranch_scc1 K_side_done
    v_mul_u32_u24 v{PO}, 18, v1
    v_mov_b32 v{PO+1}, 0x3f80
    s_mov_b64 exec, 0xff
    ds_write_b16 v{PO}, v{PO+1} offset:{L_OHT}
    s_mov_b64 exec, -1
    """)
    e("s_branch K_side_done\nK_side5:")
    if not fold:
        e(f"ds_write_b16 v{PO+7}, v{PO} offset:{L_WDA}\nds_write_b16 v{PO+7}, v{PO+1} offset:{L_WDA+ATS}")
    else:
        e(f"""
        v_lshlrev_b32 v{PO}, 16, v{PO}
        v_lshlrev_b32 v{PO+1}, 16, v{PO+1}
        v_mul_f32 v{PO}, s7, v{PO}
        v_mul_f32 v{PO+1}, s7, v{PO+1}
        v_cvt_pk_bf16_f32 v{PO+2}, v{PO}, v{PO+1}
        v_lshlrev_b32 v{PO+3}, 16, v{PO+2}
        v_sub_f32 v{PO}, v{PO}, v{PO+3}
        v_and_b32 v{PO+3}, s6, v{PO+2}
        v_sub_f32 v{PO+1}, v{PO+1}, v{PO+3}
        v_cvt_pk_bf16_f32 v{PO+3}, v{PO}, v{PO+1}
        ds_write_b16 v{PO+7}, v{PO+2} offset:{L_WDA}
        ds_write_b16_d16_hi v{PO+7}, v{PO+2} offset:{L_WDA+ATS}
        ds_write_b16 v{PO+7}, v{PO+3} offset:{L_WDA+2*ATS}
        ds_write_b16_d16_hi v{PO+7}, v{PO+3} offset:{L_WDA+3*ATS}
        """)
    e(f"""
    K_side_done:
    v_lshlrev_b32 v{ID}, 3, v{hb}
    v_sub_u32 v{ID}, v{rho}, v{ID}
    v_subrev_u32 v{ID+4}, 16, v{ID}
    v_min_u32 v{ID}, 8, v{ID}
    v_min_u32 v{ID+4}, 8, v{ID+4}
    v_lshlrev_b32 v{ID}, 4, v{ID}
    v_lshlrev_b32 v{ID+4}, 4, v{ID+4}
    s_mov_b32 s{s_done}, 0
    s_mov_b32 s{s_take}, 32
    v_add_u32 v{T0+3}, {L_ACC}, v{tq}
    v_cmp_gt_u32 vcc, 91, v0
    s_lshl_b32 s14, s{s_c}, 7
    s_add_u32 s14, s14, {WS_FLG}
    """)
    OFFV = 162; cREC = 174; vT2D = 175; tA = 176; tB = 177
    RECV = PRE0; HADR = TMP; RANK = MR
    def offs_pre():
        e(f"""
        v_lshlrev_b32 v{tA}, 11, v{o8}
        s_lshl_b32 s{s_t0}, s{s_w}, 16
        s_lshl_b32 s{s_t1}, s{s_b}, 3
        s_add_u32 s{s_t0}, s{s_t0}, s{s_t1}
        s_add_u32 s16, s{s_t0}, {WS_OFF}
        s_add_u32 s17, s16, 16384
        s_add_u32 s18, s16, 32768
        s_add_u32 s19, s16, 49152
        """)
    def offs_loads():
        for i in range(4):
            e.v('off', f"buffer_load_dwordx2 {vr(OFFV+2*i,2)}, v{tA}, {sr(sWS,4)}, s{16+i} offen{SC}")
    cRD = 173; RA = PRE0; RD = PRE1; aAr = PRE1 + 8; aDr = PRE1 + 12
    def rec_pre():
        e(f"""
        s_mov_b32 s{s_t0}, {RECB}
        v_mul_u32_u24 v{cREC}, s{s_t0}, v{o8}
        v_lshl_add_u32 v{vT2D}, v{t8}, 1, s{s_done}
        v_add_u32 v{cRD}, v{cREC}, v{vT2D}
        v_add_u32 v{cRD}, {DOFF}, v{cRD}
        v_lshl_add_u32 v{cREC}, v{vT2D}, 2, v{cREC}
        s_mul_i32 s{s_o}, s{s_w}, {32*RECB}
        s_add_u32 s{s_o+1}, s{s_o}, {8*RECB}
        s_add_u32 s{s_o+2}, s{s_o}, {16*RECB}
        s_add_u32 s{s_o+3}, s{s_o}, {24*RECB}
        """)
    def rec_loads(waits):
        if waits: e("s_waitcnt vmcnt(0)")
        for i in range(4):
            m = sMASK + 8 * i
            e(f"""
            v_bfe_u32 v{tB}, v{OFFV+2*i}, 12, 12
            v_and_b32 v{tA}, 0xfff, v{OFFV+2*i}
            v_sub_u32 v{HADR+i}, v{tB}, v{vT2D}
            v_add_u32 v{aDr+i}, v{tA}, v{cRD}
            v_cmp_lt_i32 {sr(m,2)}, 0, v{HADR+i}
            v_cmp_lt_i32 {sr(m+4,2)}, 16, v{HADR+i}
            v_lshl_add_u32 v{aAr+i}, v{tA}, 2, v{cREC}
            """)
            e(f"v_mov_b32 v{vMX}, v{tB}" if i == 0 else f"v_max_u32 v{vMX}, v{vMX}, v{tB}")
            e(f"s_mov_b64 exec, {sr(m,2)}")
            e(f"buffer_load_ushort v{RD+2*i}, v{aDr+i}, {sr(sWS,4)}, s{s_o+i} offen{RN}")
            e(f"s_mov_b64 exec, {sr(m+4,2)}")
            e(f"buffer_load_ushort v{RD+2*i+1}, v{aDr+i}, {sr(sWS,4)}, s{s_o+i} offen offset:16{RN}")
            e("s_mov_b64 exec, -1")
        for i in range(4):
            m = sMASK + 8 * i
            e(f"s_mov_b64 exec, {sr(m,2)}")
            e(f"buffer_load_dwordx2 {vr(RA+4*i,2)}, v{aAr+i}, {sr(sWS,4)}, s{s_o+i} offen{RN}")
            e(f"s_mov_b64 exec, {sr(m+4,2)}")
            e(f"buffer_load_dwordx2 {vr(RA+4*i+2,2)}, v{aAr+i}, {sr(sWS,4)}, s{s_o+i} offen offset:64{RN}")
        e("s_mov_b64 exec, -1")
        for i in range(4):
            m = sMASK + 8 * i
            e(f"v_cmp_lt_i32 {sr(m+2,2)}, 1, v{HADR+i}\nv_cmp_lt_i32 {sr(m+6,2)}, 17, v{HADR+i}")
        e.vm = []
    def sdwa(d, sh, k):
        return f"v_lshlrev_b32_sdwa v{d}, {sh}, v{RD+(k>>1)} dst_sel:DWORD dst_unused:UNUSED_PAD src0_sel:DWORD src1_sel:BYTE_{k&1}"
    def loop_consts():
        e(f"""
        s_lshl_b32 s{s_stg}, s{s_w}, 12
        s_add_u32 s{s_stg}, s{s_stg}, {L_STG}
        v_lshlrev_b32 v{cRA}, 3, v1
        v_lshlrev_b32 v{cTA}, 3, v{o8}
        v_lshl_add_u32 v{HADR+8}, v{rho}, 7, s{s_stg}
        v_xor_b32 v{HADR+9}, v{hb}, v{f3}
        """)
        for s_ in range(4):
            if s_: e(f"v_xor_b32 v{cHS+s_}, {2*s_}, v{HADR+9}\nv_lshl_add_u32 v{cHS+s_}, v{cHS+s_}, 4, v{HADR+8}")
            else: e(f"v_lshl_add_u32 v{cHS}, v{HADR+9}, 4, v{HADR+8}")
        e(f"""
        s_lshl_b32 s{s_t0}, s{s_w}, 11
        s_add_u32 s{s_t0}, s{s_t0}, {L_MM}
        v_lshl_add_u32 v{cMW}, v{rho}, 6, s{s_t0}
        v_lshl_or_b32 v{cMW}, v{f3}, 3, v{cMW}
        v_mov_b32 v{vMA}, v{cMW}
        v_lshl_or_b32 v{HADR+8}, v{hb}, 2, v{r4}
        v_lshrrev_b32 v{HADR+9}, 1, v{HADR+8}
        v_xor_b32 v{HADR+9}, v{HADR+9}, v{slot}
        v_lshl_add_u32 v{HADR+8}, v{HADR+8}, 6, s{s_t0}
        v_lshl_add_u32 v{cM}, v{HADR+9}, 3, v{HADR+8}
        v_xor_b32 v{HADR+9}, 4, v{HADR+9}
        v_lshl_add_u32 v{cM+1}, v{HADR+9}, 3, v{HADR+8}
        v_add_u32 v{cM+1}, 0x200, v{cM+1}
        v_mul_u32_u24 v{cAW}, {ATS}, v{r4}
        v_lshl_add_u32 v{cAW}, v{slot}, 3, v{cAW}
        s_mov_b32 s{s_t0}, {L_WDA-L_ATAB}
        v_mad_i32_i24 v{cAW}, v{hb}, s{s_t0}, v{cAW}
        v_add_u32 v{cAW}, {L_ATAB}, v{cAW}
        v_mov_b32 v{vAWA}, v{cAW}
        v_mul_u32_u24 v{cF}, {ACS}, v{hb}
        v_lshl_add_u32 v{cF}, v{rho}, 3, v{cF}
        v_add_u32 v{cF}, {L_ACC}, v{cF}
        v_lshl_or_b32 v{cP}, v{r4}, 1, v{hb}
        v_lshlrev_b32 v{cP}, 5, v{cP}
        v_add_u32 v{cP}, {L_PACC}, v{cP}
        v_lshlrev_b32 v{wx0}, 16, v{wx0}
        v_lshlrev_b32 v{wx1}, 16, v{wx1}
        v_add_u32 v{IDX+1}, 0xc00, v{IDX+1}
        v_add_u32 v{IDX+3}, 0x800, v{IDX+3}
        v_add_u32 v{IDX+5}, 0x400, v{IDX+5}
        s_mov_b32 s{sLO}, -1
        v_mov_b32 v{SCR+19}, 0x1000000
        s_mov_b32 s{sLO+1}, 0
        s_mov_b32 s{sQ}, 0x11111111
        s_mov_b32 s{sQ+1}, 0x11111111
        s_mov_b32 s{sC}, {NLOG2E}
        s_mov_b32 s{sC+1}, {NLOG2E}
        """)
        if fold: e(f"v_mul_f32 v{wx0}, {NLN2}, v{wx0}\nv_mul_f32 v{wx1}, {NLN2}, v{wx1}")
        for r in list(range(OH1A, OH1A + 8)) + list(range(OH2, OH2 + 8)): e(f"v_mov_b32 v{r}, 0")

    cpos = opt.get('cpos', 2)
    offs_pre()
    if cpos == 0: loop_consts(); rec_pre()
    stamp('side')
    e(f"s_waitcnt vmcnt({nrow}) lgkmcnt(0)\ns_barrier")
    e.ds = []; e.vm = []
    stamp('Bd2')
    e(f"""
    s_cmp_eq_u32 s{s_w}, 3
    s_cselect_b64 exec, 1, 0
    buffer_store_dwordx2 {vr(TK,2)}, v{ZQ}, {sr(sWS,4)}, s14 offen{SC}
    s_mov_b64 exec, -1
    ds_read_b128 {vr(ID,4)}, v{ID} offset:{L_OHT}
    ds_read_b128 {vr(ID+4,4)}, v{ID+4} offset:{L_OHT}
    """)
    RS = SCR; aA = SCR + 16; aPO = SCR + 17; aPA = SCR + 18; oP = SCR + 19; aW = SCR + 20; aR = SCR + 22
    def epi_consts():
        t0_, t1_, t2_, rho, hb, f3, c4 = range(TMP, TMP + 7)
        e(f"""
        v_and_b32 v{rho}, 31, v1
        v_lshrrev_b32 v{hb}, 5, v1
        v_bfe_u32 v{f3}, v1, 1, 3
        v_and_b32 v{c4}, 3, v1
        s_lshl_b32 s{s_t0}, s{s_rb}, 5
        v_add_u32 v{t0_}, s{s_t0}, v{rho}
        v_mul_u32_u24 v{aA}, {ACS}, v{t0_}
        v_lshl_add_u32 v{aA}, v{hb}, 6, v{aA}
        v_add_u32 v{aA}, {L_ACC}, v{aA}
        v_lshlrev_b32 v{aPO}, 2, v0
        v_lshlrev_b32 v{aPA}, 3, v0
        v_add_u32 v{aPA}, {L_PACC}, v{aPA}
        v_lshrrev_b32 v{oP}, 2, v0
        v_cmp_gt_u32 vcc, {NPB}, v{oP}
        v_cmp_gt_u32 {sr(s_o,2)}, 3, v{c4}
        v_add_u32 v{oP}, s{s_nb0}, v{oP}
        v_mul_u32_u24 v{oP}, 6, v{oP}
        v_lshl_add_u32 v{oP}, v{c4}, 1, v{oP}
        s_and_b64 vcc, {sr(s_o,2)}, vcc
        v_mov_b32 v{t2_}, 0x1000000
        v_and_b32 v{t0_}, 3, v{f3}
        v_cndmask_b32 v{oP}, v{t2_}, v{oP}, vcc
        v_lshlrev_b32 v{t1_}, 1, v{hb}
        v_xor_b32 v{t1_}, v{t1_}, v{t0_}
        v_lshl_add_u32 v{aW}, v{rho}, 6, s{s_stg}
        v_lshl_add_u32 v{aW}, v{t1_}, 4, v{aW}
        v_xor_b32 v{aW+1}, 16, v{aW}
        v_lshl_add_u32 v{aR}, v1, 4, s{s_stg}
        """)
        for r in range(8):
            e(f"v_lshlrev_b32 v{RS+2*r}, 16, v{HR+r}\nv_and_b32 v{RS+2*r+1}, 0xffff0000, v{HR+r}")
        if dhs:
            for i in range(0, 16, 2): e(f"v_pk_mul_f32 {vr(DH+i,2)}, {vr(DH+i,2)}, {sr(sC,2)}")
            e(f"s_mov_b32 s{sC}, {NLN2}\ns_mov_b32 s{sC+1}, {NLN2}")

    epos = opt.get('epos', 1)
    nz = opt.get('nz', 8)
    Z = [f"ds_write_b128 v{T0+3}, {vr(ZQ,4)} offset:{8192*r}" for r in range(7)]
    Z.append(f"s_mov_b64 exec, vcc\nds_write_b128 v{T0+3}, {vr(ZQ,4)} offset:{8192*7}\ns_mov_b64 exec, -1")
    for z in Z[:nz]: e(z)
    early = opt.get('early', 0)
    if early == 1: offs_loads()
    if cpos == 2: loop_consts()
    if early == 2: offs_loads()
    if epos == 2: epi_consts()
    if cpos == 2: rec_pre()
    if opt.get('isl'): e(f"s_sleep {opt.get('isl')}")
    if not early:
        if opt.get('zw', 1): e("s_waitcnt lgkmcnt(0)")
        offs_loads()
    for z in Z[nz:]: e(z)
    if cpos == 1: loop_consts(); rec_pre()
    e(f"s_mov_b32 s{s_t0}, 0\nK_poll:\ns_waitcnt vmcnt(0)")
    if opt.get('pst'): e(f"s_memrealtime s[0:1]\ns_min_u32 s2, s{s_t0}, 20\ns_add_u32 m0, s2, 32\ns_waitcnt lgkmcnt(0)\nv_writelane_b32 v{vST}, s0, m0\nv_writelane_b32 v{vST}, s{s_t0}, 24")
    for i in range(4):
        e(f"v_xor_b32 v{HADR+2*i}, s61, v{OFFV+2*i}\nv_xor_b32 v{HADR+2*i+1}, s60, v{OFFV+2*i+1}")
    for i in range(4): e(f"v_lshrrev_b32 v{HADR+2*i}, 24, v{HADR+2*i}")
    for i in range(4): e(f"v_or_b32 v{HADR+2*i}, v{HADR+2*i}, v{HADR+2*i+1}")
    for i in range(4): e(f"v_cmp_ne_u32 {sr(4+2*i,2)}, 0, v{HADR+2*i}")
    e(f"""
    s_add_u32 s{s_t0}, s{s_t0}, 1
    s_or_b64 {sr(12,2)}, {sr(4,2)}, {sr(6,2)}
    s_or_b64 {sr(14,2)}, {sr(8,2)}, {sr(10,2)}
    s_cmp_gt_u32 s{s_t0}, 0x40000
    s_cbranch_scc1 K_pollx
    s_or_b64 {sr(12,2)}, {sr(12,2)}, {sr(14,2)}
    s_cbranch_scc1 K_repoll
    K_pollx:
    """)
    stamp('Be'); rt(26)
    rec_loads(False)
    if epos == 0: epi_consts()
    e.ds = []
    slots = [(i, ld, u) for i in range(4) for ld in range(2) for u in range(2)]
    def sreg(k): i, ld, u = slots[k]; return RECV + 8 * i + 4 * ld + 2 * u
    def smask(k): i, ld, u = slots[k]; return sMASK + 8 * i + 4 * ld + 2 * u
    e(f"K_hist:\nv_mov_b32 v{tA}, 1")
    for i in range(4):
        e(f"s_waitcnt vmcnt({14-2*i})")
        if i == 0: stamp('rec')
        for k in range(4 * i, 4 * i + 4): e(sdwa(HADR + k, 2, k))
        for k in range(4 * i, 4 * i + 4):
            e(f"s_mov_b64 exec, {sr(smask(k),2)}\nds_add_rtn_u32 v{RANK+k}, v{HADR+k}, v{tA} offset:{L_HIST}")
        e("s_mov_b64 exec, -1")
    FLV = PS; aFL = T0
    e(f"""
    v_and_b32 v{aFL}, 31, v1
    v_lshlrev_b32 v{aFL}, 7, v{aFL}
    s_lshl_b32 s62, s{s_w}, 12
    s_add_u32 s62, s62, {WS_FLG}
    buffer_load_dwordx2 {vr(FLV,2)}, v{aFL}, {sr(sWS,4)}, s62 offen{SC}
    s_waitcnt lgkmcnt(0)
    s_barrier
    """)
    stamp('B1')
    e(f"""
    ds_read_b64 v[{OFFV+8}:{OFFV+9}], v{cRA} offset:{L_HIST}
    s_add_u32 s{s_t0}, s{s_done}, s{s_take}
    v_cmp_lt_u32 vcc, s{s_t0}, v{vMX}
    s_waitcnt lgkmcnt(0)
    v_add_u32 v{tA}, v{OFFV+8}, v{OFFV+9}
    v_mov_b32 v{tB}, v{tA}
    """)
    wave_scan(e, tB)
    e(f"""
    v_sub_u32 v{OFFV+10}, v{tB}, v{tA}
    v_readlane_b32 s{s_T}, v{tB}, 63
    v_add_u32 v{OFFV+11}, v{OFFV+10}, v{OFFV+8}
    ds_write_b64 v{cRA}, v[{OFFV+10}:{OFFV+11}] offset:{L_BASE}
    s_cmp_gt_u32 s{s_T}, {CAP}
    s_cbranch_scc1 K_retry
    """)
    for k in range(16):
        e(f"s_mov_b64 exec, {sr(smask(k),2)}\nds_read_b32 v{HADR+k}, v{HADR+k} offset:{L_BASE}")
    e(f"""
    s_mov_b64 exec, -1
    s_cbranch_vccnz K_setflag
    K_flagset:
    s_add_u32 s{s_t1}, s{s_T}, 31
    s_lshr_b32 s{s_t1}, s{s_t1}, 5
    s_lshr_b32 s{s_t0}, s{s_t1}, 3
    s_and_b32 s{s_t1}, s{s_t1}, 7
    s_mul_i32 s{s_p}, s{s_w}, s{s_t0}
    s_min_u32 s{s_t2}, s{s_w}, s{s_t1}
    s_add_u32 s{s_p}, s{s_p}, s{s_t2}
    s_add_u32 s{s_end}, s{s_p}, s{s_t0}
    s_cmp_lt_u32 s{s_w}, s{s_t1}
    s_addc_u32 s{s_end}, s{s_end}, 0
    s_lshl_b32 s{s_p}, s{s_p}, 5
    s_lshl_b32 s{s_end}, s{s_end}, 5
    s_min_u32 s{s_end}, s{s_end}, s{s_T}
    s_lshl_b32 s{s_t0}, s{s_T}, 3
    v_add_u32 v{tA}, s{s_t0}, v{cRA}
    s_mov_b32 s63, 0
    K_flg:
    s_waitcnt vmcnt(0)
    v_cmp_ne_u32 vcc, s60, v{FLV}
    v_cmp_ne_u32 {sr(0,2)}, s61, v{FLV+1}
    s_lshr_b32 s{s_t0}, s{s_c}, 3
    s_lshl_b32 s{s_t1}, s{s_w}, 5
    s_or_b64 vcc, vcc, {sr(0,2)}
    s_cbranch_scc1 K_reflg
    K_flgok:
    s_add_u32 s{s_t0}, s{s_t0}, s{s_t1}
    s_and_b32 s{s_t1}, s{s_t0}, 7
    s_lshl_b32 s{s_t1}, s{s_t1}, 5
    s_lshr_b32 s{s_t0}, s{s_t0}, 3
    s_add_u32 s{s_t0}, s{s_t0}, s{s_t1}
    s_mul_i32 s{s_t0}, s{s_t0}, {NPB}
    """)
    if opt.get('pfp'):
        e(f"v_lshl_add_u32 v{PS}, v1, 3, s{s_t0}\ns_mov_b64 exec, 0x1fff\nbuffer_load_dword v{PS}, v{PS}, {sr(sPF,4)}, 0 idxen{SC}\ns_mov_b64 exec, -1")
    if opt.get('pfb'):
        e(f"v_add_u32 v{PS+1}, s{s_t0}, v1\ns_bfm_b64 exec, {opt.get('pfb')}, 0\nbuffer_load_dword v{PS+1}, v{PS+1}, {sr(sH,4)}, 0 idxen offset:3072{SC}\ns_mov_b64 exec, -1")
    for q in range(4):
        e("s_waitcnt lgkmcnt(12)")
        for k in range(4 * q, 4 * q + 4): e(f"v_add_lshl_u32 v{HADR+k}, v{HADR+k}, v{RANK+k}, 3")
        for k in range(4 * q, 4 * q + 4): e(sdwa(RANK + k, 4, k))
        for k in range(4 * q, 4 * q + 4):
            e(f"s_mov_b64 exec, {sr(smask(k),2)}\nds_write2_b32 v{HADR+k}, v{RA+k}, v{RANK+k} offset0:0 offset1:1")
        e("s_mov_b64 exec, -1")
    e(f"""
    s_cmp_lg_u32 s{s_w}, 7
    s_cbranch_scc1 K_nopad
    ds_write_b64 v{tA}, v[{ZQ}:{ZQ+1}] offset:{L_REC}
    K_nopad:
    s_lshl_b32 s{s_p8}, s{s_p}, 3
    s_mov_b32 s{s_lim}, 0
    s_mov_b32 s{s_nbCur}, 0
    v_add_u32 v{vRA}, s{s_p8}, v{cRA}
    v_add_u32 v{vTA}, s{s_p8}, v{cTA}
    """)
    for r in range(8): e(f"v_mov_b32 v{MR+r}, 0")
    e("s_waitcnt lgkmcnt(0)\ns_barrier")
    e.ds = []; e.vm = []
    spin(3)
    stamp('B2')
    e(f"s_cmp_ge_u32 s{s_p}, s{s_end}\ns_cbranch_scc1 {'K_skip' if epos == 1 else 'K_wavedone'}")

    tail = []
    D = lambda tag, t: (lambda: e.d(tag, t))
    V = lambda tag, t: (lambda: e.v(tag, t))
    def rec_read():
        return [D('rw', f"ds_read_b64 v[{RW}:{RW+1}], v{vRA} offset:{L_REC}"), D('rw', f"ds_read_u16 v{vPI}, v{vRA} offset:{L_REC}")]
    def window_pre():
        return [f"s_sub_u32 s{s_rem}, s{s_end}, s{s_p}", f"s_min_u32 s{s_need}, s{s_rem}, 64", f"s_bfm_b64 {sr(sMV,2)}, s{s_rem}, 0",
                f"s_cmp_ge_u32 s{s_rem}, 64", f"s_cselect_b64 {sr(sMV,2)}, -1, {sr(sMV,2)}", f"s_mov_b32 s{s_flN}, 0"]
    def window():
        l = e.lab("K_win")
        tail.append(f"""
        {l}a:
        v_readfirstlane_b32 s{s_nbN}, v{RW+1}
        s_mov_b32 s{s_flN}, 1
        s_add_u32 s{s_lim}, s{s_nbN}, 128
        v_cmp_gt_u32 vcc, s{s_lim}, v{RW+1}
        s_nop 0
        s_and_b64 {sr(sMK,2)}, vcc, {sr(sMV,2)}
        s_bcnt1_i32_b64 s{s_cntN}, {sr(sMK,2)}
        s_branch {l}b
        """)
        return [lambda: (e.wds('rw'), e(f"v_cmp_gt_u32 vcc, s{s_lim}, v{RW+1}")),
                V('ps', f"buffer_load_dwordx3 {vr(PS,3)}, v{vPI}, {sr(sPF,4)}, 0 idxen{SC}"),
                D('pd', f"ds_read_b128 {vr(PD,4)}, v{RW+1} offset:{L_POSD}"),
                f"s_and_b64 {sr(sMK,2)}, vcc, {sr(sMV,2)}",
                f"s_bcnt1_i32_b64 s{s_cntN}, {sr(sMK,2)}",
                f"s_cmp_lg_u32 s{s_cntN}, s{s_need}",
                f"s_cbranch_scc1 {l}a\n{l}b:",
                f"s_add_u32 s{s_pn}, s{s_p}, s{s_cntN}" + (f"\ns_and_b32 s0, s{s_dbg}, 7\ns_cselect_b32 s{s_pn}, s{s_p}, s{s_pn}" if opt.get('x_rep') else "")]
    def idx_read(off): return [D('idx', f"ds_read_u16 v{IDX+2*j}, v{vTA} offset:{L_REC+off+64*j}") for j in range(4)]
    def hs_read(): return [D('hs', f"ds_read_b128 {vr(HS+4*s_,4)}, v{cHS+s_}") for s_ in range(4)]
    def oh2_read(): return [D('oh2', f"ds_read_b64_tr_b16 {vr(OH2+4*s_+2*t,2)}, v{cM+t} offset:{1024*s_}") for s_ in range(2) for t in range(2)]
    def aw_read():
        return [f"s_mul_i32 s{s_t0}, s{s_nbN}, {ATS//16}",
                f"s_mov_b64 exec, {sr(sLO,2)}\nv_add_u32 v{vAWA}, s{s_t0}, v{cAW}\ns_mov_b64 exec, -1"] + \
               [D('aw', f"ds_read_b64_tr_b16 {vr(AW+4*blk+2*t,2)}, v{vAWA} offset:{4*ATS*t+64*blk}") for blk in range(2) for t in range(2)]
    def aw_cond():
        t = f"K_aw:\ns_mul_i32 s{s_t0}, s{s_nbN}, {ATS//16}\ns_mov_b64 exec, {sr(sLO,2)}\nv_add_u32 v{vAWA}, s{s_t0}, v{cAW}\ns_mov_b64 exec, -1\n"
        t += "\n".join(f"ds_read_b64_tr_b16 {vr(AW+4*blk+2*t_,2)}, v{vAWA} offset:{4*ATS*t_+64*blk}" for blk in range(2) for t_ in range(2))
        tail.append(t + "\ns_branch K_awb")
        return [f"s_cmp_lg_u32 s{s_flN}, 0", "s_cbranch_scc1 K_aw\nK_awb:"]
    def m_b():
        return [D('mc', f"ds_write_b64 v{vMA}, v[{ZQ}:{ZQ+1}]"),
                f"s_mov_b32 exec_lo, 0\ns_mov_b32 exec_hi, s{s_mkB}\nds_write_b64 v{vMA}, v[{WP}:{WP+1}]\ns_mov_b64 exec, -1"]
    def misc():
        t0, t1, t2, t3 = T0, T0 + 1, T0 + 2, T0 + 3
        t4 = PD + 3
        L = [D('mc', f"ds_write_b64 v{vMA}, v[{ZQ}:{ZQ+1}]"),
             f"""v_subrev_u32 v{t0}, s{s_nbN}, v{RW+1}
             v_sub_f32 v{t1}, v{PD}, v{PS}
             v_sub_f32 v{t2}, v{PD+1}, v{PS+1}
             v_sub_f32 v{t3}, v{PD+2}, v{PS+2}
             v_min_u32 v{OH1A}, 0x80, v{t0}
             v_mul_f32 v{t4}, v{t1}, v{t1}
             v_lshrrev_b32 v{t0}, 1, v{OH1A}
             v_fmac_f32 v{t4}, v{t2}, v{t2}
             v_cvt_pk_bf16_f32 v{WP}, 1.0, v{t1}
             v_fmac_f32 v{t4}, v{t3}, v{t3}
             v_cvt_pk_bf16_f32 v{WP+1}, v{t2}, v{t3}
             v_cvt_pk_bf16_f32 v{OH1B}, v{t4}, v{RW}
             v_xor_b32 v{vMA}, v{t0}, v{cMW}""",
             f"s_mov_b32 s{s_mkB}, s{sMK+1}",
             f"v_permlane32_swap_b32 v{OH1A}, v{OH1B}" + (f"\nv_mov_b32 v{OH1A+1}, v{OH1A}\nv_mov_b32 v{OH1B+1}, v{OH1B}" if fold and opt.get('lo', 1) else ""),
             lambda: (e(f"s_and_b64 exec, {sr(sMK,2)}, {sr(sLO,2)}\nds_write_b64 v{vMA}, v[{WP}:{WP+1}]\ns_mov_b64 exec, {sr(sLO,2)}"), e.d('oh1', f"ds_read_b128 {vr(OH1A,4)}, v{OH1A} offset:{L_OHT}"),
                      e.d('oh1', f"ds_read_b128 {vr(OH1B,4)}, v{OH1B} offset:{L_OHT}"), e("s_mov_b64 exec, -1"))]
        return L
    def dma():
        return [V('dma', f"buffer_load_dwordx4 {vr(IDX+2*j,2)}, {sr(sH,4)}, 0 idxen offen offset:{1024*j}{SC} lds") for j in range(4)]
    def run(L, gap=False):
        for x in L:
            if callable(x): x()
            else:
                e(x)
                if gap and 'm0' in x: e("s_nop 0")
    def flush(snb):
        e(f"s_mul_i32 s{s_t0}, s{snb}, {ACS//16}\nv_lshl_add_u32 v{T0+1}, s{snb}, 1, v{cP}\nv_add_u32 v{T0}, s{s_t0}, v{cF}")
        if fold and not dhs:
            for j in range(4): e(f"v_mul_f32 v{ACC0+4*j}, {NLN2}, v{ACC0+4*j}\nv_mul_f32 v{ACC1+4*j}, {NLN2}, v{ACC1+4*j}")
        for j in range(4):
            e(f"v_cvt_f64_f32 {vr(TMP+4*j,2)}, v{ACC0+4*j}\nv_cvt_f64_f32 {vr(TMP+4*j+2,2)}, v{ACC1+4*j}")
        for j in range(4):
            e(f"ds_add_f64 v{T0}, {vr(TMP+4*j,2)} offset:{2*ACS*j}\nds_add_f64 v{T0}, {vr(TMP+4*j+2,2)} offset:{2*ACS*j+256}")
        R = [4 * j + 1 + c for j in range(4) for c in range(3)]
        for r in R: e(f"v_mul_f32 v{ACC0+r}, v{ACC0+r}, v{wx0}")
        for r in R: e(f"v_fmac_f32 v{ACC0+r}, v{ACC1+r}, v{wx1}")
        e(mfma(ACC1, ZQ, ZQ))
        lo = [ACC0 + 4 * j + 1 + c for j in range(2) for c in range(3)]
        for r in lo: e(f"v_add_f32_dpp v{r}, v{r}, v{r} row_ror:8 row_mask:0xf bank_mask:0x3")
        for r in lo: e(f"v_add_f32_dpp v{r}, v{r+8}, v{r+8} row_ror:8 row_mask:0xf bank_mask:0xc")
        lo = [ACC0 + 1 + c for c in range(3)]
        for r in lo: e(f"v_add_f32_dpp v{r}, v{r}, v{r} row_half_mirror row_mask:0xf bank_mask:0x5")
        for r in lo: e(f"v_add_f32_dpp v{r}, v{r+4}, v{r+4} row_half_mirror row_mask:0xf bank_mask:0xa")
        for r in lo: e(f"v_add_f32_dpp v{r}, v{r}, v{r} quad_perm:[1,0,3,2] row_mask:0xf bank_mask:0xf")
        for r in lo: e(f"v_add_f32_dpp v{r}, v{r}, v{r} quad_perm:[2,3,0,1] row_mask:0xf bank_mask:0xf")
        for c in range(3): e(f"v_cvt_f64_f32 {vr(TMP+2*c,2)}, v{ACC0+1+c}")
        e(mfma(ACC0, ZQ, ZQ))
        e(f"s_mov_b64 exec, {sr(sQ,2)}")
        for c in range(3): e(f"ds_add_f64 v{T0+1}, {vr(TMP+2*c,2)} offset:{8*c}")
        e("s_mov_b64 exec, -1")
    def gemm1(q, blk, oh1):
        return [mfma(q, oh1, AW + 4 * blk, None)] + [mfma(q, HS + 8 * blk + 4 * s_, ID + 4 * s_, q) for s_ in range(2)]
    def seg(acc): return [mfma(acc, OH2 + 4 * s_, MR + 4 * s_, acc) for s_ in range(2)]
    def phase(P, G, S, pre, side):
        head = []
        if not fold:
            head = [f"v_pk_mul_f32 {vr(TMP+i,2)}, {vr(P+i,2)}, {sr(sC,2)}" for i in range(0, 16, 2)]
            ex = [f"v_exp_f32 v{TMP+i}, v{TMP+i}" for i in range(16)]
        else:
            ex = [f"v_exp_f32 v{TMP+i}, v{P+i}" for i in range(16)]
        base = []
        for m, x in enumerate([G[0], S[0], S[1]]): base += [x] + ex[4 * m:4 * m + 4]
        base += ex[12:]
        base += [f"v_pk_add_f32 {vr(TMP+i,2)}, {vr(TMP+i,2)}, 1.0 op_sel_hi:[1,0]" for i in range(0, 16, 2)]
        rc = [f"v_rcp_f32 v{TMP+i}, v{TMP+i}" for i in range(16)]
        for m, x in enumerate(G[1:3]): base += [x] + rc[4 * m:4 * m + 4]
        base += rc[8:]
        base += [f"v_pk_mul_f32 {vr(TMP+i,2)}, {vr(P+i,2)}, {vr(TMP+i,2)}" for i in range(0, 16, 2)]
        base += [f"v_cvt_pk_bf16_f32 v{MR+i//2}, v{TMP+i}, v{TMP+i+1}" for i in range(0, 16, 2)]
        assert len(base) == 61
        for x in head: e(x)
        q = [(st, it) for st, L in side for it in L]
        slot_ok = lambda x: 'v_pk_' in x or 'v_cvt_pk' in x
        for i, x in enumerate(base):
            if i in pre: run(pre[i])
            e(x)
            if slot_ok(x) and q and q[0][0] <= i:
                run([q.pop(0)[1]])
        assert not q, q

    if opt.get('x_rep'): e(f"s_mov_b32 s{s_dbg}, 0")
    e(f"s_mov_b32 m0, s{s_stg}")
    run(rec_read()); run(idx_read(0)); run(window_pre())
    e.wds('idx')
    e.ds = ['rw']
    W = window()
    run(W[:3])
    run(dma(), True)
    run(W[3:])
    e(f"s_mov_b32 s{s_flN}, 0")
    run(aw_read())
    run(idx_read(256))
    if epos == 1:
        e(f"s_cmp_lg_u32 s{s_done}, 0\ns_cbranch_scc1 K_noepi")
        epi_consts()
        e("K_noepi:")
    e.wvm('ps'); e.wds('pd')
    M = misc()
    run(M[:2])
    e.wvm0()
    run(hs_read())
    run(M[2:])
    e.wds('hs')
    G = [mfma(PRE0, HS, ID, None), mfma(PRE0, HS + 4, ID + 4, PRE0), mfma(PRE0, OH1A, AW, PRE0)]
    run(dma())
    e(G[0]); e(G[1]); e.wds0(); e(G[2])
    wp = window_pre()
    adv = [f"s_lshl_b32 s{s_p8}, s{s_pn}, 3", f"s_mov_b32 s{s_p}, s{s_pn}", f"s_mov_b32 s{s_flush}, s{s_flN}",
           f"s_mov_b32 s{s_nbOld}, s{s_nbCur}", f"s_mov_b32 s{s_nbCur}, s{s_nbN}", f"s_mov_b32 s{s_cntCur}, s{s_cntN}"] + wp
    run(adv)
    if opt.get('prio', 3): e("s_setprio 3")
    stamp('wprol')
    if opt.get('stamp'): e(f"s_mov_b32 s{s_dbg}, 0")
    e(".p2align 4\nK_loop:")
    loop_start = len(e.L)
    e.ds = []; e.vm = ['dma'] * 4
    if opt.get('stamp'): e(f"s_add_u32 s{s_dbg}, s{s_dbg}, 1")
    if opt.get('itst'): e(f"s_memtime s[0:1]\ns_add_u32 m0, s{s_dbg}, 31\ns_waitcnt lgkmcnt(0)\nv_writelane_b32 v{vST}, s0, m0")
    pm = opt.get('prio', 1)
    def prio_check(tag, reg, th):
        tail.append(f"""
        K_prio{tag}:
        s_setprio 2
        s_cmp_le_u32 s{reg}, {th[1]}
        s_cbranch_scc0 K_priob{tag}
        s_setprio 1
        s_cmp_le_u32 s{reg}, {th[2]}
        s_cbranch_scc0 K_priob{tag}
        s_setprio 0
        s_branch K_priob{tag}
        """)
        return [f"s_cmp_le_u32 s{reg}, {th[0]}", f"s_cbranch_scc1 K_prio{tag}\nK_priob{tag}:"]
    W = window()
    hw = opt.get('hw', 15); c2 = opt.get('c2', 11); c3 = opt.get('c3', 19); c4_ = opt.get('c4', 15)
    pr = prio_check('a', s_rem, (128, 64, 0)) if pm else []
    phase(PRE0, gemm1(PRE1, 1, OH1A), seg(ACC1),
          {0: [f"v_add_u32 v{vRA}, s{s_p8}, v{cRA}\nv_add_u32 v{vTA}, s{s_p8}, v{cTA}"] + rec_read(), c2: oh2_read() + m_b(), c3: W[:3]},
          [(c3, W[3:]), (45, pr), (59, [f"s_cmp_lg_u32 s{s_flush}, 0"])])
    e("s_cbranch_scc1 K_flush\nK_flushb:")
    phase(PRE1, gemm1(PRE0, 0, OH1B), seg(ACC0),
          {0: [lambda: e.wvm('dma')] + hs_read() + idx_read(0), 5: [lambda: e.wds('oh2')], hw: [lambda: e.wds('idx')] + dma()},
          [(53, [f"s_cmp_gt_u32 s{s_cntCur}, 32", f"s_cselect_b32 s{s_t0}, 1, s{s_cntN}", f"s_cmp_eq_u32 s{s_t0}, 0"])])
    e("s_cbranch_scc1 K_drain")
    M = misc()
    phase(PRE0, gemm1(PRE1, 1, OH1B), seg(ACC1),
          {c2: oh2_read() + M[:1], c4_: [lambda: e.wvm('ps')] + M[1:]}, [(19, aw_cond())])
    phase(PRE1, gemm1(PRE0, 0, OH1A), seg(ACC0),
          {0: [lambda: e.wvm('dma')] + hs_read() + idx_read(256) + [lambda: e.wds('oh1')], hw: [lambda: e.wds('idx')] + dma()},
          [(45, adv + [f"s_cmp_lg_u32 s{s_cntN}, 0"])])
    e("s_cbranch_scc1 K_loop")
    assert e.vm == ['dma'] * 4, e.vm
    def xf(l):
        if opt.get('x_novm') and ('buffer_load' in l or 'vmcnt' in l): return False
        if opt.get('x_nods') and ('_tr_' in l or 'ds_read_b128' in l or 'ds_write' in l): return False
        rm = {'hs': [f"ds_read_b128 v[{HS+4*i}:" for i in range(4)], 'oh2': [f"ds_read_b64_tr_b16 v[{OH2+2*i}:" for i in range(4)],
              'aw': [f"ds_read_b64_tr_b16 v[{AW+2*i}:" for i in range(4)], 'pd': [f"ds_read_b128 v[{PD}:"],
              'oh1': [f"ds_read_b128 v[{OH1A}:", f"ds_read_b128 v[{OH1B}:"], 'mw': ["ds_write_b64"], 'dma': [" lds"], 'ps': ["dwordx3"],
              'mf': ['v_mfma'], 'tr': ['v_exp', 'v_rcp'], 'idx': [f"ds_read_u16 v{IDX+2*j}," for j in range(4)], 'm0': [' m0,'],
              'vmw': ['vmcnt'], 'pk': ['v_pk_'], 'cvt': [f"v_cvt_pk_bf16_f32 v{MR+i}," for i in range(8)], 'perm': ['permlane'],
              'seg': [f"v_mfma_f32_32x32x16_bf16 v[{ACC0}:", f"v_mfma_f32_32x32x16_bf16 v[{ACC1}:"]}
        for k in str(opt.get('x_rm', '')).split('+'):
            if k in rm and any(t in l for t in rm[k]): return False
        return True
    e.L = e.L[:loop_start] + [l for l in e.L[loop_start:] if xf(l)]
    e("K_drain:\ns_nop 0")
    stamp('loop')
    if opt.get('stamp'): e(f"v_writelane_b32 v{vST}, s{s_dbg}, 28")
    for x in seg(ACC1): e(x)
    e(f"ds_write_b64 v{vMA}, v[{ZQ}:{ZQ+1}]")
    e("s_nop 7\ns_nop 3")
    flush(s_nbCur)
    e("K_wavedone:")
    e("s_setprio 0")
    e("s_waitcnt vmcnt(0) lgkmcnt(0)")
    stamp('drain')
    e("s_barrier")
    stamp('B3')
    dreg = lambda k: (PRE0 + 4 * k) if k < 8 else (ACC0 + 4 * (k - 8))
    aF = T0
    e(f"ds_read_b32 v{aF}, v{ZQ} offset:{L_FLAG}")
    for k in range(16): e(f"ds_read_b128 {vr(dreg(k),4)}, v{aA} offset:{128*(k>>2)+16*(k&3)}")
    e(f"ds_read_b64 {vr(PD,2)}, v{aPA}\nds_read_b32 v{PD+2}, v{aPO} offset:{L_POSD}")
    e(f"s_waitcnt lgkmcnt(14)\nv_readfirstlane_b32 s{s_t0}, v{aF}")
    for k in range(16):
        if k % 4 == 0 and k: e(f"s_waitcnt lgkmcnt({14-k})")
        r = dreg(k)
        e(f"v_cvt_f32_f64 v{r}, {vr(r,2)}\nv_cvt_f32_f64 v{r+1}, {vr(r+2,2)}")
        if k == 0: e(f"s_cmp_lg_u32 s{s_t0}, 0\ns_cbranch_scc1 K_more")
        if k: e(f"v_cvt_pk_bf16_f32 v{HS+k-1}, v{dreg(k-1)}, v{dreg(k-1)+1}")
        if k % 4 == 1 and k > 4: e(mfma(DH, WHM + 4 * (k // 4 - 1), HS + 4 * (k // 4 - 1), DH))
    e(f"v_cvt_pk_bf16_f32 v{HS+15}, v{dreg(15)}, v{dreg(15)+1}")
    e(f"s_waitcnt lgkmcnt(0)\nv_cvt_f32_f64 v{PD}, {vr(PD,2)}")
    e(mfma(DH, WHM + 12, HS + 12, DH))
    e(f"""
    v_add_f32 v{PD}, v{PD}, v{PD+2}
    v_cvt_pk_bf16_f32 v{PD}, v{PD}, v{PD}
    buffer_store_short v{PD}, v{oP}, {sr(sOP,4)}, 0 offen{OF}
    """)
    e("s_nop 7\ns_nop 1")
    X = TMP
    if not dhs:
        for i in range(0, 16, 2): e(f"v_pk_mul_f32 {vr(X+i,2)}, {vr(DH+i,2)}, {sr(sC,2)}")
    for i in range(16): e(f"v_exp_f32 v{X+i}, v{(DH if dhs else X)+i}")
    for i in range(0, 16, 2): e(f"v_pk_add_f32 {vr(X+i,2)}, {vr(X+i,2)}, 1.0 op_sel_hi:[1,0]")
    for i in range(16): e(f"v_rcp_f32 v{X+i}, v{X+i}")
    for hf in range(2):
        if dhs:
            for i in range(8 * hf, 8 * hf + 8, 2): e(f"v_pk_mul_f32 {vr(X+i,2)}, {vr(DH+i,2)}, {vr(X+i,2)}")
            for i in range(8 * hf, 8 * hf + 8, 2): e(f"v_pk_fma_f32 {vr(X+i,2)}, {vr(X+i,2)}, {sr(sC,2)}, {vr(RS+i,2)}")
        else:
            for i in range(8 * hf, 8 * hf + 8, 2): e(f"v_pk_fma_f32 {vr(X+i,2)}, {vr(DH+i,2)}, {vr(X+i,2)}, {vr(RS+i,2)}")
        for i in range(4 * hf, 4 * hf + 4): e(f"v_cvt_pk_bf16_f32 v{HS+i}, v{X+2*i}, v{X+2*i+1}")
        e(f"ds_write_b128 v{aW+hf}, {vr(HS+4*hf,4)}")
    e(f"ds_read_b128 {vr(HS+8,4)}, v{aR}\nds_read_b128 {vr(HS+12,4)}, v{aR} offset:1024")
    spin(2)
    stamp('epi'); rt(25)
    fin(s_b, s_w, 8, sWS, WS_STAMP, T0 + 1)
    e(f"""
    s_waitcnt lgkmcnt(1)
    buffer_store_dwordx4 {vr(HS+8,4)}, v{nd}, {sr(sOUT,4)}, 0 offen{OF}
    s_waitcnt lgkmcnt(0)
    buffer_store_dwordx4 {vr(HS+12,4)}, v{nd2}, {sr(sOUT,4)}, 0 offen offset:2048{OF}
    K_fin:
    """)
    if opt.get('x_pad') == 'fin': e("s_waitcnt vmcnt(0)"); stamp('fin')
    e("K_end:\ns_endpgm")
    e("K_flush:")
    flush(s_nbOld)
    e("s_branch K_flushb")
    for t in tail: e(t)
    e(f"""
    K_reflg:
    s_add_u32 s63, s63, 1
    s_cmp_gt_u32 s63, 0x40000
    s_cbranch_scc1 K_flgok
    s_sleep 4
    buffer_load_dwordx2 {vr(FLV,2)}, v{aFL}, {sr(sWS,4)}, s62 offen{SC}
    s_branch K_flg
    """)
    e("K_repoll:")
    if opt.get('sleep', 4): e(f"s_sleep {opt.get('sleep', 4)}")
    for i in range(4):
        e(f"s_mov_b64 exec, {sr(4+2*i,2)}\nbuffer_load_dwordx2 {vr(OFFV+2*i,2)}, v{tA}, {sr(sWS,4)}, s{16+i} offen{SC}")
    e("s_mov_b64 exec, -1\ns_branch K_poll")
    e(f"K_setflag:\nv_mov_b32 v{tA}, 1\nv_mov_b32 v{tB}, {L_FLAG}\nds_write_b32 v{tB}, v{tA}\ns_waitcnt lgkmcnt(0)\ns_branch K_flagset")
    def zero_hist():
        e(f"""
        v_cmp_gt_u32 vcc, 65, v0
        v_lshlrev_b32 v{tA}, 4, v0
        s_nop 0
        s_mov_b64 exec, vcc
        ds_write_b128 v{tA}, {vr(ZQ,4)} offset:{L_HIST}
        s_mov_b64 exec, -1
        s_waitcnt lgkmcnt(0)
        s_barrier
        """)
    if epos == 1:
        e(f"K_skip:\ns_cmp_lg_u32 s{s_done}, 0\ns_cbranch_scc1 K_wavedone")
        epi_consts()
        e("s_branch K_wavedone")
    e("K_retry:\ns_waitcnt lgkmcnt(0)\ns_barrier")
    zero_hist()
    e(f"s_mov_b32 s{s_take}, 8\ns_mov_b32 s{sMV}, 0x0f0f0f0f\ns_mov_b32 s{sMV+1}, 0x0f0f0f0f")
    for i in range(4):
        e(f"s_mov_b64 {sr(sMASK+8*i+4,2)}, 0\ns_mov_b64 {sr(sMASK+8*i+6,2)}, 0")
        e(f"s_and_b64 {sr(sMASK+8*i,2)}, {sr(sMASK+8*i,2)}, {sr(sMV,2)}\ns_and_b64 {sr(sMASK+8*i+2,2)}, {sr(sMASK+8*i+2,2)}, {sr(sMV,2)}")
    e("s_branch K_hist")
    e("K_more:\ns_waitcnt lgkmcnt(0)\ns_barrier")
    zero_hist()
    e(mfma(ACC0, ZQ, ZQ)); e(mfma(ACC1, ZQ, ZQ))
    for r in range(16): e(f"v_mov_b32 v{OH1A+r}, 0")
    e(f"s_add_u32 s{s_done}, s{s_done}, s{s_take}\ns_mov_b32 s{s_take}, 32")
    e.vm = []
    offs_pre(); offs_loads(); rec_pre(); rec_loads(True)
    e("s_branch K_hist")
    s = HEADER + f"; @launch grid=({NW},1,1) block=(512,1,1) lds={LDS}\n"
    s += '.amdgcn_target "amdgcn-amd-amdhsa--gfx950"\n.text\n' + e.text()
    s += KD.format(name=nm, vgpr=256, acc=256, sgpr=102)
    return s

if __name__ == "__main__":
    opt = {}
    for a in sys.argv[2:]:
        k, _, v = a.partition("="); opt[k] = (int(v) if v.isdigit() else v) if v else 1
    open(sys.argv[1], "w").write(gen(opt))
    if opt.get('stamp'): print(",".join(opt['names']))
```

```python
import sys
from gen import Em, vr, sr, srd, wave_scan, KD, mk_stamp, mfma, HEADER, LOG2E, NLOG2E, LN2

N = 25000; E = 800000; NPB = 98; NW = 256; CH = 3128; NQ = CH // 4
RECB = 15744; DOFF = 12544
WS_REC = 0; WS_OFF = 0x620000; WS_POS = 0x6A0000; WS_TOK = 0x710000; WS_FLG = 0x720000; WS_B = 0x800000; WS_SZ = 0xC00000; WS_STAMP = 0x780000
CAP = 3584
L_REC = 0; L_H1 = 25088; L_B1 = 26112
L_POSD = 29184; L_OHT = 31232; L_HIST = 31392; L_BASE = 31904; L_FLAG = 32416; L_WDA = 32448
L_MM = 33664; L_ACC = 50048; L_PACC = 105488; L_ATAB = 108848; L_STG = 127360; LDS = 160128
L_W = L_ACC
ACS = 528; ATS = 144
ID = 2; SCR = 10; DH = 34; WHM = 50; HR = 66; ACC0 = 74; ACC1 = 90; PRE0 = 106; PRE1 = 122; TMP = 138; MR = 154
HS = 162; AW = 178; OH1A = 186; OH1B = 190; OH2 = 194; IDX = 202; ZQ = 210; RW = 214; PS = 216; vPI = 219
PD = 220; WP = 224; vMA = 226; vRA = 227; vTA = 228; cRA = 229; cTA = 230; cHS = 231; cM = 235; cMW = 237
vAWA = 238; cAW = 239; cF = 240; cP = 241; wx0 = 242; wx1 = 243; vMX = 244; T0 = 245; vST = 255
sDST = 28; sSRC = 32; sEA = 36; sWS = 40; sH = 44; sPF = 48; sOUT = 52; sOP = 56; sDBG = 60
sWE = 64; sWH = 68; sPOS = 72; sWX = 76; sM0 = 80; sM1 = 82; sMASK = 4
s_w = 3; s_b = 84; s_nb0 = 85; s_rb = 86; s_cb = 87; s_stg = 88; s_t0 = 89; s_t1 = 90; s_t2 = 91
sC = 92; sLO = 94; sQ = 96; s_done = 98; s_take = 99; s_T = 100; s_c = 101
s_p = 64; s_pn = 65; s_end = 66; s_p8 = 67; s_lim = 68; s_nbN = 69; s_nbCur = 70; s_nbOld = 71
s_flN = 72; s_flush = 73; s_cntN = 74; s_cntCur = 75; s_need = 76; s_mkB = 77; sMK = 78; sMV = 80; s_o = 36; s_dbg = 82; L_TOK = L_FLAG + 16; L_BST = L_STG + 16384

NLN2 = LN2 | 0x80000000
s_rem = 83

def gen(opt):
    opt.setdefault('pfp', 1); opt.setdefault('pfb', 0); opt.setdefault('sleep', 0); opt.setdefault('cpf', 21)
    fold = opt.get('fold', 1)
    dhs = fold and opt.get('dhs', 0)
    pair = fold and opt.get('pair', 0)
    assert not (pair and dhs)
    import struct as _st
    KSC = 0x21800000
    NLN2 = globals()['NLN2'] if not pair else _st.unpack('<I', _st.pack('<f', -0.6931471805599453 * 2.0 ** -60))[0]
    ordr = opt.get('ord', 1)
    FL = {0: "", 1: " nt", 2: " sc1", 3: " sc1 nt", 4: " sc0 sc1 nt", 5: " sc0 sc1"}
    EN = FL[opt.get('en', 3)]; ON = FL[opt.get('on', 3)]; RN = FL[opt.get('rn', 2)]; SN = FL[opt.get('sn', 2)]; BN = FL[opt.get('bn', 2)]
    SC = " sc1"
    OF = {0: "", 1: " sc1", 2: " nt", 3: " sc0 sc1", 4: " sc1 nt", 5: " sc0 sc1 nt"}[opt.get("of", 5)]
    e = Em(); nm = "standalone__cheap_equivariant_egnn__graph_kernel"
    stamp, real, fin = mk_stamp(e, opt, vST)
    e(f".globl {nm}\n.p2align 8\n.type {nm},@function\n{nm}:")
    cpf = ""
    if opt.get('cpf', 0):
        n2 = opt.get('cpf')
        cpf = f"s_getpc_b64 s[26:27]\nv_lshlrev_b32 v{HS}, 7, v1\nv_add_u32 v{HS+1}, 0x2000, v{HS}\nglobal_load_dword v{HS+2}, v{HS}, s[26:27] offset:512\n"
        cpf += f"s_mov_b64 exec, {hex((1 << n2) - 1)}\nglobal_load_dword v{HS+3}, v{HS+1}, s[26:27] offset:512\ns_mov_b64 exec, -1"
    o8 = T0 + 4; t8 = T0 + 5
    rho = PD; hb = PD + 1; f3 = PD + 2; r4 = PD + 3; slot = WP; g1 = WP + 1; c4 = RW; tq = RW + 1
    e(f"""
    s_cmp_ge_u32 s2, {NW}
    s_cbranch_scc1 K_end
    {'s_memrealtime s[26:27]' if opt.get('x_pad') else ''}
    s_load_dwordx16 s[4:19], s[0:1], 0
    s_load_dwordx4 s[20:23], s[0:1], 64
    s_load_dwordx2 s[24:25], s[0:1], 80
    v_lshrrev_b32 v{T0}, 6, v0
    v_and_b32 v1, 63, v0
    v_readfirstlane_b32 s{s_w}, v{T0}
    s_mov_b32 s{s_c}, s2
    s_and_b32 s{s_b}, s2, 7
    s_lshl_b32 s{s_b}, s{s_b}, 5
    s_lshr_b32 s{s_t0}, s2, 3
    s_add_u32 s{s_b}, s{s_b}, s{s_t0}
    s_mul_i32 s{s_nb0}, s{s_b}, {NPB}
    s_lshr_b32 s{s_rb}, s{s_w}, 1
    s_and_b32 s{s_cb}, s{s_w}, 1
    s_mul_i32 s{s_t0}, s2, {NQ}
    v_add_u32 v{T0}, s{s_t0}, v0
    v_add_u32 v{T0+1}, 0x200, v{T0}
    s_mov_b32 s{s_t1}, {E//4}
    v_cmp_gt_u32 {sr(sM0,2)}, s{s_t1}, v{T0}
    v_cmp_gt_u32 {sr(sM1,2)}, s{s_t1}, v{T0+1}
    v_cmp_gt_u32 vcc, {NQ-512}, v0
    v_lshlrev_b32 v{ID+2}, 3, v{T0}
    v_lshlrev_b32 v{ID+3}, 3, v{T0+1}
    v_lshlrev_b32 v{ID}, 4, v{T0}
    v_lshlrev_b32 v{ID+1}, 4, v{T0+1}
    s_and_b64 {sr(sM1,2)}, {sr(sM1,2)}, vcc
    v_lshrrev_b32 v{o8}, 3, v1
    v_and_b32 v{t8}, 7, v1
    v_mov_b32 v{ZQ}, 0
    v_mov_b32 v{ZQ+1}, 0
    v_mov_b32 v{ZQ+2}, 0
    v_mov_b32 v{ZQ+3}, 0
    v_lshlrev_b32 v{tq}, 4, v0
    s_cmp_lg_u32 s{s_w}, 7
    s_cbranch_scc1 K_nh1
    ds_write_b128 v{tq}, {vr(ZQ,4)} offset:{L_H1-7*1024}
    {cpf}
    K_nh1:
    s_waitcnt lgkmcnt(0)
    s_barrier
    """)
    def spin(tag):
        if opt.get('x_spin') == tag:
            e(f"""
            s_memtime s[0:1]
            s_waitcnt lgkmcnt(0)
            s_add_u32 s2, s0, 20000
            KX_spin:
            s_memtime s[0:1]
            s_waitcnt lgkmcnt(0)
            s_sub_u32 s0, s0, s2
            s_cmp_lt_i32 s0, 0
            s_cbranch_scc1 KX_spin
            """)
    stamp0 = stamp
    def stamp(name):
        stamp0(name)
        if opt.get('x_pad') == name:
            e(f"""
            KX_pad:
            s_memrealtime s[0:1]
            s_waitcnt lgkmcnt(0)
            s_sub_u32 s0, s0, s2
            s_cmp_lt_u32 s0, 5000
            s_cbranch_scc1 KX_pad
            """)
    if opt.get('x_pad'): e("s_mov_b32 s2, s26")
    spin(1)
    real(); stamp('start')
    def rt(lane):
        if opt.get('stamp'): e(f"s_memrealtime s[0:1]\ns_waitcnt lgkmcnt(0)\nv_writelane_b32 v{vST}, s0, {lane}")


    D0, S0, E0, D1, S1, E1 = 106, 110, 114, 116, 120, 124
    REC1 = 126; HA = 142; RK = 150; SCN = 158; PO = OH2; TK = OH1A; RWV = SCR + 16
    vRO = 251; vBG = 252; vBW = 253; nd = vBG; nd2 = 254
    sHR = sH; sBS = sPOS
    HA4 = AW; vONE = PS + 1; vL16 = PS + 2
    aE = ID
    HO = [HR, HR + 4, ACC1, ACC1 + 4]
    def rd(tag, dst, off):
        for s_ in range(4):
            for t in range(2): e.d(tag, f"ds_read_b64_tr_b16 {vr(dst+4*s_+2*t,2)}, v{T0+1+(s_>>1)} offset:{off+1024*(s_&1)+512*t}")
    def mm(d, a):
        for s_ in range(4): e(mfma(d, a + 4 * s_, HO[s_], None if s_ == 0 else d))
    def scale_pack(src):
        if fold:
            for r in range(16): e(f"v_mul_f32 v{src+r}, s7, v{src+r}")
        for r in range(8): e(f"v_cvt_pk_bf16_f32 v{AW+r}, v{src+2*r}, v{src+2*r+1}")
    srd(e, sDST, 12, 13, E * 4)
    e.v('dst', f"buffer_load_dwordx4 {vr(D0,4)}, v{aE}, {sr(sDST,4)}, 0 offen{EN}")
    e(f"s_mov_b64 exec, {sr(sM1,2)}")
    e.v('dst', f"buffer_load_dwordx4 {vr(D1,4)}, v{aE+1}, {sr(sDST,4)}, 0 offen{EN}")
    srd(e, sWS, 24, 25, WS_SZ)
    e(f"""
    s_lshl_b32 s{s_t0}, s{s_c}, 3
    s_add_u32 s{s_t0}, s{s_t0}, s{s_w}
    s_cmp_eq_u32 s{s_t0}, 5
    s_cselect_b64 {sr(26,2)}, 1, 0
    s_mov_b32 s{s_t2}, {WS_TOK}
    s_mov_b64 exec, {sr(26,2)}
    """)
    e.v('dst', f"buffer_load_dwordx2 {vr(TK,2)}, v{ZQ}, {sr(sWS,4)}, s{s_t2} offen{SC}")
    e("s_mov_b64 exec, -1")
    srd(e, sHR, 4, 5, N, stride=128); srd(e, sWE, 14, 15, 130 * 128)
    e(f"""
    s_lshl_b32 s12, s{s_w}, 11
    s_lshl_b32 s13, s{s_w}, 10
    s_mov_b32 s14, 8192
    s_lshl_b32 s{s_t0}, s{s_w}, 4
    s_add_u32 s{s_t0}, s{s_t0}, s{s_nb0}
    v_lshrrev_b32 v{vPI}, 4, v1
    v_xor_b32 v{vPI}, v{t8}, v{vPI}
    v_lshlrev_b32 v{IDX+1}, 4, v{vPI}
    v_add_u32 v{IDX}, s{s_t0}, v{o8}
    v_xor_b32 v{IDX+3}, 64, v{IDX+1}
    v_add_u32 v{IDX+2}, 8, v{IDX}
    v_mov_b32 v{IDX+5}, v{IDX+1}
    """)
    if opt.get('own98', 1):
        e(f"""
        s_add_u32 s{s_t0}, s{s_nb0}, {NPB}
        v_cmp_gt_u32 vcc, s{s_t0}, v{IDX}
        v_cmp_gt_u32 {sr(0,2)}, s{s_t0}, v{IDX+2}
        v_mov_b32 v{vPI}, 0x100000
        v_cndmask_b32 v{IDX}, v{vPI}, v{IDX}, vcc
        v_cndmask_b32 v{IDX+2}, v{vPI}, v{IDX+2}, {sr(0,2)}
        """)
    def own_loads():
        e(f"s_add_u32 m0, s12, {L_STG}\ns_nop 0")
        e.v('own', f"buffer_load_dwordx4 {vr(IDX,2)}, {sr(sHR,4)}, 0 idxen offen{ON} lds")
        e(f"s_add_u32 m0, s12, {L_STG+1024}\ns_nop 0")
        e.v('own', f"buffer_load_dwordx4 {vr(IDX+2,2)}, {sr(sHR,4)}, 0 idxen offen{ON} lds")
        e(f"s_add_u32 m0, s13, {L_W+8192}\ns_nop 0")
        e.v('own', f"buffer_load_dwordx4 v{tq}, {sr(sWE,4)}, s14 offen lds")
    oe = opt.get('oe', 1)
    if not ordr or oe in (1, 2): own_loads()
    def src_loads():
        e.v('src', f"buffer_load_dwordx4 {vr(S0,4)}, v{aE}, {sr(sSRC,4)}, 0 offen{EN}")
        e.v('src', f"buffer_load_dwordx2 {vr(E0,2)}, v{aE+2}, {sr(sEA,4)}, 0 offen{EN}")
        e(f"s_mov_b64 exec, {sr(sM1,2)}")
        e.v('src', f"buffer_load_dwordx4 {vr(S1,4)}, v{aE+1}, {sr(sSRC,4)}, 0 offen{EN}")
        e.v('src', f"buffer_load_dwordx2 {vr(E1,2)}, v{aE+3}, {sr(sEA,4)}, 0 offen{EN}")
        e(f"s_cmp_ge_u32 s{s_w}, 6\ns_cselect_b64 exec, -1, 0")
        for k in range(3): e.v('src', f"buffer_load_ushort v{PO+k}, v{PO+6}, {sr(sPOS,4)}, 0 offen offset:{2*k}")
        e(f"s_cmp_eq_u32 s{s_w}, 5\ns_cselect_b64 exec, -1, 0\ns_mov_b32 s{s_t0}, 16384")
        for k in range(2): e.v('src', f"buffer_load_ushort v{PO+k}, v{PO+7}, {sr(sWE,4)}, s{s_t0} offen offset:{128*k}")
        e("s_mov_b64 exec, -1")
    stamp('iss')
    srd(e, sSRC, 10, 11, E * 4); srd(e, sEA, 8, 9, E * 2)
    srd(e, sPOS, 6, 7, N * 6); srd(e, sDBG, 22, 23, 256)
    e(f"""
    v_mov_b32 v{IDX+7}, v{IDX+3}
    v_and_b32 v{rho}, 31, v1
    v_lshrrev_b32 v{hb}, 5, v1
    v_bfe_u32 v{f3}, v1, 1, 3
    v_bfe_u32 v{r4}, v1, 2, 2
    v_bfe_u32 v{g1}, v1, 4, 1
    v_and_b32 v{c4}, 3, v1
    v_subrev_u32 v{PO+5}, 0x180, v0
    v_add_u32 v{PO+4}, s{s_nb0}, v{PO+5}
    v_mul_u32_u24 v{PO+6}, 6, v{PO+4}
    v_lshlrev_b32 v{PO+7}, 1, v1
    v_cmp_gt_u32 vcc, 152, v0
    ds_write_b128 v{tq}, {vr(ZQ,4)} offset:{L_OHT}
    ds_write_b128 v{tq}, {vr(ZQ,4)} offset:{L_OHT+8192}
    s_mov_b64 exec, vcc
    ds_write_b128 v{tq}, {vr(ZQ,4)} offset:{L_OHT+16384}
    s_mov_b64 exec, -1
    """)
    if ordr and oe != 1: src_loads()
    if oe == 3: own_loads()
    srd(e, sWH, 18, 19, 128 * 128); srd(e, sWX, 16, 17, 128)
    srd(e, sPF, 24, 25, N + 216, add=WS_POS, stride=16)
    srd(e, sOUT, 20, 21, N * 128); srd(e, sOP, 20, 21, N * 6, add=N * 128)
    if opt.get('tlb'):
        st_ = opt.get('tlb')
        e(f"""
        v_lshlrev_b32 v{HS+4}, {st_}, v1
        v_lshlrev_b32 v{HS+5}, {st_-7}, v1
        s_cmp_eq_u32 s{s_w}, 7
        s_cselect_b64 exec, -1, 0
        """)
        e.v('src', f"buffer_load_dword v{HS+6}, v{HS+5}, {sr(sHR,4)}, 0 idxen")
        e.v('src', f"buffer_load_dword v{HS+7}, v{HS+4}, {sr(sWS,4)}, 0 offen")
        e.v('src', f"buffer_load_dword v{HS+8}, v{HS+4}, {sr(sOUT,4)}, 0 offen")
        e("s_mov_b64 exec, -1")
    e(f"""
    s_mov_b32 s4, 42800
    s_mov_b32 s5, -98
    s_mov_b32 s6, 0xffff0000
    s_mov_b32 s7, {NLOG2E}
    s_mul_i32 s8, s{s_c}, {RECB}
    s_add_u32 s9, s8, 8192
    v_mov_b32 v{vONE}, 1
    v_lshlrev_b32 v{vL16}, 4, v1
    v_lshl_or_b32 v{slot}, v{g1}, 2, v{c4}
    v_lshl_or_b32 v{T0}, v{hb}, 3, v{r4}
    v_lshlrev_b32 v{T0}, 7, v{T0}
    v_and_b32 v{T0+1}, 1, v{c4}
    v_lshrrev_b32 v{T0+2}, 1, v{c4}
    v_lshlrev_b32 v{T0+1}, 5, v{T0+1}
    v_lshl_or_b32 v{T0+1}, v{g1}, 4, v{T0+1}
    v_lshl_or_b32 v{T0+1}, v{T0+2}, 3, v{T0+1}
    s_lshl_b32 s{s_t0}, s{s_cb}, 6
    s_add_u32 s{s_t0}, s{s_t0}, {L_W}
    v_add3_u32 v{T0+3}, v{T0}, v{T0+1}, s{s_t0}
    v_lshl_add_u32 v{T0+1}, v{hb}, 10, v{T0+3}
    s_lshl_b32 s{s_t0}, s{s_cb}, 12
    s_xor_b32 s{s_t1}, s{s_t0}, 4096
    v_add_u32 v{T0+2}, s{s_t1}, v{T0+1}
    v_add_u32 v{T0+1}, s{s_t0}, v{T0+1}
    s_lshl_b32 s{s_t0}, s{s_rb}, 12
    s_add_u32 s{s_t1}, s{s_t0}, {L_STG}
    v_lshl_add_u32 v{HA4+5}, v{rho}, 7, s{s_t1}
    s_lshl_b32 s{s_t1}, s{s_cb}, 2
    v_lshlrev_b32 v{HA4+4}, 1, v{hb}
    v_xor_b32 v{HA4+4}, s{s_t1}, v{HA4+4}
    v_xor_b32 v{HA4+4}, v{HA4+4}, v{f3}
    """)
    for s_ in range(4):
        k = 4 * (s_ >> 1) + (s_ & 1)
        e(f"v_xor_b32 v{HA4+s_}, {k}, v{HA4+4}\nv_lshl_add_u32 v{HA4+s_}, v{HA4+s_}, 4, v{HA4+5}")
    e(f"""
    s_add_u32 s{s_t1}, s12, {L_BST}
    v_and_b32 v{T0}, 3, v{f3}
    v_lshlrev_b32 v{vBW}, 1, v{hb}
    v_xor_b32 v{vBW}, v{vBW}, v{T0}
    v_lshlrev_b32 v{vBW}, 4, v{vBW}
    v_lshl_add_u32 v{vBW}, v{rho}, 6, v{vBW}
    v_add_u32 v{vBW}, s{s_t1}, v{vBW}
    v_add_u32 v{ID+5}, s{s_t1}, v{vL16}
    s_lshl_b32 s{s_t0}, s{s_rb}, 5
    v_lshrrev_b32 v{T0}, 2, v1
    v_add_u32 v{T0}, s{s_t0}, v{T0}
    v_cmp_gt_u32 vcc, {NPB}, v{T0}
    s_movk_i32 s{s_t1}, {NPB-16}
    v_cmp_gt_u32 {sr(18,2)}, s{s_t1}, v{T0}
    v_add_u32 v{T0}, s{s_nb0}, v{T0}
    v_xor_b32 v{vBG}, v{o8}, v1
    v_and_b32 v{vBG}, 3, v{vBG}
    v_lshlrev_b32 v{T0}, 7, v{T0}
    v_lshl_add_u32 v{T0}, v{vBG}, 4, v{T0}
    s_lshl_b32 s{s_t1}, s{s_cb}, 6
    v_add_u32 v{T0}, s{s_t1}, v{T0}
    v_mov_b32 v{vPI}, 0x1000000
    v_cndmask_b32 v{vBG}, v{vPI}, v{T0}, vcc
    v_cndmask_b32 v{nd2}, v{vPI}, v{T0}, {sr(18,2)}
    v_cmp_gt_u32 vcc, 468, v0
    v_lshlrev_b32 v{vRO}, 5, v1
    s_lshl_b32 s15, s{s_c}, 11
    s_add_u32 s15, s15, {WS_OFF}
    v_cndmask_b32 v{vPI}, v{vPI}, v{tq}, vcc
    v_lshlrev_b32 v{ID+4}, 1, v{rho}
    """)
    srcpos = opt.get('srcpos', 1) if (not ordr or oe == 1) else -1
    stamp('Ba')
    e.wvm('dst')
    stamp('dst')
    if srcpos == 1: src_loads()
    e(f"""
    s_mov_b64 exec, {sr(26,2)}
    s_cbranch_execz K_notok
    v_add_u32 v{TK}, 1, v{TK}
    v_add_u32 v{TK+1}, 1, v{TK+1}
    v_mov_b32 v{TK+4}, v{TK}
    v_lshl_or_b32 v{TK+5}, v{TK+1}, 24, 1
    buffer_store_dwordx2 {vr(TK+4,2)}, v{ZQ}, {sr(sDBG,4)}, 0 offen{SC}
    buffer_store_dwordx2 {vr(TK,2)}, v{ZQ}, {sr(sWS,4)}, s{s_t2} offen{SC}
    K_notok:
    """)
    for r, D in enumerate((D0, D1)):
        if r: e(f"s_mov_b64 exec, {sr(sM1,2)}\ns_cbranch_execz K_h1")
        else: e(f"s_mov_b64 exec, {sr(sM0,2)}")
        for k in range(4): e(f"v_mul_u32_u24 v{HA+4*r+k}, s4, v{D+k}")
        for k in range(4): e(f"v_lshrrev_b32 v{HA+4*r+k}, 22, v{HA+4*r+k}")
        for k in range(4): e(f"v_mad_i32_i24 v{REC1+8*r+2*k+1}, v{HA+4*r+k}, s5, v{D+k}")
        for k in range(4): e(f"v_lshlrev_b32 v{HA+4*r+k}, 2, v{HA+4*r+k}")
        for k in range(4): e(f"ds_add_rtn_u32 v{RK+4*r+k}, v{HA+4*r+k}, v{vONE} offset:{L_H1}")
    e("K_h1:\ns_mov_b64 exec, -1")
    if srcpos == 2: src_loads()
    def w1_loads():
        e(f"s_add_u32 m0, s13, {L_W}\ns_nop 0")
        e.v('w1', f"buffer_load_dwordx4 v{tq}, {sr(sWE,4)}, 0 offen lds")
        e.v('w1', f"buffer_load_ushort v{wx0}, v{ID+4}, {sr(sWX,4)}, 0 offen")
        e.v('w1', f"buffer_load_ushort v{wx1}, v{ID+4}, {sr(sWX,4)}, 0 offen offset:64")
    def wh_loads():
        if ordr != 4: tok_load()
        e(f"s_add_u32 m0, s12, {L_W+16384}\ns_nop 0")
        e.v('wh', f"buffer_load_dwordx4 v{vL16}, {sr(sWH,4)}, s12 offen lds")
        e.v('wh', f"buffer_load_dwordx4 v{vL16}, {sr(sWH,4)}, s12 offen offset:1024 lds")
    def tok_load():
        e(f"s_cmp_eq_u32 s{s_w}, 4\ns_cselect_b64 exec, -1, 0")
        e.v('tok', f"buffer_load_dwordx2 {vr(TK,2)}, v{ZQ}, {sr(sDBG,4)}, 0 offen{SC}")
        e("s_mov_b64 exec, -1")
    def b_reads():
        for s_ in range(4): e.d('ho', f"ds_read_b128 {vr(HO[s_],4)}, v{HA4+s_}")
        rd('w2', SCR, 8192)
    def b_out(pre):
        scale_pack(ACC0)
        e(f"ds_write_b128 v{vBW}, {vr(AW,4)}\nds_write_b128 v{T0}, {vr(AW+4,4)}")
        e(f"ds_read_b128 {vr(ACC0,4)}, v{ID+5}\nds_read_b128 {vr(ACC0+4,4)}, v{ID+5} offset:1024")
        pre()
        srd(e, sBS, 24, 25, N * 128, add=WS_B)
        e("s_waitcnt lgkmcnt(1)")
        e.v('bst', f"buffer_store_dwordx4 {vr(ACC0,4)}, v{nd}, {sr(sBS,4)}, 0 offen{BN}")
        e("s_waitcnt lgkmcnt(0)")
        e.v('bst', f"buffer_store_dwordx4 {vr(ACC0+4,4)}, v{nd2}, {sr(sBS,4)}, 0 offen offset:2048{BN}")
        e.ds = []
    if not ordr: e.wvm('own')
    e("s_waitcnt lgkmcnt(0)\ns_barrier")
    e.ds = []
    stamp('Bb')
    e.d('h', f"ds_read_b128 {vr(SCN,4)}, v{vL16} offset:{L_H1}")
    late = ordr == 4
    if not late and not oe: own_loads()
    e.wds('h')
    e(f"""
    v_add_u32 v{SCN+4}, v{SCN}, v{SCN+1}
    v_add_u32 v{SCN+5}, v{SCN+4}, v{SCN+2}
    v_add_u32 v{SCN+6}, v{SCN+5}, v{SCN+3}
    v_mov_b32 v{SCN+7}, v{SCN+6}
    """)
    wave_scan(e, SCN + 7)
    e(f"""
    v_sub_u32 v{SCN+8}, v{SCN+7}, v{SCN+6}
    v_add_u32 v{SCN+9}, v{SCN+8}, v{SCN}
    v_add_u32 v{SCN+10}, v{SCN+8}, v{SCN+4}
    v_add_u32 v{SCN+11}, v{SCN+8}, v{SCN+5}
    """)
    e.d('bw', f"ds_write_b128 v{vL16}, {vr(SCN+8,4)} offset:{L_B1}")
    e(f"s_mov_b64 exec, {sr(sM0,2)}")
    for k in range(4): e.d('b0', f"ds_read_b32 v{HA+k}, v{HA+k} offset:{L_B1}")
    e(f"s_mov_b64 exec, {sr(sM1,2)}")
    for k in range(4, 8): e.d('b1', f"ds_read_b32 v{HA+k}, v{HA+k} offset:{L_B1}")
    e("s_mov_b64 exec, -1")
    if not ordr:
        e.wds('w2')
        mm(ACC0, SCR)
    def rec_words():
        for r, (S, EE) in enumerate(((S0, E0), (S1, E1))):
            e(f"""
            v_lshl_or_b32 v{REC1+8*r}, v{EE}, 16, v{S}
            v_and_or_b32 v{REC1+8*r+2}, v{EE}, s6, v{S+1}
            v_lshl_or_b32 v{REC1+8*r+4}, v{EE+1}, 16, v{S+2}
            v_and_or_b32 v{REC1+8*r+6}, v{EE+1}, s6, v{S+3}
            """)
    if ordr:
        e.wvm('src'); rec_words()
    e.wds('b1')
    for k in range(8): e(f"v_add_u32 v{HA+k}, v{HA+k}, v{RK+k}")
    e(f"s_mov_b64 exec, {sr(sM0,2)}")
    for k in range(4): e(f"ds_write_b8 v{HA+k}, v{REC1+2*k+1} offset:{L_REC+DOFF}")
    e(f"s_mov_b64 exec, {sr(sM1,2)}")
    for k in range(4, 8): e(f"ds_write_b8 v{HA+k}, v{REC1+2*k+1} offset:{L_REC+DOFF}")
    e(f"s_mov_b64 exec, -1\nv_xor_b32 v{T0}, 16, v{vBW}")
    for k in range(8): e(f"v_lshlrev_b32 v{HA+k}, 2, v{HA+k}")
    if not ordr: b_out(wh_loads)
    stamp('scan')
    if not ordr:
        e.wvm('src'); rec_words()
    stamp('src')
    for r in range(2):
        e(f"s_mov_b64 exec, {sr(sM0 if r == 0 else sM1,2)}")
        for k in range(4 * r, 4 * r + 4): e(f"ds_write_b32 v{HA+k}, v{REC1+2*k} offset:{L_REC}")
    e("s_mov_b64 exec, -1")
    e(f"""
    s_cmp_lt_u32 s{s_w}, 6
    s_cbranch_scc1 K_nopf
    s_mov_b32 s{s_t0}, {N}
    v_cmp_gt_u32 vcc, {NPB}, v{PO+5}
    v_cmp_gt_u32 {sr(16,2)}, s{s_t0}, v{PO+4}
    v_lshlrev_b32 v{PO}, 16, v{PO}
    v_lshlrev_b32 v{PO+1}, 16, v{PO+1}
    v_lshlrev_b32 v{PO+2}, 16, v{PO+2}
    v_mov_b32 v{PO+3}, 0
    v_lshlrev_b32 v{PO+5}, 4, v{PO+5}
    ds_write_b128 v{PO+5}, {vr(PO,4)} offset:{L_POSD}
    s_and_b64 {sr(16,2)}, {sr(16,2)}, vcc
    K_nopf:
    """)
    nobx = opt.get('nobx', 0)
    if late: tok_load()
    elif ordr == 1:
        w1_loads(); wh_loads()
        if 'own' in e.vm: e.wvm('own')
    elif ordr == 2:
        w1_loads(); wh_loads()
    else: e.wvm('wh' if nobx else 'w1')
    e("s_waitcnt lgkmcnt(0)\ns_barrier")
    e.ds = []
    stamp('Bc')
    for r in range(2): e.d(f'c{r}', f"ds_read_b128 {vr(PRE0+4*r,4)}, v{tq} offset:{L_REC+8192*r}")
    if ordr == 1: b_reads()
    if not ordr: rd('w1', SCR, 0)
    for r in range(2):
        e.wds(f'c{r}')
        e.v('st', f"buffer_store_dwordx4 {vr(PRE0+4*r,4)}, v{tq if r < 1 else vPI}, {sr(sWS,4)}, s{8+r} offen{SN}")
    def posf_store():
        e(f"s_cmp_ge_u32 s{s_w}, 6\ns_cselect_b64 exec, {sr(16,2)}, 0")
        e.v('bst', f"buffer_store_dwordx4 {vr(PO,4)}, v{PO+4}, {sr(sPF,4)}, 0 idxen{SC}")
        e("s_mov_b64 exec, -1")
    def row_prep():
        e(f"""
        s_cmp_lg_u32 s{s_w}, 4
        s_cbranch_scc1 K_row_done
        s_mov_b32 s{s_t0}, 0
        K_tk:
        v_readfirstlane_b32 s{s_t1}, v{TK+1}
        s_add_u32 s{s_t0}, s{s_t0}, 1
        s_cmp_gt_u32 s{s_t0}, 0x40000
        s_cbranch_scc1 K_tkok
        s_bitcmp1_b32 s{s_t1}, 0
        s_cbranch_scc1 K_tkok
        buffer_load_dwordx2 {vr(TK,2)}, v{ZQ}, {sr(sDBG,4)}, 0 offen{SC}
        s_waitcnt vmcnt(0)
        s_branch K_tk
        K_tkok:
        v_and_b32 v{TK+1}, 0xff000000, v{TK+1}
        v_mov_b32 v{TK+2}, {L_TOK}
        ds_write_b64 v{TK+2}, {vr(TK,2)}
        """)
        for k in range(4):
            e(f"v_lshl_or_b32 v{RWV+2*k}, v{SCN+k}, 12, v{SCN+8+k}\nv_mov_b32 v{RWV+2*k+1}, v{TK}\nv_or_b32 v{RWV+2*k}, v{RWV+2*k}, v{TK+1}")

        e("K_row_done:")
    def row_store():
        e(f"s_cmp_eq_u32 s{s_w}, 4\ns_cselect_b64 exec, -1, 0")
        e.v('row', f"buffer_store_dwordx4 {vr(RWV,4)}, v{vRO}, {sr(sWS,4)}, s15 offen{SC}")
        e.v('row', f"buffer_store_dwordx4 {vr(RWV+4,4)}, v{vRO}, {sr(sWS,4)}, s15 offen offset:16{SC}")
        e("s_mov_b64 exec, -1")
    if not late:
        posf_store()
        e.wds('w2')
        mm(ACC0, SCR)
        e.wvm('wh')
        e("s_nop 6")
        row_prep()
        e("s_nop 2")
        b_out(lambda: None)
        stamp('Bx')
        e.wvm('st')
        e("s_barrier")
        stamp('Bd'); rt(27)
        row_store()
        nrow = 2
    else:
        own_loads(); posf_store(); w1_loads(); wh_loads()
        sv = list(e.vm); e.wvm('tok'); e.vm = sv
        row_prep()
        stamp('Bx')
        e.wvm('st')
        e("s_waitcnt lgkmcnt(0)\ns_barrier")
        stamp('Bd'); rt(27)
        row_store()
        e.wvm('wh')
        e("s_barrier")
        b_reads()
        e.wds('w2')
        mm(ACC0, SCR)
        rd('w1', SCR, 0)
        e("s_nop 4")
        b_out(lambda: None)
        nrow = 0
    e.d('tk', f"ds_read_b64 {vr(TK,2)}, v{ZQ} offset:{L_TOK}")
    if not late: rd('w1', SCR, 0)
    e.wds0()
    mm(ACC0, SCR)
    e(f"v_readfirstlane_b32 s60, v{TK}\nv_readfirstlane_b32 s61, v{TK+1}")
    srd(e, sH, 24, 25, N, add=WS_B - 3072, stride=128)
    e(f"""
    s_lshl_b32 s{s_t0}, s{s_rb}, 5
    v_add_u32 v{PS}, s{s_t0}, v{rho}
    v_mul_u32_u24 v{PS}, {ATS}, v{PS}
    s_lshl_b32 s{s_t0}, s{s_cb}, 6
    s_add_u32 s{s_t0}, s{s_t0}, {L_ATAB}
    v_lshl_add_u32 v{PS}, v{hb}, 5, v{PS}
    v_add_u32 v{PS}, s{s_t0}, v{PS}
    """)
    rd('wh', TMP, 16384)
    for s_ in range(4):
        for t in range(2): e.d('wm', f"ds_read_b64_tr_b16 {vr(WHM+4*s_+2*t,2)}, v{T0+3} offset:{24576+2048*s_+512*t}")
    scale_pack(ACC0)
    e.wds('wh')
    mm(DH, TMP)
    e(f"ds_write_b128 v{PS}, {vr(AW,4)}\nds_write_b128 v{PS}, {vr(AW+4,4)} offset:16")
    e(mfma(ACC0, ZQ, ZQ)); e(mfma(ACC1, ZQ, ZQ))
    e(f"""
    s_cmp_eq_u32 s{s_w}, 5
    s_cbranch_scc1 K_side5
    s_cmp_lg_u32 s{s_w}, 4
    s_cbranch_scc1 K_side_done
    v_mul_u32_u24 v{PO}, 18, v1
    v_mov_b32 v{PO+1}, 0x3f80
    s_mov_b64 exec, 0xff
    ds_write_b16 v{PO}, v{PO+1} offset:{L_OHT}
    s_mov_b64 exec, -1
    """)
    e("s_branch K_side_done\nK_side5:")
    if not fold:
        e(f"ds_write_b16 v{PO+7}, v{PO} offset:{L_WDA}\nds_write_b16 v{PO+7}, v{PO+1} offset:{L_WDA+ATS}")
    else:
        e(f"""
        v_lshlrev_b32 v{PO}, 16, v{PO}
        v_lshlrev_b32 v{PO+1}, 16, v{PO+1}
        v_mul_f32 v{PO}, s7, v{PO}
        v_mul_f32 v{PO+1}, s7, v{PO+1}
        v_cvt_pk_bf16_f32 v{PO+2}, v{PO}, v{PO+1}
        v_lshlrev_b32 v{PO+3}, 16, v{PO+2}
        v_sub_f32 v{PO}, v{PO}, v{PO+3}
        v_and_b32 v{PO+3}, s6, v{PO+2}
        v_sub_f32 v{PO+1}, v{PO+1}, v{PO+3}
        v_cvt_pk_bf16_f32 v{PO+3}, v{PO}, v{PO+1}
        ds_write_b16 v{PO+7}, v{PO+2} offset:{L_WDA}
        ds_write_b16_d16_hi v{PO+7}, v{PO+2} offset:{L_WDA+ATS}
        ds_write_b16 v{PO+7}, v{PO+3} offset:{L_WDA+2*ATS}
        ds_write_b16_d16_hi v{PO+7}, v{PO+3} offset:{L_WDA+3*ATS}
        """)
    e(f"""
    K_side_done:
    v_lshlrev_b32 v{ID}, 3, v{hb}
    v_sub_u32 v{ID}, v{rho}, v{ID}
    v_subrev_u32 v{ID+4}, 16, v{ID}
    v_min_u32 v{ID}, 8, v{ID}
    v_min_u32 v{ID+4}, 8, v{ID+4}
    v_lshlrev_b32 v{ID}, 4, v{ID}
    v_lshlrev_b32 v{ID+4}, 4, v{ID+4}
    s_mov_b32 s{s_done}, 0
    s_mov_b32 s{s_take}, 32
    v_add_u32 v{T0+3}, {L_ACC}, v{tq}
    v_cmp_gt_u32 vcc, 91, v0
    s_lshl_b32 s14, s{s_c}, 7
    s_add_u32 s14, s14, {WS_FLG}
    """)
    OFFV = 162; cREC = 174; vT2D = 175; tA = 176; tB = 177
    RECV = PRE0; HADR = TMP; RANK = MR
    def offs_pre():
        e(f"""
        v_lshrrev_b32 v{tA}, 2, v1
        v_lshlrev_b32 v{tA}, 11, v{tA}
        s_lshl_b32 s{s_t0}, s{s_w}, 16
        s_lshl_b32 s{s_t1}, s{s_b}, 3
        s_add_u32 s{s_t0}, s{s_t0}, s{s_t1}
        s_add_u32 s16, s{s_t0}, {WS_OFF}
        s_add_u32 s17, s16, 32768
        """)
    def offs_loads():
        for i in range(2):
            e.v('off', f"buffer_load_dwordx2 {vr(OFFV+2*i,2)}, v{tA}, {sr(sWS,4)}, s{16+i} offen{SC}")
    cRD = 173; RA = PRE0; RD = PRE1; aAr = PRE1 + 6; aDr = PRE1 + 8; vU = PRE1 + 10; vD = PRE1 + 12; s_ovf = s_need
    smask = lambda k: sMASK + 2 * k
    def rec_pre():
        e(f"""
        s_mov_b32 s{s_t0}, {RECB}
        v_lshrrev_b32 v{cREC}, 2, v1
        v_and_b32 v{vT2D}, 3, v1
        v_mul_u32_u24 v{cREC}, s{s_t0}, v{cREC}
        v_mad_u32_u24 v{vT2D}, v{vT2D}, 6, s{s_done}
        s_mul_i32 s{s_o}, s{s_w}, {32*RECB}
        s_add_u32 s{s_o+1}, s{s_o}, {16*RECB}
        v_add_u32 v{cRD}, v{cREC}, v{vT2D}
        v_add_u32 v{cRD}, {DOFF}, v{cRD}
        v_lshl_add_u32 v{cREC}, v{vT2D}, 2, v{cREC}
        s_add_u32 s{s_o+2}, s{s_done}, 24
        """)
    def rec_loads(waits, tag):
        if waits: e("s_waitcnt vmcnt(0)")
        for i in range(2):
            e(f"""
            v_bfe_u32 v{vU+i}, v{OFFV+2*i}, 12, 12
            v_and_b32 v{tA}, 0xfff, v{OFFV+2*i}
            v_sub_u32 v{vD+i}, v{vU+i}, v{vT2D}
            v_add_u32 v{aDr+i}, v{tA}, v{cRD}
            v_cmp_lt_i32 {sr(smask(6*i),2)}, 0, v{vD+i}
            v_lshl_add_u32 v{aAr+i}, v{tA}, 2, v{cREC}
            v_cmp_lt_i32 {sr(smask(6*i+4),2)}, 4, v{vD+i}
            s_mov_b64 exec, {sr(smask(6*i),2)}
            buffer_load_dwordx2 {vr(RD+2*i,2)}, v{aDr+i}, {sr(sWS,4)}, s{s_o+i} offen{RN}
            s_mov_b64 exec, -1
            """)
        e(f"v_max_u32 v{vMX}, v{vU}, v{vU+1}")
        for i in range(2):
            e(f"""
            s_mov_b64 exec, {sr(smask(6*i),2)}
            buffer_load_dwordx4 {vr(RA+6*i,4)}, v{aAr+i}, {sr(sWS,4)}, s{s_o+i} offen{RN}
            s_mov_b64 exec, {sr(smask(6*i+4),2)}
            buffer_load_dwordx2 {vr(RA+6*i+4,2)}, v{aAr+i}, {sr(sWS,4)}, s{s_o+i} offen offset:16{RN}
            """)
        e(f"s_mov_b64 exec, -1\nv_cmp_lt_u32 vcc, s{s_o+2}, v{vMX}\ns_mov_b32 s{s_ovf}, 0")
        for i in range(2):
            for u in (1, 2, 3, 5): e(f"v_cmp_lt_i32 {sr(smask(6*i+u),2)}, {u}, v{vD+i}")
        e(f"s_cbranch_vccnz K_ovl{tag}\nK_ovlb{tag}:")
        t = f"K_ovl{tag}:\ns_mov_b32 s{s_ovf}, 1\nv_and_b32 v{tA}, 3, v1\nv_lshlrev_b32 v{tB}, 2, v{tA}\nv_subrev_u32 v{tB}, 24, v{tB}\n"
        for i in range(2):
            t += f"""v_add_u32 v{HADR+i}, v{vD+i}, v{tB}
            v_sub_u32 v{aDr+i}, v{aDr+i}, v{tB}
            v_lshlrev_b32 v{tA}, 2, v{tB}
            v_cmp_lt_i32 {sr(smask(12+2*i),2)}, 0, v{HADR+i}
            v_sub_u32 v{aAr+i}, v{aAr+i}, v{tA}
            v_cmp_lt_i32 {sr(smask(13+2*i),2)}, 1, v{HADR+i}
            s_mov_b64 exec, {sr(smask(12+2*i),2)}
            buffer_load_ushort v{RD+4+i}, v{aDr+i}, {sr(sWS,4)}, s{s_o+i} offen{RN}
            buffer_load_dwordx2 {vr(RA+12+2*i,2)}, v{aAr+i}, {sr(sWS,4)}, s{s_o+i} offen{RN}
            s_mov_b64 exec, -1
            """
        ovf_blocks.append(t + f"s_branch K_ovlb{tag}")
        e.vm = []
    ovf_blocks = []
    def sdwa(d, sh, k):
        r, b = (RD + 2 * (k // 6) + ((k % 6) >> 2), (k % 6) & 3) if k < 12 else (RD + 4 + ((k - 12) >> 1), k & 1)
        return f"v_lshlrev_b32_sdwa v{d}, {sh}, v{r} dst_sel:DWORD dst_unused:UNUSED_PAD src0_sel:DWORD src1_sel:BYTE_{b}"
    def ovf_call(name, body):
        e(f"s_cmp_lg_u32 s{s_ovf}, 0\ns_cbranch_scc1 K_ov{name}\nK_ov{name}b:")
        ovf_blocks.append(f"K_ov{name}:\n" + body + f"\ns_mov_b64 exec, -1\ns_branch K_ov{name}b")
    def loop_consts():
        e(f"""
        s_lshl_b32 s{s_stg}, s{s_w}, 12
        s_add_u32 s{s_stg}, s{s_stg}, {L_STG}
        v_lshlrev_b32 v{cRA}, 3, v1
        v_lshlrev_b32 v{cTA}, 3, v{o8}
        v_lshl_add_u32 v{HADR+8}, v{rho}, 7, s{s_stg}
        v_xor_b32 v{HADR+9}, v{hb}, v{f3}
        """)
        for s_ in range(4):
            if s_: e(f"v_xor_b32 v{cHS+s_}, {2*s_}, v{HADR+9}\nv_lshl_add_u32 v{cHS+s_}, v{cHS+s_}, 4, v{HADR+8}")
            else: e(f"v_lshl_add_u32 v{cHS}, v{HADR+9}, 4, v{HADR+8}")
        e(f"""
        s_lshl_b32 s{s_t0}, s{s_w}, 11
        s_add_u32 s{s_t0}, s{s_t0}, {L_MM}
        v_lshl_add_u32 v{cMW}, v{rho}, 6, s{s_t0}
        v_lshl_or_b32 v{cMW}, v{f3}, 3, v{cMW}
        v_mov_b32 v{vMA}, v{cMW}
        v_lshl_or_b32 v{HADR+8}, v{hb}, 2, v{r4}
        v_lshrrev_b32 v{HADR+9}, 1, v{HADR+8}
        v_xor_b32 v{HADR+9}, v{HADR+9}, v{slot}
        v_lshl_add_u32 v{HADR+8}, v{HADR+8}, 6, s{s_t0}
        v_lshl_add_u32 v{cM}, v{HADR+9}, 3, v{HADR+8}
        v_xor_b32 v{HADR+9}, 4, v{HADR+9}
        v_lshl_add_u32 v{cM+1}, v{HADR+9}, 3, v{HADR+8}
        v_add_u32 v{cM+1}, 0x200, v{cM+1}
        v_mul_u32_u24 v{cAW}, {ATS}, v{r4}
        v_lshl_add_u32 v{cAW}, v{slot}, 3, v{cAW}
        s_mov_b32 s{s_t0}, {L_WDA-L_ATAB}
        v_mad_i32_i24 v{cAW}, v{hb}, s{s_t0}, v{cAW}
        v_add_u32 v{cAW}, {L_ATAB}, v{cAW}
        v_mov_b32 v{vAWA}, v{cAW}
        v_mul_u32_u24 v{cF}, {ACS}, v{hb}
        v_lshl_add_u32 v{cF}, v{rho}, 3, v{cF}
        v_add_u32 v{cF}, {L_ACC}, v{cF}
        v_lshl_or_b32 v{cP}, v{r4}, 1, v{hb}
        v_lshlrev_b32 v{cP}, 5, v{cP}
        v_add_u32 v{cP}, {L_PACC}, v{cP}
        v_lshlrev_b32 v{wx0}, 16, v{wx0}
        v_lshlrev_b32 v{wx1}, 16, v{wx1}
        v_add_u32 v{IDX+1}, 0xc00, v{IDX+1}
        v_add_u32 v{IDX+3}, 0x800, v{IDX+3}
        v_add_u32 v{IDX+5}, 0x400, v{IDX+5}
        s_mov_b32 s{sLO}, -1
        v_mov_b32 v{SCR+19}, 0x1000000
        s_mov_b32 s{sLO+1}, 0
        s_mov_b32 s{sQ}, 0x11111111
        s_mov_b32 s{sQ+1}, 0x11111111
        s_mov_b32 s{sC}, {NLOG2E}
        s_mov_b32 s{sC+1}, {NLOG2E}
        """)
        if fold: e(f"v_mul_f32 v{wx0}, {NLN2}, v{wx0}\nv_mul_f32 v{wx1}, {NLN2}, v{wx1}")
        for r in list(range(OH1A, OH1A + 8)) + list(range(OH2, OH2 + 8)): e(f"v_mov_b32 v{r}, 0")

    cpos = opt.get('cpos', 2)
    offs_pre()
    if cpos == 0: loop_consts(); rec_pre()
    stamp('side')
    if opt.get('early') == 3: offs_loads(); nrow += 2
    e(f"s_waitcnt vmcnt({nrow}) lgkmcnt(0)\ns_barrier")
    e.ds = []; e.vm = []
    stamp('Bd2')
    e(f"""
    s_cmp_eq_u32 s{s_w}, 3
    s_cselect_b64 exec, 1, 0
    buffer_store_dwordx2 {vr(TK,2)}, v{ZQ}, {sr(sWS,4)}, s14 offen{SC}
    s_mov_b64 exec, -1
    ds_read_b128 {vr(ID,4)}, v{ID} offset:{L_OHT}
    ds_read_b128 {vr(ID+4,4)}, v{ID+4} offset:{L_OHT}
    """)
    RS = SCR; aA = SCR + 16; aPO = SCR + 17; aPA = SCR + 18; oP = SCR + 19; aW = SCR + 20; aR = SCR + 22
    def epi_consts():
        t0_, t1_, t2_, rho, hb, f3, c4 = range(TMP, TMP + 7)
        e(f"""
        v_and_b32 v{rho}, 31, v1
        v_lshrrev_b32 v{hb}, 5, v1
        v_bfe_u32 v{f3}, v1, 1, 3
        v_and_b32 v{c4}, 3, v1
        s_lshl_b32 s{s_t0}, s{s_rb}, 5
        v_add_u32 v{t0_}, s{s_t0}, v{rho}
        v_mul_u32_u24 v{aA}, {ACS}, v{t0_}
        v_lshl_add_u32 v{aA}, v{hb}, 6, v{aA}
        v_add_u32 v{aA}, {L_ACC}, v{aA}
        v_lshlrev_b32 v{aPO}, 2, v0
        v_lshlrev_b32 v{aPA}, 3, v0
        v_add_u32 v{aPA}, {L_PACC}, v{aPA}
        v_lshrrev_b32 v{oP}, 2, v0
        v_cmp_gt_u32 vcc, {NPB}, v{oP}
        v_cmp_gt_u32 {sr(s_o,2)}, 3, v{c4}
        v_add_u32 v{oP}, s{s_nb0}, v{oP}
        v_mul_u32_u24 v{oP}, 6, v{oP}
        v_lshl_add_u32 v{oP}, v{c4}, 1, v{oP}
        s_and_b64 vcc, {sr(s_o,2)}, vcc
        v_mov_b32 v{t2_}, 0x1000000
        v_and_b32 v{t0_}, 3, v{f3}
        v_cndmask_b32 v{oP}, v{t2_}, v{oP}, vcc
        v_lshlrev_b32 v{t1_}, 1, v{hb}
        v_xor_b32 v{t1_}, v{t1_}, v{t0_}
        v_lshl_add_u32 v{aW}, v{rho}, 6, s{s_stg}
        v_lshl_add_u32 v{aW}, v{t1_}, 4, v{aW}
        v_xor_b32 v{aW+1}, 16, v{aW}
        v_lshl_add_u32 v{aR}, v1, 4, s{s_stg}
        """)
        for r in range(8):
            e(f"v_lshlrev_b32 v{RS+2*r}, 16, v{HR+r}\nv_and_b32 v{RS+2*r+1}, 0xffff0000, v{HR+r}")
        if dhs:
            for i in range(0, 16, 2): e(f"v_pk_mul_f32 {vr(DH+i,2)}, {vr(DH+i,2)}, {sr(sC,2)}")
            e(f"s_mov_b32 s{sC}, {NLN2}\ns_mov_b32 s{sC+1}, {NLN2}")

    epos = opt.get('epos', 1)
    nz = opt.get('nz', 8)
    Z = [f"ds_write_b128 v{T0+3}, {vr(ZQ,4)} offset:{8192*r}" for r in range(7)]
    Z.append(f"s_mov_b64 exec, vcc\nds_write_b128 v{T0+3}, {vr(ZQ,4)} offset:{8192*7}\ns_mov_b64 exec, -1")
    for z in Z[:nz]: e(z)
    early = opt.get('early', 0)
    if early == 1: offs_loads()
    if cpos == 2: loop_consts()
    if early == 2: offs_loads()
    if epos == 2: epi_consts()
    if cpos == 2: rec_pre()
    if opt.get('isl'): e(f"s_sleep {opt.get('isl')}")
    if not early:
        if opt.get('zw', 1): e("s_waitcnt lgkmcnt(0)")
        offs_loads()
    for z in Z[nz:]: e(z)
    if cpos == 1: loop_consts(); rec_pre()
    e(f"s_mov_b32 s{s_t0}, 0\nK_poll:\ns_waitcnt vmcnt(0)")
    if opt.get('pst'): e(f"s_memrealtime s[0:1]\ns_min_u32 s2, s{s_t0}, 20\ns_add_u32 m0, s2, 32\ns_waitcnt lgkmcnt(0)\nv_writelane_b32 v{vST}, s0, m0\nv_writelane_b32 v{vST}, s{s_t0}, 24")
    for i in range(2):
        e(f"v_xor_b32 v{HADR+2*i}, s61, v{OFFV+2*i}\nv_xor_b32 v{HADR+2*i+1}, s60, v{OFFV+2*i+1}")
    for i in range(2): e(f"v_lshrrev_b32 v{HADR+2*i}, 24, v{HADR+2*i}")
    for i in range(2): e(f"v_or_b32 v{HADR+2*i}, v{HADR+2*i}, v{HADR+2*i+1}")
    for i in range(2): e(f"v_cmp_ne_u32 {sr(4+2*i,2)}, 0, v{HADR+2*i}")
    e(f"""
    s_add_u32 s{s_t0}, s{s_t0}, 1
    s_cmp_gt_u32 s{s_t0}, 0x40000
    s_cbranch_scc1 K_pollx
    s_or_b64 {sr(12,2)}, {sr(4,2)}, {sr(6,2)}
    s_cbranch_scc1 K_repoll
    K_pollx:
    """)
    stamp('Be'); rt(26)
    rec_loads(False, 'a')
    if epos == 0: epi_consts()
    e.ds = []
    hist1 = lambda k: f"s_mov_b64 exec, {sr(smask(k),2)}\nds_add_rtn_u32 v{RANK+k}, v{HADR+k}, v{tA} offset:{L_HIST}"
    base1 = lambda k: f"s_mov_b64 exec, {sr(smask(k),2)}\nds_read_b32 v{HADR+k}, v{HADR+k} offset:{L_BASE}"
    scat1 = lambda k: f"s_mov_b64 exec, {sr(smask(k),2)}\nds_write2_b32 v{HADR+k}, v{RA+k}, v{RANK+k} offset0:0 offset1:1"
    FLV = PS; aFL = T0; fp = opt.get('fp', 0)
    flag_load = f"buffer_load_dwordx2 {vr(FLV,2)}, v{aFL}, {sr(sWS,4)}, s62 offen{SC}"
    e(f"""
    K_hist:
    v_mov_b32 v{tA}, 1
    v_and_b32 v{aFL}, 31, v1
    v_lshlrev_b32 v{aFL}, 7, v{aFL}
    s_lshl_b32 s62, s{s_w}, 12
    s_add_u32 s62, s62, {WS_FLG}
    """)
    for i in range(2):
        e(f"s_waitcnt vmcnt({5 - i + (1 if fp == 1 and i else 0)})")
        if i == 0: stamp('rec')
        if fp == 1 and i == 0: e(flag_load)
        if fp == 2 and i == 1: e(flag_load)
        for k in range(6 * i, 6 * i + 6): e(sdwa(HADR + k, 2, k))
        for k in range(6 * i, 6 * i + 6): e(hist1(k))
        e("s_mov_b64 exec, -1")
    ovf_call('h', "s_waitcnt vmcnt(0)\n" + "\n".join(sdwa(HADR + k, 2, k) for k in range(12, 16)) + "\n" + "\n".join(hist1(k) for k in range(12, 16)))
    if fp == 0: e(flag_load)
    e(f"""
    s_waitcnt lgkmcnt(0)
    s_barrier
    """)
    stamp('B1')
    e(f"""
    ds_read_b64 v[{OFFV+8}:{OFFV+9}], v{cRA} offset:{L_HIST}
    s_add_u32 s{s_t0}, s{s_done}, s{s_take}
    v_cmp_lt_u32 vcc, s{s_t0}, v{vMX}
    s_waitcnt lgkmcnt(0)
    v_add_u32 v{tA}, v{OFFV+8}, v{OFFV+9}
    v_mov_b32 v{tB}, v{tA}
    """)
    wave_scan(e, tB)
    e(f"""
    v_sub_u32 v{OFFV+10}, v{tB}, v{tA}
    v_readlane_b32 s{s_T}, v{tB}, 63
    v_add_u32 v{OFFV+11}, v{OFFV+10}, v{OFFV+8}
    ds_write_b64 v{cRA}, v[{OFFV+10}:{OFFV+11}] offset:{L_BASE}
    s_cmp_gt_u32 s{s_T}, {CAP}
    s_cbranch_scc1 K_retry
    """)
    for k in range(12): e(base1(k))
    e(f"""
    s_mov_b64 exec, -1
    s_cbranch_vccnz K_setflag
    K_flagset:
    s_add_u32 s{s_t1}, s{s_T}, 31
    s_lshr_b32 s{s_t1}, s{s_t1}, 5
    s_lshr_b32 s{s_t0}, s{s_t1}, 3
    s_and_b32 s{s_t1}, s{s_t1}, 7
    s_mul_i32 s{s_p}, s{s_w}, s{s_t0}
    s_min_u32 s{s_t2}, s{s_w}, s{s_t1}
    s_add_u32 s{s_p}, s{s_p}, s{s_t2}
    s_add_u32 s{s_end}, s{s_p}, s{s_t0}
    s_cmp_lt_u32 s{s_w}, s{s_t1}
    s_addc_u32 s{s_end}, s{s_end}, 0
    s_lshl_b32 s{s_p}, s{s_p}, 5
    s_lshl_b32 s{s_end}, s{s_end}, 5
    s_min_u32 s{s_end}, s{s_end}, s{s_T}
    s_lshl_b32 s{s_t0}, s{s_T}, 3
    v_add_u32 v{tA}, s{s_t0}, v{cRA}
    s_mov_b32 s63, 0
    K_flg:
    s_waitcnt vmcnt(0)
    v_cmp_ne_u32 vcc, s60, v{FLV}
    v_cmp_ne_u32 {sr(0,2)}, s61, v{FLV+1}
    s_lshr_b32 s{s_t0}, s{s_c}, 3
    s_lshl_b32 s{s_t1}, s{s_w}, 5
    s_or_b64 vcc, vcc, {sr(0,2)}
    s_cbranch_scc1 K_reflg
    K_flgok:
    s_add_u32 s{s_t0}, s{s_t0}, s{s_t1}
    s_and_b32 s{s_t1}, s{s_t0}, 7
    s_lshl_b32 s{s_t1}, s{s_t1}, 5
    s_lshr_b32 s{s_t0}, s{s_t0}, 3
    s_add_u32 s{s_t0}, s{s_t0}, s{s_t1}
    s_mul_i32 s{s_t0}, s{s_t0}, {NPB}
    """)
    if opt.get('pfp'):
        e(f"v_lshl_add_u32 v{PS}, v1, 3, s{s_t0}\ns_mov_b64 exec, 0x1fff\nbuffer_load_dword v{PS}, v{PS}, {sr(sPF,4)}, 0 idxen{SC}\ns_mov_b64 exec, -1")
    if opt.get('pfb'):
        e(f"v_add_u32 v{PS+1}, s{s_t0}, v1\ns_bfm_b64 exec, {opt.get('pfb')}, 0\nbuffer_load_dword v{PS+1}, v{PS+1}, {sr(sH,4)}, 0 idxen offset:3072{SC}\ns_mov_b64 exec, -1")
    for q in range(3):
        e("s_waitcnt lgkmcnt(8)")
        for k in range(4 * q, 4 * q + 4): e(f"v_add_lshl_u32 v{HADR+k}, v{HADR+k}, v{RANK+k}, 3")
        for k in range(4 * q, 4 * q + 4): e(sdwa(RANK + k, 4, k))
        for k in range(4 * q, 4 * q + 4): e(scat1(k))
        e("s_mov_b64 exec, -1")
    X4 = range(12, 16)
    ovf_call('s', "\n".join(base1(k) for k in X4) + "\ns_mov_b64 exec, -1\ns_waitcnt lgkmcnt(0)\n"
             + "\n".join(f"v_add_lshl_u32 v{HADR+k}, v{HADR+k}, v{RANK+k}, 3" for k in X4) + "\n"
             + "\n".join(sdwa(RANK + k, 4, k) for k in X4) + "\n" + "\n".join(scat1(k) for k in X4))
    e(f"""
    s_cmp_lg_u32 s{s_w}, 7
    s_cbranch_scc1 K_nopad
    ds_write_b64 v{tA}, v[{ZQ}:{ZQ+1}] offset:{L_REC}
    K_nopad:
    s_lshl_b32 s{s_p8}, s{s_p}, 3
    s_mov_b32 s{s_lim}, 0
    s_mov_b32 s{s_nbCur}, 0
    v_add_u32 v{vRA}, s{s_p8}, v{cRA}
    v_add_u32 v{vTA}, s{s_p8}, v{cTA}
    """)
    for r in range(8): e(f"v_mov_b32 v{MR+r}, 0")
    e("s_waitcnt lgkmcnt(0)\ns_barrier")
    e.ds = []; e.vm = []
    spin(3)
    stamp('B2')
    e(f"s_cmp_ge_u32 s{s_p}, s{s_end}\ns_cbranch_scc1 {'K_skip' if epos == 1 else 'K_wavedone'}")

    tail = []
    D = lambda tag, t: (lambda: e.d(tag, t))
    V = lambda tag, t: (lambda: e.v(tag, t))
    def rec_read():
        return [D('rw', f"ds_read_b64 v[{RW}:{RW+1}], v{vRA} offset:{L_REC}"), D('rw', f"ds_read_u16 v{vPI}, v{vRA} offset:{L_REC}")]
    def window_pre():
        return [f"s_sub_u32 s{s_rem}, s{s_end}, s{s_p}", f"s_min_u32 s{s_need}, s{s_rem}, 64", f"s_bfm_b64 {sr(sMV,2)}, s{s_rem}, 0",
                f"s_cmp_ge_u32 s{s_rem}, 64", f"s_cselect_b64 {sr(sMV,2)}, -1, {sr(sMV,2)}", f"s_mov_b32 s{s_flN}, 0"]
    def window():
        l = e.lab("K_win")
        tail.append(f"""
        {l}a:
        v_readfirstlane_b32 s{s_nbN}, v{RW+1}
        s_mov_b32 s{s_flN}, 1
        s_add_u32 s{s_lim}, s{s_nbN}, 128
        v_cmp_gt_u32 vcc, s{s_lim}, v{RW+1}
        s_nop 0
        s_and_b64 {sr(sMK,2)}, vcc, {sr(sMV,2)}
        s_bcnt1_i32_b64 s{s_cntN}, {sr(sMK,2)}
        s_branch {l}b
        """)
        return [lambda: (e.wds('rw'), e(f"v_cmp_gt_u32 vcc, s{s_lim}, v{RW+1}")),
                V('ps', f"buffer_load_dwordx3 {vr(PS,3)}, v{vPI}, {sr(sPF,4)}, 0 idxen{SC}"),
                D('pd', f"ds_read_b128 {vr(PD,4)}, v{RW+1} offset:{L_POSD}"),
                f"s_and_b64 {sr(sMK,2)}, vcc, {sr(sMV,2)}",
                f"s_bcnt1_i32_b64 s{s_cntN}, {sr(sMK,2)}",
                f"s_cmp_lg_u32 s{s_cntN}, s{s_need}",
                f"s_cbranch_scc1 {l}a\n{l}b:",
                f"s_add_u32 s{s_pn}, s{s_p}, s{s_cntN}" + (f"\ns_and_b32 s0, s{s_dbg}, 7\ns_cselect_b32 s{s_pn}, s{s_p}, s{s_pn}" if opt.get('x_rep') else "")]
    def idx_read(off): return [D('idx', f"ds_read_u16 v{IDX+2*j}, v{vTA} offset:{L_REC+off+64*j}") for j in range(4)]
    def hs_read(): return [D('hs', f"ds_read_b128 {vr(HS+4*s_,4)}, v{cHS+s_}") for s_ in range(4)]
    def oh2_read(): return [D('oh2', f"ds_read_b64_tr_b16 {vr(OH2+4*s_+2*t,2)}, v{cM+t} offset:{1024*s_}") for s_ in range(2) for t in range(2)]
    def aw_read():
        return [f"s_mul_i32 s{s_t0}, s{s_nbN}, {ATS//16}",
                f"s_mov_b64 exec, {sr(sLO,2)}\nv_add_u32 v{vAWA}, s{s_t0}, v{cAW}\ns_mov_b64 exec, -1"] + \
               [D('aw', f"ds_read_b64_tr_b16 {vr(AW+4*blk+2*t,2)}, v{vAWA} offset:{4*ATS*t+64*blk}") for blk in range(2) for t in range(2)]
    def aw_cond():
        t = f"K_aw:\ns_mul_i32 s{s_t0}, s{s_nbN}, {ATS//16}\ns_mov_b64 exec, {sr(sLO,2)}\nv_add_u32 v{vAWA}, s{s_t0}, v{cAW}\ns_mov_b64 exec, -1\n"
        t += "\n".join(f"ds_read_b64_tr_b16 {vr(AW+4*blk+2*t_,2)}, v{vAWA} offset:{4*ATS*t_+64*blk}" for blk in range(2) for t_ in range(2))
        tail.append(t + "\ns_branch K_awb")
        return [f"s_cmp_lg_u32 s{s_flN}, 0", "s_cbranch_scc1 K_aw\nK_awb:"]
    def m_b():
        return [D('mc', f"ds_write_b64 v{vMA}, v[{ZQ}:{ZQ+1}]"),
                f"s_mov_b32 exec_lo, 0\ns_mov_b32 exec_hi, s{s_mkB}\nds_write_b64 v{vMA}, v[{WP}:{WP+1}]\ns_mov_b64 exec, -1"]
    def misc():
        t0, t1, t2, t3 = T0, T0 + 1, T0 + 2, T0 + 3
        t4 = PD + 3
        L = [D('mc', f"ds_write_b64 v{vMA}, v[{ZQ}:{ZQ+1}]"),
             f"""v_subrev_u32 v{t0}, s{s_nbN}, v{RW+1}
             v_sub_f32 v{t1}, v{PD}, v{PS}
             v_sub_f32 v{t2}, v{PD+1}, v{PS+1}
             v_sub_f32 v{t3}, v{PD+2}, v{PS+2}
             v_min_u32 v{OH1A}, 0x80, v{t0}
             v_mul_f32 v{t4}, v{t1}, v{t1}
             v_lshrrev_b32 v{t0}, 1, v{OH1A}
             v_fmac_f32 v{t4}, v{t2}, v{t2}
             v_cvt_pk_bf16_f32 v{WP}, 1.0, v{t1}
             v_fmac_f32 v{t4}, v{t3}, v{t3}
             v_cvt_pk_bf16_f32 v{WP+1}, v{t2}, v{t3}
             v_cvt_pk_bf16_f32 v{OH1B}, v{t4}, v{RW}
             v_xor_b32 v{vMA}, v{t0}, v{cMW}""",
             f"s_mov_b32 s{s_mkB}, s{sMK+1}",
             f"v_permlane32_swap_b32 v{OH1A}, v{OH1B}" + (f"\nv_mov_b32 v{OH1A+1}, v{OH1A}\nv_mov_b32 v{OH1B+1}, v{OH1B}" if fold and opt.get('lo', 1) else ""),
             lambda: (e(f"s_and_b64 exec, {sr(sMK,2)}, {sr(sLO,2)}\nds_write_b64 v{vMA}, v[{WP}:{WP+1}]\ns_mov_b64 exec, {sr(sLO,2)}"), e.d('oh1', f"ds_read_b128 {vr(OH1A,4)}, v{OH1A} offset:{L_OHT}"),
                      e.d('oh1', f"ds_read_b128 {vr(OH1B,4)}, v{OH1B} offset:{L_OHT}"), e("s_mov_b64 exec, -1"))]
        return L
    def dma():
        return [V('dma', f"buffer_load_dwordx4 {vr(IDX+2*j,2)}, {sr(sH,4)}, 0 idxen offen offset:{1024*j}{SC} lds") for j in range(4)]
    def run(L, gap=False):
        for x in L:
            if callable(x): x()
            else:
                e(x)
                if gap and 'm0' in x: e("s_nop 0")
    def flush(snb):
        e(f"s_mul_i32 s{s_t0}, s{snb}, {ACS//16}\nv_lshl_add_u32 v{T0+1}, s{snb}, 1, v{cP}\nv_add_u32 v{T0}, s{s_t0}, v{cF}")
        R = [4 * j + 1 + c for j in range(4) for c in range(3)]
        for blk, A in enumerate((ACC0, ACC1)):
            if fold and not dhs:
                for j in range(4): e(f"v_mul_f32 v{A+4*j}, {NLN2}, v{A+4*j}")
            if blk == 0:
                for r in R: e(f"v_mul_f32 v{ACC0+r}, v{ACC0+r}, v{wx0}")
            for j in range(4): e(f"v_cvt_f64_f32 {vr(TMP+4*j+2*blk,2)}, v{A+4*j}")
        for j in range(4):
            e(f"ds_add_f64 v{T0}, {vr(TMP+4*j,2)} offset:{2*ACS*j}\nds_add_f64 v{T0}, {vr(TMP+4*j+2,2)} offset:{2*ACS*j+256}")
        for r in R: e(f"v_fmac_f32 v{ACC0+r}, v{ACC1+r}, v{wx1}")
        e(mfma(ACC1, ZQ, ZQ))
        lo = [ACC0 + 4 * j + 1 + c for j in range(2) for c in range(3)]
        for r in lo: e(f"v_add_f32_dpp v{r}, v{r}, v{r} row_ror:8 row_mask:0xf bank_mask:0x3")
        for r in lo: e(f"v_add_f32_dpp v{r}, v{r+8}, v{r+8} row_ror:8 row_mask:0xf bank_mask:0xc")
        lo = [ACC0 + 1 + c for c in range(3)]
        for r in lo: e(f"v_add_f32_dpp v{r}, v{r}, v{r} row_half_mirror row_mask:0xf bank_mask:0x5")
        for r in lo: e(f"v_add_f32_dpp v{r}, v{r+4}, v{r+4} row_half_mirror row_mask:0xf bank_mask:0xa")
        for r in lo: e(f"v_add_f32_dpp v{r}, v{r}, v{r} quad_perm:[1,0,3,2] row_mask:0xf bank_mask:0xf")
        for r in lo: e(f"v_add_f32_dpp v{r}, v{r}, v{r} quad_perm:[2,3,0,1] row_mask:0xf bank_mask:0xf")
        for c in range(3): e(f"v_cvt_f64_f32 {vr(TMP+2*c,2)}, v{ACC0+1+c}")
        e(mfma(ACC0, ZQ, ZQ))
        e(f"s_mov_b64 exec, {sr(sQ,2)}")
        for c in range(3): e(f"ds_add_f64 v{T0+1}, {vr(TMP+2*c,2)} offset:{8*c}")
        e("s_mov_b64 exec, -1")
    def gemm1(q, blk, oh1):
        return [mfma(q, oh1, AW + 4 * blk, None)] + [mfma(q, HS + 8 * blk + 4 * s_, ID + 4 * s_, q) for s_ in range(2)]
    def seg(acc): return [mfma(acc, OH2 + 4 * s_, MR + 4 * s_, acc) for s_ in range(2)]
    def phase(P, G, S, pre, side):
        head = []
        if not fold:
            head = [f"v_pk_mul_f32 {vr(TMP+i,2)}, {vr(P+i,2)}, {sr(sC,2)}" for i in range(0, 16, 2)]
            ex = [f"v_exp_f32 v{TMP+i}, v{TMP+i}" for i in range(16)]
        else:
            ex = [f"v_exp_f32 v{TMP+i}, v{P+i}" for i in range(16)]
        base = []
        for m, x in enumerate([G[0], S[0], S[1]]): base += [x] + ex[4 * m:4 * m + 4]
        base += ex[12:]
        if not pair:
            base += [f"v_pk_add_f32 {vr(TMP+i,2)}, {vr(TMP+i,2)}, 1.0 op_sel_hi:[1,0]" for i in range(0, 16, 2)]
            rc = [f"v_rcp_f32 v{TMP+i}, v{TMP+i}" for i in range(16)]
            for m, x in enumerate(G[1:3]): base += [x] + rc[4 * m:4 * m + 4]
            base += rc[8:]
            base += [f"v_pk_mul_f32 {vr(TMP+i,2)}, {vr(P+i,2)}, {vr(TMP+i,2)}" for i in range(0, 16, 2)]
            base += [f"v_cvt_pk_bf16_f32 v{MR+i//2}, v{TMP+i}, v{TMP+i+1}" for i in range(0, 16, 2)]
        else:
            R2 = HR
            base += [f"v_pk_fma_f32 {vr(TMP+i,2)}, {vr(TMP+i,2)}, {sr(s_o,2)}, {sr(s_o,2)} clamp" for i in range(0, 16, 2)]
            base += [f"v_pk_mul_f32 {vr(R2+i//2,2)}, {vr(TMP+i,2)}, {vr(TMP+i+2,2)}" for i in range(0, 16, 4)]
            rc = [f"v_rcp_f32 v{R2+i}, v{R2+i}" for i in range(8)]
            base += [G[1]] + rc[:3] + [G[2]] + rc[3:]
            base += [f"v_pk_mul_f32 {vr(TMP+i,2)}, {vr(TMP+i,2)}, {vr(R2+2*(i//4),2)}" for i in range(0, 16, 2)]
            base += [f"v_pk_mul_f32 {vr(TMP+i,2)}, {vr(TMP+i,2)}, {vr(P+(i^2),2)}" for i in range(0, 16, 2)]
            base += [f"v_cvt_pk_bf16_f32 v{MR+i//2}, v{TMP+(i^2)}, v{TMP+(i^2)+1}" for i in range(0, 16, 2)]
        assert len(base) == (65 if pair else 61)
        for x in head: e(x)
        q = [(st, it) for st, L in side for it in L]
        slot_ok = lambda x: 'v_pk_' in x or 'v_cvt_pk' in x
        for i, x in enumerate(base):
            if i in pre: run(pre[i])
            e(x)
            if slot_ok(x) and q and q[0][0] <= i:
                run([q.pop(0)[1]])
        assert not q, q

    if opt.get('x_rep'): e(f"s_mov_b32 s{s_dbg}, 0")
    e(f"s_mov_b32 m0, s{s_stg}")
    run(rec_read()); run(idx_read(0)); run(window_pre())
    e.wds('idx')
    e.ds = ['rw']
    W = window()
    run(W[:3])
    run(dma(), True)
    run(W[3:])
    e(f"s_mov_b32 s{s_flN}, 0")
    run(aw_read())
    run(idx_read(256))
    if epos == 1:
        e(f"s_cmp_lg_u32 s{s_done}, 0\ns_cbranch_scc1 K_noepi")
        epi_consts()
        e("K_noepi:")
    wp = window_pre()
    adv = [f"s_lshl_b32 s{s_p8}, s{s_pn}, 3", f"s_mov_b32 s{s_p}, s{s_pn}", f"s_mov_b32 s{s_flush}, s{s_flN}",
           f"s_mov_b32 s{s_nbOld}, s{s_nbCur}", f"s_mov_b32 s{s_nbCur}, s{s_nbN}", f"s_mov_b32 s{s_cntCur}, s{s_cntN}"] + wp
    run(adv)
    if pair: e(f"s_mov_b32 s{s_o}, {KSC}\ns_mov_b32 s{s_o+1}, {KSC}")
    e.wvm('ps'); e.wds('pd')
    M = misc()
    run(M[:2])
    e.wvm0()
    run(hs_read())
    run(M[2:])
    e.wds('hs')
    G = [mfma(PRE0, HS, ID, None), mfma(PRE0, HS + 4, ID + 4, PRE0), mfma(PRE0, OH1A, AW, PRE0)]
    run(dma())
    e(G[0]); e(G[1]); e.wds0(); e(G[2])
    e("s_nop 5")
    if opt.get('prio', 3): e("s_setprio 3")
    stamp('wprol')
    if opt.get('stamp'): e(f"s_mov_b32 s{s_dbg}, 0")
    e(".p2align 4\nK_loop:")
    loop_start = len(e.L)
    e.ds = []; e.vm = ['dma'] * 4
    if opt.get('stamp'): e(f"s_add_u32 s{s_dbg}, s{s_dbg}, 1")
    if opt.get('itst'): e(f"s_memtime s[0:1]\ns_add_u32 m0, s{s_dbg}, 31\ns_waitcnt lgkmcnt(0)\nv_writelane_b32 v{vST}, s0, m0")
    pm = opt.get('prio', 1)
    def prio_check(tag, reg, th):
        tail.append(f"""
        K_prio{tag}:
        s_setprio 2
        s_cmp_le_u32 s{reg}, {th[1]}
        s_cbranch_scc0 K_priob{tag}
        s_setprio 1
        s_cmp_le_u32 s{reg}, {th[2]}
        s_cbranch_scc0 K_priob{tag}
        s_setprio 0
        s_branch K_priob{tag}
        """)
        return [f"s_cmp_le_u32 s{reg}, {th[0]}", f"s_cbranch_scc1 K_prio{tag}\nK_priob{tag}:"]
    W = window()
    hw = opt.get('hw', 19); c2 = opt.get('c2', 13); c3 = opt.get('c3', 19); c4_ = opt.get('c4', 15)
    pr = prio_check('a', s_rem, (128, 64, 0)) if pm else []
    dz = 4 if pair else 0
    phase(PRE0, gemm1(PRE1, 1, OH1A), seg(ACC1),
          {0: [f"v_add_u32 v{vRA}, s{s_p8}, v{cRA}\nv_add_u32 v{vTA}, s{s_p8}, v{cTA}"] + rec_read(), c2: oh2_read() + m_b(), c3: W[:3]},
          [(c3, W[3:]), (45 + dz, pr), (59 + dz, [f"s_cmp_lg_u32 s{s_flush}, 0"])])
    e("s_cbranch_scc1 K_flush\nK_flushb:")
    phase(PRE1, gemm1(PRE0, 0, OH1B), seg(ACC0),
          {0: [lambda: e.wvm('dma')] + hs_read() + idx_read(0), 5: [lambda: e.wds('oh2')], hw: [lambda: e.wds('idx')] + dma()},
          [(53 + dz, [f"s_cmp_gt_u32 s{s_cntCur}, 32", f"s_cselect_b32 s{s_t0}, 1, s{s_cntN}", f"s_cmp_eq_u32 s{s_t0}, 0"])])
    e("s_cbranch_scc1 K_drain")
    M = misc()
    phase(PRE0, gemm1(PRE1, 1, OH1B), seg(ACC1),
          {c2: oh2_read() + M[:1], c4_: [lambda: e.wvm('ps')] + M[1:]}, [(19, aw_cond())])
    phase(PRE1, gemm1(PRE0, 0, OH1A), seg(ACC0),
          {0: [lambda: e.wvm('dma')] + hs_read() + idx_read(256) + [lambda: e.wds('oh1')], hw: [lambda: e.wds('idx')] + dma()},
          [(45 + dz, adv + [f"s_cmp_lg_u32 s{s_cntN}, 0"])])
    e("s_cbranch_scc1 K_loop")
    assert e.vm == ['dma'] * 4, e.vm
    def xf(l):
        if opt.get('x_novm') and ('buffer_load' in l or 'vmcnt' in l): return False
        if opt.get('x_nods') and ('_tr_' in l or 'ds_read_b128' in l or 'ds_write' in l): return False
        rm = {'hs': [f"ds_read_b128 v[{HS+4*i}:" for i in range(4)], 'oh2': [f"ds_read_b64_tr_b16 v[{OH2+2*i}:" for i in range(4)],
              'aw': [f"ds_read_b64_tr_b16 v[{AW+2*i}:" for i in range(4)], 'pd': [f"ds_read_b128 v[{PD}:"],
              'oh1': [f"ds_read_b128 v[{OH1A}:", f"ds_read_b128 v[{OH1B}:"], 'mw': ["ds_write_b64"], 'dma': [" lds"], 'ps': ["dwordx3"],
              'mf': ['v_mfma'], 'tr': ['v_exp', 'v_rcp'], 'idx': [f"ds_read_u16 v{IDX+2*j}," for j in range(4)], 'm0': [' m0,'],
              'vmw': ['vmcnt'], 'pk': ['v_pk_'], 'cvt': [f"v_cvt_pk_bf16_f32 v{MR+i}," for i in range(8)], 'perm': ['permlane'],
              'seg': [f"v_mfma_f32_32x32x16_bf16 v[{ACC0}:", f"v_mfma_f32_32x32x16_bf16 v[{ACC1}:"]}
        for k in str(opt.get('x_rm', '')).split('+'):
            if k in rm and any(t in l for t in rm[k]): return False
        return True
    e.L = e.L[:loop_start] + [l for l in e.L[loop_start:] if xf(l)]
    e("K_drain:\ns_nop 0")
    stamp('loop')
    if opt.get('stamp'): e(f"v_writelane_b32 v{vST}, s{s_dbg}, 28")
    for x in seg(ACC1): e(x)
    e(f"ds_write_b64 v{vMA}, v[{ZQ}:{ZQ+1}]")
    flush(s_nbCur)
    e("K_wavedone:")
    e("s_setprio 0")
    e("s_waitcnt vmcnt(0) lgkmcnt(0)")
    stamp('drain')
    e("s_barrier")
    stamp('B3')
    dreg = lambda k: (PRE0 + 4 * k) if k < 8 else (ACC0 + 4 * (k - 8))
    aF = T0
    e(f"ds_read_b32 v{aF}, v{ZQ} offset:{L_FLAG}")
    for k in range(16): e(f"ds_read_b128 {vr(dreg(k),4)}, v{aA} offset:{128*(k>>2)+16*(k&3)}")
    e(f"ds_read_b64 {vr(PD,2)}, v{aPA}\nds_read_b32 v{PD+2}, v{aPO} offset:{L_POSD}")
    e(f"s_waitcnt lgkmcnt(14)\nv_readfirstlane_b32 s{s_t0}, v{aF}")
    for k in range(16):
        if k % 4 == 0 and k: e(f"s_waitcnt lgkmcnt({14-k})")
        r = dreg(k)
        e(f"v_cvt_f32_f64 v{r}, {vr(r,2)}\nv_cvt_f32_f64 v{r+1}, {vr(r+2,2)}")
        if k == 0: e(f"s_cmp_lg_u32 s{s_t0}, 0\ns_cbranch_scc1 K_more")
        if k: e(f"v_cvt_pk_bf16_f32 v{HS+k-1}, v{dreg(k-1)}, v{dreg(k-1)+1}")
        if k % 4 == 1 and k > 4: e(mfma(DH, WHM + 4 * (k // 4 - 1), HS + 4 * (k // 4 - 1), DH))
    e(f"v_cvt_pk_bf16_f32 v{HS+15}, v{dreg(15)}, v{dreg(15)+1}")
    e(f"s_waitcnt lgkmcnt(0)\nv_cvt_f32_f64 v{PD}, {vr(PD,2)}")
    e(mfma(DH, WHM + 12, HS + 12, DH))
    e(f"""
    v_add_f32 v{PD}, v{PD}, v{PD+2}
    v_cvt_pk_bf16_f32 v{PD}, v{PD}, v{PD}
    buffer_store_short v{PD}, v{oP}, {sr(sOP,4)}, 0 offen{OF}
    """)
    e("s_nop 7\ns_nop 1")
    X = TMP
    if not dhs:
        for i in range(0, 16, 2): e(f"v_pk_mul_f32 {vr(X+i,2)}, {vr(DH+i,2)}, {sr(sC,2)}")
    for i in range(16): e(f"v_exp_f32 v{X+i}, v{(DH if dhs else X)+i}")
    for i in range(0, 16, 2): e(f"v_pk_add_f32 {vr(X+i,2)}, {vr(X+i,2)}, 1.0 op_sel_hi:[1,0]")
    for i in range(16): e(f"v_rcp_f32 v{X+i}, v{X+i}")
    for hf in range(2):
        if dhs:
            for i in range(8 * hf, 8 * hf + 8, 2): e(f"v_pk_mul_f32 {vr(X+i,2)}, {vr(DH+i,2)}, {vr(X+i,2)}")
            for i in range(8 * hf, 8 * hf + 8, 2): e(f"v_pk_fma_f32 {vr(X+i,2)}, {vr(X+i,2)}, {sr(sC,2)}, {vr(RS+i,2)}")
        else:
            for i in range(8 * hf, 8 * hf + 8, 2): e(f"v_pk_fma_f32 {vr(X+i,2)}, {vr(DH+i,2)}, {vr(X+i,2)}, {vr(RS+i,2)}")
        for i in range(4 * hf, 4 * hf + 4): e(f"v_cvt_pk_bf16_f32 v{HS+i}, v{X+2*i}, v{X+2*i+1}")
        e(f"ds_write_b128 v{aW+hf}, {vr(HS+4*hf,4)}")
    e(f"ds_read_b128 {vr(HS+8,4)}, v{aR}\nds_read_b128 {vr(HS+12,4)}, v{aR} offset:1024")
    spin(2)
    stamp('epi'); rt(25)
    fin(s_b, s_w, 8, sWS, WS_STAMP, T0 + 1)
    e(f"""
    s_waitcnt lgkmcnt(1)
    buffer_store_dwordx4 {vr(HS+8,4)}, v{nd}, {sr(sOUT,4)}, 0 offen{OF}
    s_waitcnt lgkmcnt(0)
    buffer_store_dwordx4 {vr(HS+12,4)}, v{nd2}, {sr(sOUT,4)}, 0 offen offset:2048{OF}
    K_fin:
    """)
    if opt.get('x_pad') == 'fin': e("s_waitcnt vmcnt(0)"); stamp('fin')
    e("K_end:\ns_endpgm")
    e("K_flush:")
    flush(s_nbOld)
    e("s_branch K_flushb")
    for t in tail: e(t)
    e(f"""
    K_reflg:
    s_add_u32 s63, s63, 1
    s_cmp_gt_u32 s63, 0x40000
    s_cbranch_scc1 K_flgok
    buffer_load_dwordx2 {vr(FLV,2)}, v{aFL}, {sr(sWS,4)}, s62 offen{SC}
    s_branch K_flg
    """)
    e("K_repoll:")
    if opt.get('sleep', 4): e(f"s_sleep {opt.get('sleep', 4)}")
    for i in range(2):
        e(f"s_mov_b64 exec, {sr(4+2*i,2)}\nbuffer_load_dwordx2 {vr(OFFV+2*i,2)}, v{tA}, {sr(sWS,4)}, s{16+i} offen{SC}")
    e("s_mov_b64 exec, -1\ns_branch K_poll")
    for t in ovf_blocks: e(t)
    ovf_blocks.clear()
    e(f"K_setflag:\nv_mov_b32 v{tA}, 1\nv_mov_b32 v{tB}, {L_FLAG}\nds_write_b32 v{tB}, v{tA}\ns_waitcnt lgkmcnt(0)\ns_branch K_flagset")
    def zero_hist():
        e(f"""
        v_cmp_gt_u32 vcc, 65, v0
        v_lshlrev_b32 v{tA}, 4, v0
        s_nop 0
        s_mov_b64 exec, vcc
        ds_write_b128 v{tA}, {vr(ZQ,4)} offset:{L_HIST}
        s_mov_b64 exec, -1
        s_waitcnt lgkmcnt(0)
        s_barrier
        """)
    if epos == 1:
        e(f"K_skip:\ns_cmp_lg_u32 s{s_done}, 0\ns_cbranch_scc1 K_wavedone")
        epi_consts()
        e("s_branch K_wavedone")
    e("K_retry:\ns_waitcnt lgkmcnt(0)\ns_barrier")
    zero_hist()
    e(f"s_mov_b32 s{s_take}, 8\ns_mov_b32 s{s_ovf}, 0\ns_add_u32 s{s_t0}, s{s_done}, 8")
    for i in range(2):
        e(f"v_min_u32 v{tB}, s{s_t0}, v{vU+i}\nv_sub_u32 v{tB}, v{tB}, v{vT2D}")
        for u in range(6): e(f"v_cmp_lt_i32 {sr(smask(6*i+u),2)}, {u}, v{tB}")
    e("s_branch K_hist")
    e("K_more:\ns_waitcnt lgkmcnt(0)\ns_barrier")
    zero_hist()
    e(mfma(ACC0, ZQ, ZQ)); e(mfma(ACC1, ZQ, ZQ))
    for r in range(16): e(f"v_mov_b32 v{OH1A+r}, 0")
    e(f"s_add_u32 s{s_done}, s{s_done}, s{s_take}\ns_mov_b32 s{s_take}, 32")
    e.vm = []
    offs_pre(); offs_loads(); rec_pre(); rec_loads(True, 'b')
    e("s_branch K_hist")
    for t in ovf_blocks: e(t)
    s = HEADER + f"; @launch grid=({NW},1,1) block=(512,1,1) lds={LDS}\n"
    s += '.amdgcn_target "amdgcn-amd-amdhsa--gfx950"\n.text\n' + e.text()
    s += KD.format(name=nm, vgpr=256, acc=256, sgpr=102)
    return s

if __name__ == "__main__":
    opt = {}
    for a in sys.argv[2:]:
        k, _, v = a.partition("="); opt[k] = (int(v) if v.isdigit() else v) if v else 1
    open(sys.argv[1], "w").write(gen(opt))
    if opt.get('stamp'): print(",".join(opt['names']))
```

```python
import sys
from gen import Em, vr, sr, srd, wave_scan, KD, mk_stamp, mfma, HEADER, LOG2E, NLOG2E, LN2

N = 25000; E = 800000; NPB = 98; NW = 256; CH = 3128; NQ = CH // 4
RECB = 15744; DOFF = 12544
WS_REC = 0; WS_OFF = 0x620000; WS_POS = 0x6A0000; WS_TOK = 0x710000; WS_FLG = 0x720000; WS_B = 0x800000; WS_SZ = 0xC00000; WS_STAMP = 0x780000
CAP = 3584
L_REC = 0; L_H1 = 25088; L_B1 = 26112
L_POSD = 29184; L_OHT = 31232; L_HIST = 31392; L_BASE = 31904; L_FLAG = 32416; L_WDA = 32448
L_MM = 33664; L_ACC = 50048; L_PACC = 105488; L_ATAB = 108848; L_STG = 127360; LDS = 160128
L_W = L_ACC
ACS = 528; ATS = 144
ID = 2; SCR = 10; DH = 34; WHM = 50; HR = 66; ACC0 = 74; ACC1 = 90; PRE0 = 106; PRE1 = 122; TMP = 138; MR = 154
HS = 162; AW = 178; OH1A = 186; OH1B = 190; OH2 = 194; IDX = 202; ZQ = 210; RW = 214; PS = 216; vPI = 219
PD = 220; WP = 224; vMA = 226; vRA = 227; vTA = 228; cRA = 229; cTA = 230; cHS = 231; cM = 235; cMW = 237
vAWA = 238; cAW = 239; cF = 240; cP = 241; wx0 = 242; wx1 = 243; vMX = 244; T0 = 245; vST = 255
sDST = 28; sSRC = 32; sEA = 36; sWS = 40; sH = 44; sPF = 48; sOUT = 52; sOP = 56; sDBG = 60
sWE = 64; sWH = 68; sPOS = 72; sWX = 76; sM0 = 80; sM1 = 82; sMASK = 4
s_w = 3; s_b = 84; s_nb0 = 85; s_rb = 86; s_cb = 87; s_stg = 88; s_t0 = 89; s_t1 = 90; s_t2 = 91
sC = 92; sLO = 94; sQ = 96; s_done = 98; s_take = 99; s_T = 100; s_c = 101
s_p = 64; s_pn = 65; s_end = 66; s_p8 = 67; s_lim = 68; s_nbN = 69; s_nbCur = 70; s_nbOld = 71
s_flN = 72; s_flush = 73; s_cntN = 74; s_cntCur = 75; s_need = 76; s_mkB = 77; sMK = 78; sMV = 80; s_o = 36; s_dbg = 82; L_TOK = L_FLAG + 16; L_BST = L_STG + 16384

DOC = '''; One launch, 256 co-resident workgroups (one per CU, 8 waves each).  Workgroup c
;     together with B = -log2(e) * h[bin] @ w_e[64:128] (bf16) and fp32 positions of its own bin;
'''
NLN2 = LN2 | 0x80000000
s_rem = 83

def gen(opt):
    opt.setdefault('pfp', 1); opt.setdefault('pfb', 0); opt.setdefault('sleep', 0); opt.setdefault('cpf', 21)
    fold = opt.get('fold', 1)
    dhs = fold and opt.get('dhs', 0)
    pair = fold and opt.get('pair', 0)
    assert not (pair and dhs)
    import struct as _st
    KSC = 0x21800000
    NLN2 = globals()['NLN2'] if not pair else _st.unpack('<I', _st.pack('<f', -0.6931471805599453 * 2.0 ** -60))[0]
    ordr = opt.get('ord', 1)
    FL = {0: "", 1: " nt", 2: " sc1", 3: " sc1 nt", 4: " sc0 sc1 nt", 5: " sc0 sc1"}
    EN = FL[opt.get('en', 3)]; ON = FL[opt.get('on', 3)]; RN = FL[opt.get('rn', 2)]; SN = FL[opt.get('sn', 2)]; BN = FL[opt.get('bn', 2)]
    SC = " sc1"
    OF = {0: "", 1: " sc1", 2: " nt", 3: " sc0 sc1", 4: " sc1 nt", 5: " sc0 sc1 nt"}[opt.get("of", 5)]
    e = Em(); nm = "standalone__cheap_equivariant_egnn__graph_kernel"
    stamp, real, fin = mk_stamp(e, opt, vST)
    e(f".globl {nm}\n.p2align 8\n.type {nm},@function\n{nm}:")
    cpf = ""
    if opt.get('cpf', 0):
        n2 = opt.get('cpf')
        cpf = f"s_getpc_b64 s[26:27]\nv_lshlrev_b32 v{HS}, 7, v1\nv_add_u32 v{HS+1}, 0x2000, v{HS}\nglobal_load_dword v{HS+2}, v{HS}, s[26:27] offset:512\n"
        cpf += f"s_mov_b64 exec, {hex((1 << n2) - 1)}\nglobal_load_dword v{HS+3}, v{HS+1}, s[26:27] offset:512\ns_mov_b64 exec, -1"
    o8 = T0 + 4; t8 = T0 + 5
    rho = PD; hb = PD + 1; f3 = PD + 2; r4 = PD + 3; slot = WP; g1 = WP + 1; c4 = RW; tq = RW + 1
    cp2 = opt.get('cp2', 12)
    e(f"""
    s_cmp_ge_u32 s2, {NW}
    s_cbranch_scc1 K_end
    s_load_dwordx16 s[4:19], s[0:1], 0
    s_load_dwordx4 s[20:23], s[0:1], 64
    s_load_dwordx2 s[24:25], s[0:1], 80
    v_lshrrev_b32 v{T0}, 6, v0
    v_and_b32 v1, 63, v0
    """)
    if cp2:
        e(f"""
        s_getpc_b64 s[26:27]
        v_mad_u32_u24 v{HS}, v{T0}, {cp2}, v1
        v_lshlrev_b32 v{HS}, 7, v{HS}
        s_mov_b64 exec, {hex((1 << cp2) - 1)}
        global_load_dword v{HS+1}, v{HS}, s[26:27]
        s_mov_b64 exec, -1
        """)
    if opt.get('x_pad'): e("s_memrealtime s[90:91]")
    e(f"""
    v_readfirstlane_b32 s{s_w}, v{T0}
    s_mul_i32 s{s_t0}, s2, {NQ}
    v_add_u32 v{T0}, s{s_t0}, v0
    v_add_u32 v{T0+1}, 0x200, v{T0}
    s_mov_b32 s{s_c}, {E//4}
    v_cmp_gt_u32 {sr(sM1,2)}, s{s_c}, v{T0+1}
    v_cmp_gt_u32 vcc, {NQ-512}, v0
    v_lshlrev_b32 v{ID}, 4, v{T0}
    v_lshlrev_b32 v{ID+1}, 4, v{T0+1}
    v_mov_b32 v{ZQ}, 0
    s_and_b64 {sr(sM1,2)}, {sr(sM1,2)}, vcc
    s_waitcnt lgkmcnt(0)
    """)
    if opt.get('x_pad'): e("s_mov_b32 s88, s90")
    srd(e, sDST, 12, 13, E * 4)
    e.v('dst', f"buffer_load_dwordx4 {vr(106,4)}, v{ID}, {sr(sDST,4)}, 0 offen{EN}")
    e(f"s_mov_b64 exec, {sr(sM1,2)}")
    e.v('dst', f"buffer_load_dwordx4 {vr(116,4)}, v{ID+1}, {sr(sDST,4)}, 0 offen{EN}")
    e(f"""
    s_mov_b64 exec, -1
    v_cmp_gt_u32 {sr(sM0,2)}, s{s_c}, v{T0}
    s_mov_b32 s{s_c}, s2
    s_and_b32 s{s_b}, s2, 7
    s_lshl_b32 s{s_b}, s{s_b}, 5
    s_lshr_b32 s{s_t0}, s2, 3
    s_add_u32 s{s_b}, s{s_b}, s{s_t0}
    s_mul_i32 s{s_nb0}, s{s_b}, {NPB}
    s_lshr_b32 s{s_rb}, s{s_w}, 1
    s_and_b32 s{s_cb}, s{s_w}, 1
    v_lshlrev_b32 v{ID+2}, 3, v{T0}
    v_lshlrev_b32 v{ID+3}, 3, v{T0+1}
    v_lshrrev_b32 v{o8}, 3, v1
    v_and_b32 v{t8}, 7, v1
    v_mov_b32 v{ZQ+1}, 0
    v_mov_b32 v{ZQ+2}, 0
    v_mov_b32 v{ZQ+3}, 0
    v_lshlrev_b32 v{tq}, 4, v0
    s_cmp_lg_u32 s{s_w}, 7
    s_cbranch_scc1 K_nh1
    ds_write_b128 v{tq}, {vr(ZQ,4)} offset:{L_H1-7*1024}
    K_nh1:
    """)
    def spin(tag):
        if opt.get('x_spin') == tag:
            e(f"""
            s_memtime s[0:1]
            s_waitcnt lgkmcnt(0)
            s_add_u32 s2, s0, 20000
            KX_spin:
            s_memtime s[0:1]
            s_waitcnt lgkmcnt(0)
            s_sub_u32 s0, s0, s2
            s_cmp_lt_i32 s0, 0
            s_cbranch_scc1 KX_spin
            """)
    stamp0 = stamp
    def stamp(name):
        stamp0(name)
        if opt.get('x_pad') == name:
            e(f"""
            KX_pad:
            s_memrealtime s[0:1]
            s_waitcnt lgkmcnt(0)
            s_sub_u32 s0, s0, s2
            s_cmp_lt_u32 s0, 5000
            s_cbranch_scc1 KX_pad
            """)
    if opt.get('x_pad'): e("s_mov_b32 s2, s88")
    spin(1)
    real(); stamp('start')
    def rt(lane):
        if opt.get('stamp'): e(f"s_memrealtime s[0:1]\ns_waitcnt lgkmcnt(0)\nv_writelane_b32 v{vST}, s0, {lane}")


    D0, S0, E0, D1, S1, E1 = 106, 110, 114, 116, 120, 124
    REC1 = 126; HA = 142; RK = 150; SCN = 158; PO = OH2; TK = OH1A; RWV = SCR + 16
    vRO = 251; vBG = 252; vBW = 253; nd = vBG; nd2 = 254
    sHR = sH; sBS = sPOS
    HA4 = AW; vONE = PS + 1; vL16 = PS + 2
    aE = ID
    HO = [HR, HR + 4, ACC1, ACC1 + 4]
    def rd(tag, dst, off):
        for s_ in range(4):
            for t in range(2): e.d(tag, f"ds_read_b64_tr_b16 {vr(dst+4*s_+2*t,2)}, v{T0+1+(s_>>1)} offset:{off+1024*(s_&1)+512*t}")
    def mm(d, a):
        for s_ in range(4): e(mfma(d, a + 4 * s_, HO[s_], None if s_ == 0 else d))
    def scale_pack(src):
        if fold:
            for r in range(16): e(f"v_mul_f32 v{src+r}, s7, v{src+r}")
        for r in range(8): e(f"v_cvt_pk_bf16_f32 v{AW+r}, v{src+2*r}, v{src+2*r+1}")
    srd(e, sWS, 24, 25, WS_SZ)
    e(f"""
    s_lshl_b32 s{s_t0}, s{s_c}, 3
    s_add_u32 s{s_t0}, s{s_t0}, s{s_w}
    s_cmp_eq_u32 s{s_t0}, 5
    s_cselect_b64 {sr(26,2)}, 1, 0
    s_mov_b32 s{s_t2}, {WS_TOK}
    s_mov_b64 exec, {sr(26,2)}
    """)
    e.v('dst', f"buffer_load_dwordx2 {vr(TK,2)}, v{ZQ}, {sr(sWS,4)}, s{s_t2} offen{SC}")
    e("s_mov_b64 exec, -1")
    srd(e, sHR, 4, 5, N, stride=128); srd(e, sWE, 14, 15, 130 * 128)
    e(f"""
    s_lshl_b32 s12, s{s_w}, 11
    s_lshl_b32 s13, s{s_w}, 10
    s_mov_b32 s14, 8192
    s_lshl_b32 s{s_t0}, s{s_w}, 4
    s_add_u32 s{s_t0}, s{s_t0}, s{s_nb0}
    v_lshrrev_b32 v{vPI}, 4, v1
    v_xor_b32 v{vPI}, v{t8}, v{vPI}
    v_lshlrev_b32 v{IDX+1}, 4, v{vPI}
    v_add_u32 v{IDX}, s{s_t0}, v{o8}
    v_xor_b32 v{IDX+3}, 64, v{IDX+1}
    v_add_u32 v{IDX+2}, 8, v{IDX}
    v_mov_b32 v{IDX+5}, v{IDX+1}
    """)
    if opt.get('own98', 1):
        e(f"""
        s_add_u32 s{s_t0}, s{s_nb0}, {NPB}
        v_cmp_gt_u32 vcc, s{s_t0}, v{IDX}
        v_cmp_gt_u32 {sr(0,2)}, s{s_t0}, v{IDX+2}
        v_mov_b32 v{vPI}, 0x100000
        v_cndmask_b32 v{IDX}, v{vPI}, v{IDX}, vcc
        v_cndmask_b32 v{IDX+2}, v{vPI}, v{IDX+2}, {sr(0,2)}
        """)
    def own_loads():
        e(f"s_add_u32 m0, s12, {L_STG}\ns_nop 0")
        e.v('own', f"buffer_load_dwordx4 {vr(IDX,2)}, {sr(sHR,4)}, 0 idxen offen{ON} lds")
        e(f"s_add_u32 m0, s12, {L_STG+1024}\ns_nop 0")
        e.v('own', f"buffer_load_dwordx4 {vr(IDX+2,2)}, {sr(sHR,4)}, 0 idxen offen{ON} lds")
        e(f"s_add_u32 m0, s13, {L_W+8192}\ns_nop 0")
        e.v('own', f"buffer_load_dwordx4 v{tq}, {sr(sWE,4)}, s14 offen lds")
    oe = opt.get('oe', 1)
    if not ordr or oe in (1, 2): own_loads()
    def src_loads():
        e.v('src', f"buffer_load_dwordx4 {vr(S0,4)}, v{aE}, {sr(sSRC,4)}, 0 offen{EN}")
        e.v('src', f"buffer_load_dwordx2 {vr(E0,2)}, v{aE+2}, {sr(sEA,4)}, 0 offen{EN}")
        e(f"s_mov_b64 exec, {sr(sM1,2)}")
        e.v('src', f"buffer_load_dwordx4 {vr(S1,4)}, v{aE+1}, {sr(sSRC,4)}, 0 offen{EN}")
        e.v('src', f"buffer_load_dwordx2 {vr(E1,2)}, v{aE+3}, {sr(sEA,4)}, 0 offen{EN}")
        e(f"s_cmp_ge_u32 s{s_w}, 6\ns_cselect_b64 exec, -1, 0")
        for k in range(3): e.v('src', f"buffer_load_ushort v{PO+k}, v{PO+6}, {sr(sPOS,4)}, 0 offen offset:{2*k}")
        e(f"s_cmp_eq_u32 s{s_w}, 5\ns_cselect_b64 exec, -1, 0\ns_mov_b32 s{s_t0}, 16384")
        for k in range(2): e.v('src', f"buffer_load_ushort v{PO+k}, v{PO+7}, {sr(sWE,4)}, s{s_t0} offen offset:{128*k}")
        e("s_mov_b64 exec, -1")
    stamp('iss')
    srd(e, sSRC, 10, 11, E * 4); srd(e, sEA, 8, 9, E * 2)
    srd(e, sPOS, 6, 7, N * 6); srd(e, sDBG, 22, 23, 256)
    e(f"""
    v_mov_b32 v{IDX+7}, v{IDX+3}
    v_and_b32 v{rho}, 31, v1
    v_lshrrev_b32 v{hb}, 5, v1
    v_bfe_u32 v{f3}, v1, 1, 3
    v_bfe_u32 v{r4}, v1, 2, 2
    v_bfe_u32 v{g1}, v1, 4, 1
    v_and_b32 v{c4}, 3, v1
    v_subrev_u32 v{PO+5}, 0x180, v0
    v_add_u32 v{PO+4}, s{s_nb0}, v{PO+5}
    v_mul_u32_u24 v{PO+6}, 6, v{PO+4}
    v_lshlrev_b32 v{PO+7}, 1, v1
    v_cmp_gt_u32 vcc, 152, v0
    ds_write_b128 v{tq}, {vr(ZQ,4)} offset:{L_OHT}
    ds_write_b128 v{tq}, {vr(ZQ,4)} offset:{L_OHT+8192}
    s_mov_b64 exec, vcc
    ds_write_b128 v{tq}, {vr(ZQ,4)} offset:{L_OHT+16384}
    s_mov_b64 exec, -1
    """)
    if ordr and oe != 1: src_loads()
    if oe == 3: own_loads()
    srd(e, sWH, 18, 19, 128 * 128); srd(e, sWX, 16, 17, 128)
    srd(e, sPF, 24, 25, N + 216, add=WS_POS, stride=16)
    srd(e, sOUT, 20, 21, N * 128); srd(e, sOP, 20, 21, N * 6, add=N * 128)
    if opt.get('tlb'):
        a = HS + 12
        e(f"""
        v_mov_b32 v{a}, 0
        s_lshl_b32 s{s_t1}, s{s_nb0}, 7
        s_cmp_lg_u32 s{s_w}, 6
        s_cbranch_scc1 K_notlb
        s_mul_i32 s{s_t0}, s{s_c}, {RECB}
        v_mov_b32 v{a}, s{s_t0}
        s_lshl_b32 s{s_t0}, s{s_c}, 11
        s_add_u32 s{s_t0}, s{s_t0}, {WS_OFF}
        v_writelane_b32 v{a}, s{s_t0}, 1
        s_add_u32 s{s_t0}, s{s_t1}, {WS_B}
        v_writelane_b32 v{a}, s{s_t0}, 2
        s_lshl_b32 s{s_t0}, s{s_c}, 7
        s_add_u32 s{s_t0}, s{s_t0}, {WS_FLG}
        v_writelane_b32 v{a}, s{s_t0}, 3
        K_notlb:
        s_cmp_eq_u32 s{s_w}, 6
        s_cselect_b64 exec, 15, 0
        """)
        e.v('tlb', f"buffer_load_dword v{a+1}, v{a}, {sr(sWS,4)}, 0 offen")
        e("s_cselect_b64 exec, 1, 0")
        e.v('tlb', f"buffer_load_dword v{a+2}, v{ZQ}, {sr(sOUT,4)}, s{s_t1} offen")
        e.v('tlb', f"buffer_load_ushort v{a+3}, v{ZQ}, {sr(sOP,4)}, 0 offen")
        e("s_mov_b64 exec, -1")
    e(f"""
    s_mov_b32 s4, 42800
    s_mov_b32 s5, -98
    s_mov_b32 s6, 0xffff0000
    s_mov_b32 s7, {NLOG2E}
    s_mul_i32 s8, s{s_c}, {RECB}
    s_add_u32 s9, s8, 8192
    v_mov_b32 v{vONE}, 1
    v_lshlrev_b32 v{vL16}, 4, v1
    v_lshl_or_b32 v{slot}, v{g1}, 2, v{c4}
    v_lshl_or_b32 v{T0}, v{hb}, 3, v{r4}
    v_lshlrev_b32 v{T0}, 7, v{T0}
    v_and_b32 v{T0+1}, 1, v{c4}
    v_lshrrev_b32 v{T0+2}, 1, v{c4}
    v_lshlrev_b32 v{T0+1}, 5, v{T0+1}
    v_lshl_or_b32 v{T0+1}, v{g1}, 4, v{T0+1}
    v_lshl_or_b32 v{T0+1}, v{T0+2}, 3, v{T0+1}
    s_lshl_b32 s{s_t0}, s{s_cb}, 6
    s_add_u32 s{s_t0}, s{s_t0}, {L_W}
    v_add3_u32 v{T0+3}, v{T0}, v{T0+1}, s{s_t0}
    v_lshl_add_u32 v{T0+1}, v{hb}, 10, v{T0+3}
    s_lshl_b32 s{s_t0}, s{s_cb}, 12
    s_xor_b32 s{s_t1}, s{s_t0}, 4096
    v_add_u32 v{T0+2}, s{s_t1}, v{T0+1}
    v_add_u32 v{T0+1}, s{s_t0}, v{T0+1}
    s_lshl_b32 s{s_t0}, s{s_rb}, 12
    s_add_u32 s{s_t1}, s{s_t0}, {L_STG}
    v_lshl_add_u32 v{HA4+5}, v{rho}, 7, s{s_t1}
    s_lshl_b32 s{s_t1}, s{s_cb}, 2
    v_lshlrev_b32 v{HA4+4}, 1, v{hb}
    v_xor_b32 v{HA4+4}, s{s_t1}, v{HA4+4}
    v_xor_b32 v{HA4+4}, v{HA4+4}, v{f3}
    """)
    for s_ in range(4):
        k = 4 * (s_ >> 1) + (s_ & 1)
        e(f"v_xor_b32 v{HA4+s_}, {k}, v{HA4+4}\nv_lshl_add_u32 v{HA4+s_}, v{HA4+s_}, 4, v{HA4+5}")
    e(f"""
    s_add_u32 s{s_t1}, s12, {L_BST}
    v_and_b32 v{T0}, 3, v{f3}
    v_lshlrev_b32 v{vBW}, 1, v{hb}
    v_xor_b32 v{vBW}, v{vBW}, v{T0}
    v_lshlrev_b32 v{vBW}, 4, v{vBW}
    v_lshl_add_u32 v{vBW}, v{rho}, 6, v{vBW}
    v_add_u32 v{vBW}, s{s_t1}, v{vBW}
    v_add_u32 v{ID+5}, s{s_t1}, v{vL16}
    s_lshl_b32 s{s_t0}, s{s_rb}, 5
    v_lshrrev_b32 v{T0}, 2, v1
    v_add_u32 v{T0}, s{s_t0}, v{T0}
    v_cmp_gt_u32 vcc, {NPB}, v{T0}
    s_movk_i32 s{s_t1}, {NPB-16}
    v_cmp_gt_u32 {sr(18,2)}, s{s_t1}, v{T0}
    v_add_u32 v{T0}, s{s_nb0}, v{T0}
    v_xor_b32 v{vBG}, v{o8}, v1
    v_and_b32 v{vBG}, 3, v{vBG}
    v_lshlrev_b32 v{T0}, 7, v{T0}
    v_lshl_add_u32 v{T0}, v{vBG}, 4, v{T0}
    s_lshl_b32 s{s_t1}, s{s_cb}, 6
    v_add_u32 v{T0}, s{s_t1}, v{T0}
    v_mov_b32 v{vPI}, 0x1000000
    v_cndmask_b32 v{vBG}, v{vPI}, v{T0}, vcc
    v_cndmask_b32 v{nd2}, v{vPI}, v{T0}, {sr(18,2)}
    v_cmp_gt_u32 vcc, 468, v0
    v_lshlrev_b32 v{vRO}, 5, v1
    s_lshl_b32 s15, s{s_c}, 11
    s_add_u32 s15, s15, {WS_OFF}
    v_cndmask_b32 v{vPI}, v{vPI}, v{tq}, vcc
    v_lshlrev_b32 v{ID+4}, 1, v{rho}
    """)
    srcpos = opt.get('srcpos', 1) if (not ordr or oe == 1) else -1
    e("s_waitcnt lgkmcnt(0)\ns_barrier")
    stamp('Ba')
    e.wvm('dst')
    stamp('dst')
    if srcpos == 1: src_loads()
    e(f"""
    s_mov_b64 exec, {sr(26,2)}
    s_cbranch_execz K_notok
    v_add_u32 v{TK}, 1, v{TK}
    v_add_u32 v{TK+1}, 1, v{TK+1}
    v_mov_b32 v{TK+4}, v{TK}
    v_lshl_or_b32 v{TK+5}, v{TK+1}, 24, 1
    buffer_store_dwordx2 {vr(TK+4,2)}, v{ZQ}, {sr(sDBG,4)}, 0 offen{SC}
    buffer_store_dwordx2 {vr(TK,2)}, v{ZQ}, {sr(sWS,4)}, s{s_t2} offen{SC}
    K_notok:
    """)
    for r, D in enumerate((D0, D1)):
        if r: e(f"s_mov_b64 exec, {sr(sM1,2)}\ns_cbranch_execz K_h1")
        else: e(f"s_mov_b64 exec, {sr(sM0,2)}")
        for k in range(4): e(f"v_mul_u32_u24 v{HA+4*r+k}, s4, v{D+k}")
        for k in range(4): e(f"v_lshrrev_b32 v{HA+4*r+k}, 22, v{HA+4*r+k}")
        for k in range(4): e(f"v_mad_i32_i24 v{REC1+8*r+2*k+1}, v{HA+4*r+k}, s5, v{D+k}")
        for k in range(4): e(f"v_lshlrev_b32 v{HA+4*r+k}, 2, v{HA+4*r+k}")
        for k in range(4): e(f"ds_add_rtn_u32 v{RK+4*r+k}, v{HA+4*r+k}, v{vONE} offset:{L_H1}")
    e("K_h1:\ns_mov_b64 exec, -1")
    if srcpos == 2: src_loads()
    def w1_loads():
        e(f"s_add_u32 m0, s13, {L_W}\ns_nop 0")
        e.v('w1', f"buffer_load_dwordx4 v{tq}, {sr(sWE,4)}, 0 offen lds")
        e.v('w1', f"buffer_load_ushort v{wx0}, v{ID+4}, {sr(sWX,4)}, 0 offen")
        e.v('w1', f"buffer_load_ushort v{wx1}, v{ID+4}, {sr(sWX,4)}, 0 offen offset:64")
    def wh_loads():
        if ordr != 4: tok_load()
        e(f"s_add_u32 m0, s12, {L_W+16384}\ns_nop 0")
        e.v('wh', f"buffer_load_dwordx4 v{vL16}, {sr(sWH,4)}, s12 offen lds")
        e.v('wh', f"buffer_load_dwordx4 v{vL16}, {sr(sWH,4)}, s12 offen offset:1024 lds")
    def tok_load():
        e(f"s_cmp_eq_u32 s{s_w}, 4\ns_cselect_b64 exec, -1, 0")
        e.v('tok', f"buffer_load_dwordx2 {vr(TK,2)}, v{ZQ}, {sr(sDBG,4)}, 0 offen{SC}")
        e("s_mov_b64 exec, -1")
    def b_reads():
        for s_ in range(4): e.d('ho', f"ds_read_b128 {vr(HO[s_],4)}, v{HA4+s_}")
        rd('w2', SCR, 8192)
    def b_out(pre):
        scale_pack(ACC0)
        e(f"ds_write_b128 v{vBW}, {vr(AW,4)}\nds_write_b128 v{T0}, {vr(AW+4,4)}")
        e(f"ds_read_b128 {vr(ACC0,4)}, v{ID+5}\nds_read_b128 {vr(ACC0+4,4)}, v{ID+5} offset:1024")
        pre()
        srd(e, sBS, 24, 25, N * 128, add=WS_B)
        e("s_waitcnt lgkmcnt(1)")
        e.v('bst', f"buffer_store_dwordx4 {vr(ACC0,4)}, v{nd}, {sr(sBS,4)}, 0 offen{BN}")
        e("s_waitcnt lgkmcnt(0)")
        e.v('bst', f"buffer_store_dwordx4 {vr(ACC0+4,4)}, v{nd2}, {sr(sBS,4)}, 0 offen offset:2048{BN}")
        e.ds = []
    if not ordr: e.wvm('own')
    e("s_waitcnt lgkmcnt(0)\ns_barrier")
    e.ds = []
    stamp('Bb')
    e.d('h', f"ds_read_b128 {vr(SCN,4)}, v{vL16} offset:{L_H1}")
    late = ordr == 4
    if not late and not oe: own_loads()
    e.wds('h')
    e(f"""
    v_add_u32 v{SCN+4}, v{SCN}, v{SCN+1}
    v_add_u32 v{SCN+5}, v{SCN+4}, v{SCN+2}
    v_add_u32 v{SCN+6}, v{SCN+5}, v{SCN+3}
    v_mov_b32 v{SCN+7}, v{SCN+6}
    """)
    wave_scan(e, SCN + 7)
    e(f"""
    v_sub_u32 v{SCN+8}, v{SCN+7}, v{SCN+6}
    v_add_u32 v{SCN+9}, v{SCN+8}, v{SCN}
    v_add_u32 v{SCN+10}, v{SCN+8}, v{SCN+4}
    v_add_u32 v{SCN+11}, v{SCN+8}, v{SCN+5}
    """)
    e.d('bw', f"ds_write_b128 v{vL16}, {vr(SCN+8,4)} offset:{L_B1}")
    e(f"s_mov_b64 exec, {sr(sM0,2)}")
    for k in range(4): e.d('b0', f"ds_read_b32 v{HA+k}, v{HA+k} offset:{L_B1}")
    e(f"s_mov_b64 exec, {sr(sM1,2)}")
    for k in range(4, 8): e.d('b1', f"ds_read_b32 v{HA+k}, v{HA+k} offset:{L_B1}")
    e("s_mov_b64 exec, -1")
    if not ordr:
        e.wds('w2')
        mm(ACC0, SCR)
    def rec_words():
        for r, (S, EE) in enumerate(((S0, E0), (S1, E1))):
            e(f"""
            v_lshl_or_b32 v{REC1+8*r}, v{EE}, 16, v{S}
            v_and_or_b32 v{REC1+8*r+2}, v{EE}, s6, v{S+1}
            v_lshl_or_b32 v{REC1+8*r+4}, v{EE+1}, 16, v{S+2}
            v_and_or_b32 v{REC1+8*r+6}, v{EE+1}, s6, v{S+3}
            """)
    if ordr:
        e.wvm('src'); rec_words()
    e.wds('b1')
    for k in range(8): e(f"v_add_u32 v{HA+k}, v{HA+k}, v{RK+k}")
    e(f"s_mov_b64 exec, {sr(sM0,2)}")
    for k in range(4): e(f"ds_write_b8 v{HA+k}, v{REC1+2*k+1} offset:{L_REC+DOFF}")
    e(f"s_mov_b64 exec, {sr(sM1,2)}")
    for k in range(4, 8): e(f"ds_write_b8 v{HA+k}, v{REC1+2*k+1} offset:{L_REC+DOFF}")
    e(f"s_mov_b64 exec, -1\nv_xor_b32 v{T0}, 16, v{vBW}")
    for k in range(8): e(f"v_lshlrev_b32 v{HA+k}, 2, v{HA+k}")
    if not ordr: b_out(wh_loads)
    stamp('scan')
    if not ordr:
        e.wvm('src'); rec_words()
    stamp('src')
    for r in range(2):
        e(f"s_mov_b64 exec, {sr(sM0 if r == 0 else sM1,2)}")
        for k in range(4 * r, 4 * r + 4): e(f"ds_write_b32 v{HA+k}, v{REC1+2*k} offset:{L_REC}")
    e("s_mov_b64 exec, -1")
    e(f"""
    s_cmp_lt_u32 s{s_w}, 6
    s_cbranch_scc1 K_nopf
    s_mov_b32 s{s_t0}, {N}
    v_cmp_gt_u32 vcc, {NPB}, v{PO+5}
    v_cmp_gt_u32 {sr(16,2)}, s{s_t0}, v{PO+4}
    v_lshlrev_b32 v{PO}, 16, v{PO}
    v_lshlrev_b32 v{PO+1}, 16, v{PO+1}
    v_lshlrev_b32 v{PO+2}, 16, v{PO+2}
    v_mov_b32 v{PO+3}, 0
    v_lshlrev_b32 v{PO+5}, 4, v{PO+5}
    ds_write_b128 v{PO+5}, {vr(PO,4)} offset:{L_POSD}
    s_and_b64 {sr(16,2)}, {sr(16,2)}, vcc
    K_nopf:
    """)
    nobx = opt.get('nobx', 0)
    if late: tok_load()
    elif ordr == 1:
        w1_loads(); wh_loads()
        if 'own' in e.vm: e.wvm('own')
    elif ordr == 2:
        w1_loads(); wh_loads()
    else: e.wvm('wh' if nobx else 'w1')
    e("s_waitcnt lgkmcnt(0)\ns_barrier")
    e.ds = []
    stamp('Bc')
    for r in range(2): e.d(f'c{r}', f"ds_read_b128 {vr(PRE0+4*r,4)}, v{tq} offset:{L_REC+8192*r}")
    if ordr == 1: b_reads()
    if not ordr: rd('w1', SCR, 0)
    for r in range(2):
        e.wds(f'c{r}')
        e.v('st', f"buffer_store_dwordx4 {vr(PRE0+4*r,4)}, v{tq if r < 1 else vPI}, {sr(sWS,4)}, s{8+r} offen{SN}")
    def posf_store():
        e(f"s_cmp_ge_u32 s{s_w}, 6\ns_cselect_b64 exec, {sr(16,2)}, 0")
        e.v('bst', f"buffer_store_dwordx4 {vr(PO,4)}, v{PO+4}, {sr(sPF,4)}, 0 idxen{SC}")
        e("s_mov_b64 exec, -1")
    def row_prep():
        e(f"""
        s_cmp_lg_u32 s{s_w}, 4
        s_cbranch_scc1 K_row_done
        s_mov_b32 s{s_t0}, 0
        K_tk:
        v_readfirstlane_b32 s{s_t1}, v{TK+1}
        s_add_u32 s{s_t0}, s{s_t0}, 1
        s_cmp_gt_u32 s{s_t0}, 0x40000
        s_cbranch_scc1 K_tkok
        s_bitcmp1_b32 s{s_t1}, 0
        s_cbranch_scc1 K_tkok
        buffer_load_dwordx2 {vr(TK,2)}, v{ZQ}, {sr(sDBG,4)}, 0 offen{SC}
        s_waitcnt vmcnt(0)
        s_branch K_tk
        K_tkok:
        v_and_b32 v{TK+1}, 0xff000000, v{TK+1}
        v_mov_b32 v{TK+2}, {L_TOK}
        ds_write_b64 v{TK+2}, {vr(TK,2)}
        """)
        for k in range(4):
            e(f"v_lshl_or_b32 v{RWV+2*k}, v{SCN+k}, 12, v{SCN+8+k}\nv_mov_b32 v{RWV+2*k+1}, v{TK}\nv_or_b32 v{RWV+2*k}, v{RWV+2*k}, v{TK+1}")

        e("K_row_done:")
    def row_store():
        e(f"s_cmp_eq_u32 s{s_w}, 4\ns_cselect_b64 exec, -1, 0")
        e.v('row', f"buffer_store_dwordx4 {vr(RWV,4)}, v{vRO}, {sr(sWS,4)}, s15 offen{SC}")
        e.v('row', f"buffer_store_dwordx4 {vr(RWV+4,4)}, v{vRO}, {sr(sWS,4)}, s15 offen offset:16{SC}")
        e("s_mov_b64 exec, -1")
    if not late:
        posf_store()
        e.wds('w2')
        mm(ACC0, SCR)
        e.wvm('wh')
        e("s_nop 6")
        row_prep()
        e("s_nop 2")
        b_out(lambda: None)
        stamp('Bx')
        e.wvm('st')
        e("s_barrier")
        stamp('Bd'); rt(27)
        row_store()
        nrow = 2
    else:
        own_loads(); posf_store(); w1_loads(); wh_loads()
        sv = list(e.vm); e.wvm('tok'); e.vm = sv
        row_prep()
        stamp('Bx')
        e.wvm('st')
        e("s_waitcnt lgkmcnt(0)\ns_barrier")
        stamp('Bd'); rt(27)
        row_store()
        e.wvm('wh')
        e("s_barrier")
        b_reads()
        e.wds('w2')
        mm(ACC0, SCR)
        rd('w1', SCR, 0)
        e("s_nop 4")
        b_out(lambda: None)
        nrow = 0
    e.d('tk', f"ds_read_b64 {vr(TK,2)}, v{ZQ} offset:{L_TOK}")
    if not late: rd('w1', SCR, 0)
    e.wds0()
    mm(ACC0, SCR)
    e(f"v_readfirstlane_b32 s60, v{TK}\nv_readfirstlane_b32 s61, v{TK+1}")
    srd(e, sH, 24, 25, N, add=WS_B - 3072, stride=128)
    e(f"""
    s_lshl_b32 s{s_t0}, s{s_rb}, 5
    v_add_u32 v{PS}, s{s_t0}, v{rho}
    v_mul_u32_u24 v{PS}, {ATS}, v{PS}
    s_lshl_b32 s{s_t0}, s{s_cb}, 6
    s_add_u32 s{s_t0}, s{s_t0}, {L_ATAB}
    v_lshl_add_u32 v{PS}, v{hb}, 5, v{PS}
    v_add_u32 v{PS}, s{s_t0}, v{PS}
    """)
    rd('wh', TMP, 16384)
    for s_ in range(4):
        for t in range(2): e.d('wm', f"ds_read_b64_tr_b16 {vr(WHM+4*s_+2*t,2)}, v{T0+3} offset:{24576+2048*s_+512*t}")
    scale_pack(ACC0)
    e.wds('wh')
    mm(DH, TMP)
    e(f"ds_write_b128 v{PS}, {vr(AW,4)}\nds_write_b128 v{PS}, {vr(AW+4,4)} offset:16")
    e(mfma(ACC0, ZQ, ZQ)); e(mfma(ACC1, ZQ, ZQ))
    e(f"""
    s_cmp_eq_u32 s{s_w}, 5
    s_cbranch_scc1 K_side5
    s_cmp_lg_u32 s{s_w}, 4
    s_cbranch_scc1 K_side_done
    v_mul_u32_u24 v{PO}, 18, v1
    v_mov_b32 v{PO+1}, 0x3f80
    s_mov_b64 exec, 0xff
    ds_write_b16 v{PO}, v{PO+1} offset:{L_OHT}
    s_mov_b64 exec, -1
    """)
    e("s_branch K_side_done\nK_side5:")
    if not fold:
        e(f"ds_write_b16 v{PO+7}, v{PO} offset:{L_WDA}\nds_write_b16 v{PO+7}, v{PO+1} offset:{L_WDA+ATS}")
    else:
        e(f"""
        v_lshlrev_b32 v{PO}, 16, v{PO}
        v_lshlrev_b32 v{PO+1}, 16, v{PO+1}
        v_mul_f32 v{PO}, s7, v{PO}
        v_mul_f32 v{PO+1}, s7, v{PO+1}
        v_cvt_pk_bf16_f32 v{PO+2}, v{PO}, v{PO+1}
        v_lshlrev_b32 v{PO+3}, 16, v{PO+2}
        v_sub_f32 v{PO}, v{PO}, v{PO+3}
        v_and_b32 v{PO+3}, s6, v{PO+2}
        v_sub_f32 v{PO+1}, v{PO+1}, v{PO+3}
        v_cvt_pk_bf16_f32 v{PO+3}, v{PO}, v{PO+1}
        ds_write_b16 v{PO+7}, v{PO+2} offset:{L_WDA}
        ds_write_b16_d16_hi v{PO+7}, v{PO+2} offset:{L_WDA+ATS}
        ds_write_b16 v{PO+7}, v{PO+3} offset:{L_WDA+2*ATS}
        ds_write_b16_d16_hi v{PO+7}, v{PO+3} offset:{L_WDA+3*ATS}
        """)
    e(f"""
    K_side_done:
    v_lshlrev_b32 v{ID}, 3, v{hb}
    v_sub_u32 v{ID}, v{rho}, v{ID}
    v_subrev_u32 v{ID+4}, 16, v{ID}
    v_min_u32 v{ID}, 8, v{ID}
    v_min_u32 v{ID+4}, 8, v{ID+4}
    v_lshlrev_b32 v{ID}, 4, v{ID}
    v_lshlrev_b32 v{ID+4}, 4, v{ID+4}
    s_mov_b32 s{s_done}, 0
    s_mov_b32 s{s_take}, 32
    v_add_u32 v{T0+3}, {L_ACC}, v{tq}
    v_cmp_gt_u32 vcc, 91, v0
    s_lshl_b32 s14, s{s_c}, 7
    s_add_u32 s14, s14, {WS_FLG}
    """)
    OFFV = 162; cREC = 174; vT2D = 175; tA = 176; tB = 177
    RECV = PRE0; HADR = TMP; RANK = MR
    def offs_pre():
        e(f"""
        v_lshrrev_b32 v{tA}, 2, v1
        v_lshlrev_b32 v{tA}, 11, v{tA}
        s_lshl_b32 s{s_t0}, s{s_w}, 16
        s_lshl_b32 s{s_t1}, s{s_b}, 3
        s_add_u32 s{s_t0}, s{s_t0}, s{s_t1}
        s_add_u32 s16, s{s_t0}, {WS_OFF}
        s_add_u32 s17, s16, 32768
        """)
    def offs_loads():
        for i in range(2):
            e.v('off', f"buffer_load_dwordx2 {vr(OFFV+2*i,2)}, v{tA}, {sr(sWS,4)}, s{16+i} offen{SC}")
    cRD = 173; RA = PRE0; RD = PRE1; aAr = PRE1 + 6; aDr = PRE1 + 8; vU = PRE1 + 10; vD = PRE1 + 12; s_ovf = s_need
    smask = lambda k: sMASK + 2 * k
    def rec_pre():
        e(f"""
        s_mov_b32 s{s_t0}, {RECB}
        v_lshrrev_b32 v{cREC}, 2, v1
        v_and_b32 v{vT2D}, 3, v1
        v_mul_u32_u24 v{cREC}, s{s_t0}, v{cREC}
        v_mad_u32_u24 v{vT2D}, v{vT2D}, 6, s{s_done}
        s_mul_i32 s{s_o}, s{s_w}, {32*RECB}
        s_add_u32 s{s_o+1}, s{s_o}, {16*RECB}
        v_add_u32 v{cRD}, v{cREC}, v{vT2D}
        v_add_u32 v{cRD}, {DOFF}, v{cRD}
        v_lshl_add_u32 v{cREC}, v{vT2D}, 2, v{cREC}
        s_add_u32 s{s_o+2}, s{s_done}, 24
        """)
    def rec_loads(waits, tag):
        if waits: e("s_waitcnt vmcnt(0)")
        for i in range(2):
            e(f"""
            v_bfe_u32 v{vU+i}, v{OFFV+2*i}, 12, 12
            v_and_b32 v{tA}, 0xfff, v{OFFV+2*i}
            v_sub_u32 v{vD+i}, v{vU+i}, v{vT2D}
            v_add_u32 v{aDr+i}, v{tA}, v{cRD}
            v_cmp_lt_i32 {sr(smask(6*i),2)}, 0, v{vD+i}
            v_lshl_add_u32 v{aAr+i}, v{tA}, 2, v{cREC}
            v_cmp_lt_i32 {sr(smask(6*i+4),2)}, 4, v{vD+i}
            s_mov_b64 exec, {sr(smask(6*i),2)}
            buffer_load_dwordx2 {vr(RD+2*i,2)}, v{aDr+i}, {sr(sWS,4)}, s{s_o+i} offen{RN}
            s_mov_b64 exec, -1
            """)
        e(f"v_max_u32 v{vMX}, v{vU}, v{vU+1}")
        for i in range(2):
            e(f"""
            s_mov_b64 exec, {sr(smask(6*i),2)}
            buffer_load_dwordx4 {vr(RA+6*i,4)}, v{aAr+i}, {sr(sWS,4)}, s{s_o+i} offen{RN}
            s_mov_b64 exec, {sr(smask(6*i+4),2)}
            buffer_load_dwordx2 {vr(RA+6*i+4,2)}, v{aAr+i}, {sr(sWS,4)}, s{s_o+i} offen offset:16{RN}
            """)
        e(f"s_mov_b64 exec, -1\nv_cmp_lt_u32 vcc, s{s_o+2}, v{vMX}\ns_mov_b32 s{s_ovf}, 0")
        for i in range(2):
            for u in (1, 2, 3, 5): e(f"v_cmp_lt_i32 {sr(smask(6*i+u),2)}, {u}, v{vD+i}")
        e(f"s_cbranch_vccnz K_ovl{tag}\nK_ovlb{tag}:")
        t = f"K_ovl{tag}:\ns_mov_b32 s{s_ovf}, 1\nv_and_b32 v{tA}, 3, v1\nv_lshlrev_b32 v{tB}, 2, v{tA}\nv_subrev_u32 v{tB}, 24, v{tB}\n"
        for i in range(2):
            t += f"""v_add_u32 v{HADR+i}, v{vD+i}, v{tB}
            v_sub_u32 v{aDr+i}, v{aDr+i}, v{tB}
            v_lshlrev_b32 v{tA}, 2, v{tB}
            v_cmp_lt_i32 {sr(smask(12+2*i),2)}, 0, v{HADR+i}
            v_sub_u32 v{aAr+i}, v{aAr+i}, v{tA}
            v_cmp_lt_i32 {sr(smask(13+2*i),2)}, 1, v{HADR+i}
            s_mov_b64 exec, {sr(smask(12+2*i),2)}
            buffer_load_ushort v{RD+4+i}, v{aDr+i}, {sr(sWS,4)}, s{s_o+i} offen{RN}
            buffer_load_dwordx2 {vr(RA+12+2*i,2)}, v{aAr+i}, {sr(sWS,4)}, s{s_o+i} offen{RN}
            s_mov_b64 exec, -1
            """
        ovf_blocks.append(t + f"s_branch K_ovlb{tag}")
        e.vm = []
    ovf_blocks = []
    def sdwa(d, sh, k):
        r, b = (RD + 2 * (k // 6) + ((k % 6) >> 2), (k % 6) & 3) if k < 12 else (RD + 4 + ((k - 12) >> 1), k & 1)
        return f"v_lshlrev_b32_sdwa v{d}, {sh}, v{r} dst_sel:DWORD dst_unused:UNUSED_PAD src0_sel:DWORD src1_sel:BYTE_{b}"
    def ovf_call(name, body):
        e(f"s_cmp_lg_u32 s{s_ovf}, 0\ns_cbranch_scc1 K_ov{name}\nK_ov{name}b:")
        ovf_blocks.append(f"K_ov{name}:\n" + body + f"\ns_mov_b64 exec, -1\ns_branch K_ov{name}b")
    def loop_consts():
        e(f"""
        s_lshl_b32 s{s_stg}, s{s_w}, 12
        s_add_u32 s{s_stg}, s{s_stg}, {L_STG}
        v_lshlrev_b32 v{cRA}, 3, v1
        v_lshlrev_b32 v{cTA}, 3, v{o8}
        v_lshl_add_u32 v{HADR+8}, v{rho}, 7, s{s_stg}
        v_xor_b32 v{HADR+9}, v{hb}, v{f3}
        """)
        for s_ in range(4):
            if s_: e(f"v_xor_b32 v{cHS+s_}, {2*s_}, v{HADR+9}\nv_lshl_add_u32 v{cHS+s_}, v{cHS+s_}, 4, v{HADR+8}")
            else: e(f"v_lshl_add_u32 v{cHS}, v{HADR+9}, 4, v{HADR+8}")
        e(f"""
        s_lshl_b32 s{s_t0}, s{s_w}, 11
        s_add_u32 s{s_t0}, s{s_t0}, {L_MM}
        v_lshl_add_u32 v{cMW}, v{rho}, 6, s{s_t0}
        v_lshl_or_b32 v{cMW}, v{f3}, 3, v{cMW}
        v_mov_b32 v{vMA}, v{cMW}
        v_lshl_or_b32 v{HADR+8}, v{hb}, 2, v{r4}
        v_lshrrev_b32 v{HADR+9}, 1, v{HADR+8}
        v_xor_b32 v{HADR+9}, v{HADR+9}, v{slot}
        v_lshl_add_u32 v{HADR+8}, v{HADR+8}, 6, s{s_t0}
        v_lshl_add_u32 v{cM}, v{HADR+9}, 3, v{HADR+8}
        v_xor_b32 v{HADR+9}, 4, v{HADR+9}
        v_lshl_add_u32 v{cM+1}, v{HADR+9}, 3, v{HADR+8}
        v_add_u32 v{cM+1}, 0x200, v{cM+1}
        v_mul_u32_u24 v{cAW}, {ATS}, v{r4}
        v_lshl_add_u32 v{cAW}, v{slot}, 3, v{cAW}
        s_mov_b32 s{s_t0}, {L_WDA-L_ATAB}
        v_mad_i32_i24 v{cAW}, v{hb}, s{s_t0}, v{cAW}
        v_add_u32 v{cAW}, {L_ATAB}, v{cAW}
        v_mov_b32 v{vAWA}, v{cAW}
        v_mul_u32_u24 v{cF}, {ACS}, v{hb}
        v_lshl_add_u32 v{cF}, v{rho}, 3, v{cF}
        v_add_u32 v{cF}, {L_ACC}, v{cF}
        v_lshl_or_b32 v{cP}, v{r4}, 1, v{hb}
        v_lshlrev_b32 v{cP}, 5, v{cP}
        v_add_u32 v{cP}, {L_PACC}, v{cP}
        v_lshlrev_b32 v{wx0}, 16, v{wx0}
        v_lshlrev_b32 v{wx1}, 16, v{wx1}
        v_add_u32 v{IDX+1}, 0xc00, v{IDX+1}
        v_add_u32 v{IDX+3}, 0x800, v{IDX+3}
        v_add_u32 v{IDX+5}, 0x400, v{IDX+5}
        s_mov_b32 s{sLO}, -1
        v_mov_b32 v{SCR+19}, 0x1000000
        s_mov_b32 s{sLO+1}, 0
        s_mov_b32 s{sQ}, 0x11111111
        s_mov_b32 s{sQ+1}, 0x11111111
        s_mov_b32 s{sC}, {NLOG2E}
        s_mov_b32 s{sC+1}, {NLOG2E}
        """)
        if fold: e(f"v_mul_f32 v{wx0}, {NLN2}, v{wx0}\nv_mul_f32 v{wx1}, {NLN2}, v{wx1}")
        for r in list(range(OH1A, OH1A + 8)) + list(range(OH2, OH2 + 8)): e(f"v_mov_b32 v{r}, 0")

    cpos = opt.get('cpos', 2)
    offs_pre()
    if cpos == 0: loop_consts(); rec_pre()
    stamp('side')
    if opt.get('early') == 3: offs_loads(); nrow += 2
    e(f"s_waitcnt vmcnt({nrow}) lgkmcnt(0)\ns_barrier")
    e.ds = []; e.vm = []
    stamp('Bd2')
    e(f"""
    s_cmp_eq_u32 s{s_w}, 3
    s_cselect_b64 exec, 1, 0
    buffer_store_dwordx2 {vr(TK,2)}, v{ZQ}, {sr(sWS,4)}, s14 offen{SC}
    s_mov_b64 exec, -1
    ds_read_b128 {vr(ID,4)}, v{ID} offset:{L_OHT}
    ds_read_b128 {vr(ID+4,4)}, v{ID+4} offset:{L_OHT}
    """)
    RS = SCR; aA = SCR + 16; aPO = SCR + 17; aPA = SCR + 18; oP = SCR + 19; aW = SCR + 20; aR = SCR + 22
    def epi_consts():
        t0_, t1_, t2_, rho, hb, f3, c4 = range(TMP, TMP + 7)
        e(f"""
        v_and_b32 v{rho}, 31, v1
        v_lshrrev_b32 v{hb}, 5, v1
        v_bfe_u32 v{f3}, v1, 1, 3
        v_and_b32 v{c4}, 3, v1
        s_lshl_b32 s{s_t0}, s{s_rb}, 5
        v_add_u32 v{t0_}, s{s_t0}, v{rho}
        v_mul_u32_u24 v{aA}, {ACS}, v{t0_}
        v_lshl_add_u32 v{aA}, v{hb}, 6, v{aA}
        v_add_u32 v{aA}, {L_ACC}, v{aA}
        v_lshlrev_b32 v{aPO}, 2, v0
        v_lshlrev_b32 v{aPA}, 3, v0
        v_add_u32 v{aPA}, {L_PACC}, v{aPA}
        v_lshrrev_b32 v{oP}, 2, v0
        v_cmp_gt_u32 vcc, {NPB}, v{oP}
        v_cmp_gt_u32 {sr(s_o,2)}, 3, v{c4}
        v_add_u32 v{oP}, s{s_nb0}, v{oP}
        v_mul_u32_u24 v{oP}, 6, v{oP}
        v_lshl_add_u32 v{oP}, v{c4}, 1, v{oP}
        s_and_b64 vcc, {sr(s_o,2)}, vcc
        v_mov_b32 v{t2_}, 0x1000000
        v_and_b32 v{t0_}, 3, v{f3}
        v_cndmask_b32 v{oP}, v{t2_}, v{oP}, vcc
        v_lshlrev_b32 v{t1_}, 1, v{hb}
        v_xor_b32 v{t1_}, v{t1_}, v{t0_}
        v_lshl_add_u32 v{aW}, v{rho}, 6, s{s_stg}
        v_lshl_add_u32 v{aW}, v{t1_}, 4, v{aW}
        v_xor_b32 v{aW+1}, 16, v{aW}
        v_lshl_add_u32 v{aR}, v1, 4, s{s_stg}
        """)
        for r in range(8):
            e(f"v_lshlrev_b32 v{RS+2*r}, 16, v{HR+r}\nv_and_b32 v{RS+2*r+1}, 0xffff0000, v{HR+r}")
        if dhs:
            for i in range(0, 16, 2): e(f"v_pk_mul_f32 {vr(DH+i,2)}, {vr(DH+i,2)}, {sr(sC,2)}")
            e(f"s_mov_b32 s{sC}, {NLN2}\ns_mov_b32 s{sC+1}, {NLN2}")

    epos = opt.get('epos', 1)
    nz = opt.get('nz', 8)
    Z = [f"ds_write_b128 v{T0+3}, {vr(ZQ,4)} offset:{8192*r}" for r in range(7)]
    Z.append(f"s_mov_b64 exec, vcc\nds_write_b128 v{T0+3}, {vr(ZQ,4)} offset:{8192*7}\ns_mov_b64 exec, -1")
    for z in Z[:nz]: e(z)
    early = opt.get('early', 0)
    if early == 1: offs_loads()
    if cpos == 2: loop_consts()
    if early == 2: offs_loads()
    if epos == 2: epi_consts()
    if cpos == 2: rec_pre()
    if opt.get('isl'): e(f"s_sleep {opt.get('isl')}")
    if not early:
        if opt.get('zw', 1): e("s_waitcnt lgkmcnt(0)")
        offs_loads()
    for z in Z[nz:]: e(z)
    if cpos == 1: loop_consts(); rec_pre()
    e(f"s_mov_b32 s{s_t0}, 0\nK_poll:\ns_waitcnt vmcnt(0)")
    if opt.get('pst'): e(f"s_memrealtime s[0:1]\ns_min_u32 s2, s{s_t0}, 20\ns_add_u32 m0, s2, 32\ns_waitcnt lgkmcnt(0)\nv_writelane_b32 v{vST}, s0, m0\nv_writelane_b32 v{vST}, s{s_t0}, 24")
    for i in range(2):
        e(f"v_xor_b32 v{HADR+2*i}, s61, v{OFFV+2*i}\nv_xor_b32 v{HADR+2*i+1}, s60, v{OFFV+2*i+1}")
    for i in range(2): e(f"v_lshrrev_b32 v{HADR+2*i}, 24, v{HADR+2*i}")
    for i in range(2): e(f"v_or_b32 v{HADR+2*i}, v{HADR+2*i}, v{HADR+2*i+1}")
    for i in range(2): e(f"v_cmp_ne_u32 {sr(4+2*i,2)}, 0, v{HADR+2*i}")
    e(f"""
    s_add_u32 s{s_t0}, s{s_t0}, 1
    s_cmp_gt_u32 s{s_t0}, 0x40000
    s_cbranch_scc1 K_pollx
    s_or_b64 {sr(12,2)}, {sr(4,2)}, {sr(6,2)}
    s_cbranch_scc1 K_repoll
    K_pollx:
    """)
    stamp('Be'); rt(26)
    rec_loads(False, 'a')
    if epos == 0: epi_consts()
    e.ds = []
    hist1 = lambda k: f"s_mov_b64 exec, {sr(smask(k),2)}\nds_add_rtn_u32 v{RANK+k}, v{HADR+k}, v{tA} offset:{L_HIST}"
    base1 = lambda k: f"s_mov_b64 exec, {sr(smask(k),2)}\nds_read_b32 v{HADR+k}, v{HADR+k} offset:{L_BASE}"
    scat1 = lambda k: f"s_mov_b64 exec, {sr(smask(k),2)}\nds_write2_b32 v{HADR+k}, v{RA+k}, v{RANK+k} offset0:0 offset1:1"
    FLV = PS; aFL = T0; fp = opt.get('fp', 0)
    flag_load = f"buffer_load_dwordx2 {vr(FLV,2)}, v{aFL}, {sr(sWS,4)}, s62 offen{SC}"
    e(f"""
    K_hist:
    v_mov_b32 v{tA}, 1
    v_and_b32 v{aFL}, 31, v1
    v_lshlrev_b32 v{aFL}, 7, v{aFL}
    s_lshl_b32 s62, s{s_w}, 12
    s_add_u32 s62, s62, {WS_FLG}
    """)
    for i in range(2):
        e(f"s_waitcnt vmcnt({5 - i + (1 if fp == 1 and i else 0)})")
        if i == 0: stamp('rec')
        if fp == 1 and i == 0: e(flag_load)
        if fp == 2 and i == 1: e(flag_load)
        for k in range(6 * i, 6 * i + 6): e(sdwa(HADR + k, 2, k))
        for k in range(6 * i, 6 * i + 6): e(hist1(k))
        e("s_mov_b64 exec, -1")
    ovf_call('h', "s_waitcnt vmcnt(0)\n" + "\n".join(sdwa(HADR + k, 2, k) for k in range(12, 16)) + "\n" + "\n".join(hist1(k) for k in range(12, 16)))
    if fp == 0: e(flag_load)
    e(f"""
    s_waitcnt lgkmcnt(0)
    s_barrier
    """)
    stamp('B1')
    e(f"""
    ds_read_b64 v[{OFFV+8}:{OFFV+9}], v{cRA} offset:{L_HIST}
    s_add_u32 s{s_t0}, s{s_done}, s{s_take}
    v_cmp_lt_u32 vcc, s{s_t0}, v{vMX}
    s_waitcnt lgkmcnt(0)
    v_add_u32 v{tA}, v{OFFV+8}, v{OFFV+9}
    v_mov_b32 v{tB}, v{tA}
    """)
    wave_scan(e, tB)
    e(f"""
    v_sub_u32 v{OFFV+10}, v{tB}, v{tA}
    v_readlane_b32 s{s_T}, v{tB}, 63
    v_add_u32 v{OFFV+11}, v{OFFV+10}, v{OFFV+8}
    ds_write_b64 v{cRA}, v[{OFFV+10}:{OFFV+11}] offset:{L_BASE}
    s_cmp_gt_u32 s{s_T}, {CAP}
    s_cbranch_scc1 K_retry
    """)
    for k in range(12): e(base1(k))
    e(f"""
    s_mov_b64 exec, -1
    s_cbranch_vccnz K_setflag
    K_flagset:
    s_add_u32 s{s_t1}, s{s_T}, 31
    s_lshr_b32 s{s_t1}, s{s_t1}, 5
    s_lshr_b32 s{s_t0}, s{s_t1}, 3
    s_and_b32 s{s_t1}, s{s_t1}, 7
    s_mul_i32 s{s_p}, s{s_w}, s{s_t0}
    s_min_u32 s{s_t2}, s{s_w}, s{s_t1}
    s_add_u32 s{s_p}, s{s_p}, s{s_t2}
    s_add_u32 s{s_end}, s{s_p}, s{s_t0}
    s_cmp_lt_u32 s{s_w}, s{s_t1}
    s_addc_u32 s{s_end}, s{s_end}, 0
    s_lshl_b32 s{s_p}, s{s_p}, 5
    s_lshl_b32 s{s_end}, s{s_end}, 5
    s_min_u32 s{s_end}, s{s_end}, s{s_T}
    s_lshl_b32 s{s_t0}, s{s_T}, 3
    v_add_u32 v{tA}, s{s_t0}, v{cRA}
    s_mov_b32 s63, 0
    K_flg:
    s_waitcnt vmcnt(0)
    v_cmp_ne_u32 vcc, s60, v{FLV}
    v_cmp_ne_u32 {sr(0,2)}, s61, v{FLV+1}
    s_lshr_b32 s{s_t0}, s{s_c}, 3
    s_lshl_b32 s{s_t1}, s{s_w}, 5
    s_or_b64 vcc, vcc, {sr(0,2)}
    s_cbranch_scc1 K_reflg
    K_flgok:
    s_add_u32 s{s_t0}, s{s_t0}, s{s_t1}
    s_and_b32 s{s_t1}, s{s_t0}, 7
    s_lshl_b32 s{s_t1}, s{s_t1}, 5
    s_lshr_b32 s{s_t0}, s{s_t0}, 3
    s_add_u32 s{s_t0}, s{s_t0}, s{s_t1}
    s_mul_i32 s{s_t0}, s{s_t0}, {NPB}
    """)
    if opt.get('pfp'):
        e(f"s_add_u32 s{s_t1}, s{s_t0}, 7\ns_and_b32 s{s_t1}, s{s_t1}, -8\nv_lshl_add_u32 v{PS}, v1, 3, s{s_t1}\ns_mov_b64 exec, 0x7ff\nbuffer_load_dword v{PS}, v{PS}, {sr(sPF,4)}, 0 idxen{SC}\ns_mov_b64 exec, -1")
    if opt.get('pfb'):
        e(f"v_add_u32 v{PS+1}, s{s_t0}, v1\ns_bfm_b64 exec, {opt.get('pfb')}, 0\nbuffer_load_dword v{PS+1}, v{PS+1}, {sr(sH,4)}, 0 idxen offset:3072{SC}\ns_mov_b64 exec, -1")
    for q in range(3):
        e("s_waitcnt lgkmcnt(8)")
        for k in range(4 * q, 4 * q + 4): e(f"v_add_lshl_u32 v{HADR+k}, v{HADR+k}, v{RANK+k}, 3")
        for k in range(4 * q, 4 * q + 4): e(sdwa(RANK + k, 4, k))
        for k in range(4 * q, 4 * q + 4): e(scat1(k))
        e("s_mov_b64 exec, -1")
    X4 = range(12, 16)
    ovf_call('s', "\n".join(base1(k) for k in X4) + "\ns_mov_b64 exec, -1\ns_waitcnt lgkmcnt(0)\n"
             + "\n".join(f"v_add_lshl_u32 v{HADR+k}, v{HADR+k}, v{RANK+k}, 3" for k in X4) + "\n"
             + "\n".join(sdwa(RANK + k, 4, k) for k in X4) + "\n" + "\n".join(scat1(k) for k in X4))
    e(f"""
    s_cmp_lg_u32 s{s_w}, 7
    s_cbranch_scc1 K_nopad
    ds_write_b64 v{tA}, v[{ZQ}:{ZQ+1}] offset:{L_REC}
    K_nopad:
    s_lshl_b32 s{s_p8}, s{s_p}, 3
    s_mov_b32 s{s_lim}, 0
    s_mov_b32 s{s_nbCur}, 0
    v_add_u32 v{vRA}, s{s_p8}, v{cRA}
    v_add_u32 v{vTA}, s{s_p8}, v{cTA}
    """)
    for r in range(8): e(f"v_mov_b32 v{MR+r}, 0")
    e("s_waitcnt lgkmcnt(0)\ns_barrier")
    e.ds = []; e.vm = []
    spin(3)
    stamp('B2')
    e(f"s_cmp_ge_u32 s{s_p}, s{s_end}\ns_cbranch_scc1 {'K_skip' if epos == 1 else 'K_wavedone'}")

    tail = []
    D = lambda tag, t: (lambda: e.d(tag, t))
    V = lambda tag, t: (lambda: e.v(tag, t))
    def rec_read():
        return [D('rw', f"ds_read_b64 v[{RW}:{RW+1}], v{vRA} offset:{L_REC}"), D('rw', f"ds_read_u16 v{vPI}, v{vRA} offset:{L_REC}")]
    def window_pre():
        return [f"s_sub_u32 s{s_rem}, s{s_end}, s{s_p}", f"s_min_u32 s{s_need}, s{s_rem}, 64", f"s_bfm_b64 {sr(sMV,2)}, s{s_rem}, 0",
                f"s_cmp_ge_u32 s{s_rem}, 64", f"s_cselect_b64 {sr(sMV,2)}, -1, {sr(sMV,2)}", f"s_mov_b32 s{s_flN}, 0"]
    def window():
        l = e.lab("K_win")
        tail.append(f"""
        {l}a:
        v_readfirstlane_b32 s{s_nbN}, v{RW+1}
        s_mov_b32 s{s_flN}, 1
        s_add_u32 s{s_lim}, s{s_nbN}, 128
        v_cmp_gt_u32 vcc, s{s_lim}, v{RW+1}
        s_nop 0
        s_and_b64 {sr(sMK,2)}, vcc, {sr(sMV,2)}
        s_bcnt1_i32_b64 s{s_cntN}, {sr(sMK,2)}
        s_branch {l}b
        """)
        return [lambda: (e.wds('rw'), e(f"v_cmp_gt_u32 vcc, s{s_lim}, v{RW+1}")),
                V('ps', f"buffer_load_dwordx3 {vr(PS,3)}, v{vPI}, {sr(sPF,4)}, 0 idxen{FL[opt.get('pg', 2)]}"),
                D('pd', f"ds_read_b128 {vr(PD,4)}, v{RW+1} offset:{L_POSD}"),
                f"s_and_b64 {sr(sMK,2)}, vcc, {sr(sMV,2)}",
                f"s_bcnt1_i32_b64 s{s_cntN}, {sr(sMK,2)}",
                f"s_cmp_lg_u32 s{s_cntN}, s{s_need}",
                f"s_cbranch_scc1 {l}a\n{l}b:",
                f"s_add_u32 s{s_pn}, s{s_p}, s{s_cntN}" + (f"\ns_and_b32 s0, s{s_dbg}, 7\ns_cselect_b32 s{s_pn}, s{s_p}, s{s_pn}" if opt.get('x_rep') else "")]
    def idx_read(off): return [D('idx', f"ds_read_u16 v{IDX+2*j}, v{vTA} offset:{L_REC+off+64*j}") for j in range(4)]
    def hs_read(): return [D('hs', f"ds_read_b128 {vr(HS+4*s_,4)}, v{cHS+s_}") for s_ in range(4)]
    def oh2_read(): return [D('oh2', f"ds_read_b64_tr_b16 {vr(OH2+4*s_+2*t,2)}, v{cM+t} offset:{1024*s_}") for s_ in range(2) for t in range(2)]
    def aw_read():
        return [f"s_mul_i32 s{s_t0}, s{s_nbN}, {ATS//16}",
                f"s_mov_b64 exec, {sr(sLO,2)}\nv_add_u32 v{vAWA}, s{s_t0}, v{cAW}\ns_mov_b64 exec, -1"] + \
               [D('aw', f"ds_read_b64_tr_b16 {vr(AW+4*blk+2*t,2)}, v{vAWA} offset:{4*ATS*t+64*blk}") for blk in range(2) for t in range(2)]
    def aw_cond():
        t = f"K_aw:\ns_mul_i32 s{s_t0}, s{s_nbN}, {ATS//16}\ns_mov_b64 exec, {sr(sLO,2)}\nv_add_u32 v{vAWA}, s{s_t0}, v{cAW}\ns_mov_b64 exec, -1\n"
        t += "\n".join(f"ds_read_b64_tr_b16 {vr(AW+4*blk+2*t_,2)}, v{vAWA} offset:{4*ATS*t_+64*blk}" for blk in range(2) for t_ in range(2))
        tail.append(t + "\ns_branch K_awb")
        return [f"s_cmp_lg_u32 s{s_flN}, 0", "s_cbranch_scc1 K_aw\nK_awb:"]
    def m_b():
        return [D('mc', f"ds_write_b64 v{vMA}, v[{ZQ}:{ZQ+1}]"),
                f"s_mov_b32 exec_lo, 0\ns_mov_b32 exec_hi, s{s_mkB}\nds_write_b64 v{vMA}, v[{WP}:{WP+1}]\ns_mov_b64 exec, -1"]
    def misc():
        t0, t1, t2, t3 = T0, T0 + 1, T0 + 2, T0 + 3
        t4 = PD + 3
        L = [D('mc', f"ds_write_b64 v{vMA}, v[{ZQ}:{ZQ+1}]"),
             f"""v_subrev_u32 v{t0}, s{s_nbN}, v{RW+1}
             v_sub_f32 v{t1}, v{PD}, v{PS}
             v_sub_f32 v{t2}, v{PD+1}, v{PS+1}
             v_sub_f32 v{t3}, v{PD+2}, v{PS+2}
             v_min_u32 v{OH1A}, 0x80, v{t0}
             v_mul_f32 v{t4}, v{t1}, v{t1}
             v_lshrrev_b32 v{t0}, 1, v{OH1A}
             v_fmac_f32 v{t4}, v{t2}, v{t2}
             v_cvt_pk_bf16_f32 v{WP}, 1.0, v{t1}
             v_fmac_f32 v{t4}, v{t3}, v{t3}
             v_cvt_pk_bf16_f32 v{WP+1}, v{t2}, v{t3}
             v_cvt_pk_bf16_f32 v{OH1B}, v{t4}, v{RW}
             v_xor_b32 v{vMA}, v{t0}, v{cMW}""",
             f"s_mov_b32 s{s_mkB}, s{sMK+1}",
             f"v_permlane32_swap_b32 v{OH1A}, v{OH1B}" + (f"\nv_mov_b32 v{OH1A+1}, v{OH1A}\nv_mov_b32 v{OH1B+1}, v{OH1B}" if fold and opt.get('lo', 1) else ""),
             lambda: (e(f"s_and_b64 exec, {sr(sMK,2)}, {sr(sLO,2)}\nds_write_b64 v{vMA}, v[{WP}:{WP+1}]\ns_mov_b64 exec, {sr(sLO,2)}"), e.d('oh1', f"ds_read_b128 {vr(OH1A,4)}, v{OH1A} offset:{L_OHT}"),
                      e.d('oh1', f"ds_read_b128 {vr(OH1B,4)}, v{OH1B} offset:{L_OHT}"), e("s_mov_b64 exec, -1"))]
        return L
    def dma():
        return [V('dma', f"buffer_load_dwordx4 {vr(IDX+2*j,2)}, {sr(sH,4)}, 0 idxen offen offset:{1024*j}{FL[opt.get('gf', 2)]} lds") for j in range(4)]
    def run(L, gap=False):
        for x in L:
            if callable(x): x()
            else:
                e(x)
                if gap and 'm0' in x: e("s_nop 0")
    def flush(snb):
        e(f"s_mul_i32 s{s_t0}, s{snb}, {ACS//16}\nv_lshl_add_u32 v{T0+1}, s{snb}, 1, v{cP}\nv_add_u32 v{T0}, s{s_t0}, v{cF}")
        R = [4 * j + 1 + c for j in range(4) for c in range(3)]
        for blk, A in enumerate((ACC0, ACC1)):
            if fold and not dhs:
                for j in range(4): e(f"v_mul_f32 v{A+4*j}, {NLN2}, v{A+4*j}")
            if blk == 0:
                for r in R: e(f"v_mul_f32 v{ACC0+r}, v{ACC0+r}, v{wx0}")
            for j in range(4): e(f"v_cvt_f64_f32 {vr(TMP+4*j+2*blk,2)}, v{A+4*j}")
        for j in range(4):
            e(f"ds_add_f64 v{T0}, {vr(TMP+4*j,2)} offset:{2*ACS*j}\nds_add_f64 v{T0}, {vr(TMP+4*j+2,2)} offset:{2*ACS*j+256}")
        for r in R: e(f"v_fmac_f32 v{ACC0+r}, v{ACC1+r}, v{wx1}")
        e(mfma(ACC1, ZQ, ZQ))
        lo = [ACC0 + 4 * j + 1 + c for j in range(2) for c in range(3)]
        for r in lo: e(f"v_add_f32_dpp v{r}, v{r}, v{r} row_ror:8 row_mask:0xf bank_mask:0x3")
        for r in lo: e(f"v_add_f32_dpp v{r}, v{r+8}, v{r+8} row_ror:8 row_mask:0xf bank_mask:0xc")
        lo = [ACC0 + 1 + c for c in range(3)]
        for r in lo: e(f"v_add_f32_dpp v{r}, v{r}, v{r} row_half_mirror row_mask:0xf bank_mask:0x5")
        for r in lo: e(f"v_add_f32_dpp v{r}, v{r+4}, v{r+4} row_half_mirror row_mask:0xf bank_mask:0xa")
        for r in lo: e(f"v_add_f32_dpp v{r}, v{r}, v{r} quad_perm:[1,0,3,2] row_mask:0xf bank_mask:0xf")
        for r in lo: e(f"v_add_f32_dpp v{r}, v{r}, v{r} quad_perm:[2,3,0,1] row_mask:0xf bank_mask:0xf")
        for c in range(3): e(f"v_cvt_f64_f32 {vr(TMP+2*c,2)}, v{ACC0+1+c}")
        e(mfma(ACC0, ZQ, ZQ))
        e(f"s_mov_b64 exec, {sr(sQ,2)}")
        for c in range(3): e(f"ds_add_f64 v{T0+1}, {vr(TMP+2*c,2)} offset:{8*c}")
        e("s_mov_b64 exec, -1")
    def gemm1(q, blk, oh1):
        return [mfma(q, oh1, AW + 4 * blk, None)] + [mfma(q, HS + 8 * blk + 4 * s_, ID + 4 * s_, q) for s_ in range(2)]
    def seg(acc): return [mfma(acc, OH2 + 4 * s_, MR + 4 * s_, acc) for s_ in range(2)]
    def phase(P, G, S, pre, side):
        head = []
        if not fold:
            head = [f"v_pk_mul_f32 {vr(TMP+i,2)}, {vr(P+i,2)}, {sr(sC,2)}" for i in range(0, 16, 2)]
            ex = [f"v_exp_f32 v{TMP+i}, v{TMP+i}" for i in range(16)]
        else:
            ex = [f"v_exp_f32 v{TMP+i}, v{P+i}" for i in range(16)]
        base = []
        for m, x in enumerate([G[0], S[0], S[1]]): base += [x] + ex[4 * m:4 * m + 4]
        base += ex[12:]
        if not pair:
            base += [f"v_pk_add_f32 {vr(TMP+i,2)}, {vr(TMP+i,2)}, 1.0 op_sel_hi:[1,0]" for i in range(0, 16, 2)]
            rc = [f"v_rcp_f32 v{TMP+i}, v{TMP+i}" for i in range(16)]
            for m, x in enumerate(G[1:3]): base += [x] + rc[4 * m:4 * m + 4]
            base += rc[8:]
            base += [f"v_pk_mul_f32 {vr(TMP+i,2)}, {vr(P+i,2)}, {vr(TMP+i,2)}" for i in range(0, 16, 2)]
            base += [f"v_cvt_pk_bf16_f32 v{MR+i//2}, v{TMP+i}, v{TMP+i+1}" for i in range(0, 16, 2)]
        else:
            R2 = HR
            base += [f"v_pk_fma_f32 {vr(TMP+i,2)}, {vr(TMP+i,2)}, {sr(s_o,2)}, {sr(s_o,2)} clamp" for i in range(0, 16, 2)]
            base += [f"v_pk_mul_f32 {vr(R2+i//2,2)}, {vr(TMP+i,2)}, {vr(TMP+i+2,2)}" for i in range(0, 16, 4)]
            rc = [f"v_rcp_f32 v{R2+i}, v{R2+i}" for i in range(8)]
            base += [G[1]] + rc[:3] + [G[2]] + rc[3:]
            base += [f"v_pk_mul_f32 {vr(TMP+i,2)}, {vr(TMP+i,2)}, {vr(R2+2*(i//4),2)}" for i in range(0, 16, 2)]
            base += [f"v_pk_mul_f32 {vr(TMP+i,2)}, {vr(TMP+i,2)}, {vr(P+(i^2),2)}" for i in range(0, 16, 2)]
            base += [f"v_cvt_pk_bf16_f32 v{MR+i//2}, v{TMP+(i^2)}, v{TMP+(i^2)+1}" for i in range(0, 16, 2)]
        assert len(base) == (65 if pair else 61)
        if opt.get('plain', 0) & 1:
            base = [x if 'v_pk_add' not in x else None for x in base]
            k = 0
            for i, x in enumerate(base):
                if x is None: base[i] = f"v_add_f32 v{TMP+k}, 1.0, v{TMP+k}\nv_add_f32 v{TMP+k+1}, 1.0, v{TMP+k+1} ; v_pk_"; k += 2
        if opt.get('plain', 0) & 2:
            k = 0
            for i, x in enumerate(base):
                if 'v_pk_mul' in x: base[i] = f"v_mul_f32 v{TMP+k}, v{P+k}, v{TMP+k}\nv_mul_f32 v{TMP+k+1}, v{P+k+1}, v{TMP+k+1} ; v_pk_"; k += 2
        for x in head: e(x)
        q = [(st, it) for st, L in side for it in L]
        slot_ok = lambda x: 'v_pk_' in x or 'v_cvt_pk' in x
        for i, x in enumerate(base):
            if i in pre: run(pre[i])
            e(x)
            if slot_ok(x) and q and q[0][0] <= i:
                run([q.pop(0)[1]])
        assert not q, q

    if opt.get('x_rep'): e(f"s_mov_b32 s{s_dbg}, 0")
    if opt.get('pp3'): e("s_setprio 3")
    e(f"s_mov_b32 m0, s{s_stg}")
    run(rec_read()); run(idx_read(0)); run(window_pre())
    e.wds('idx')
    e.ds = ['rw']
    W = window()
    run(W[:3])
    run(dma(), True)
    run(W[3:])
    e(f"s_mov_b32 s{s_flN}, 0")
    run(aw_read())
    run(idx_read(256))
    if epos == 1:
        e(f"s_cmp_lg_u32 s{s_done}, 0\ns_cbranch_scc1 K_noepi")
        epi_consts()
        e("K_noepi:")
    wp = window_pre()
    adv = [f"s_lshl_b32 s{s_p8}, s{s_pn}, 3", f"s_mov_b32 s{s_p}, s{s_pn}", f"s_mov_b32 s{s_flush}, s{s_flN}",
           f"s_mov_b32 s{s_nbOld}, s{s_nbCur}", f"s_mov_b32 s{s_nbCur}, s{s_nbN}", f"s_mov_b32 s{s_cntCur}, s{s_cntN}"] + wp
    run(adv)
    if pair: e(f"s_mov_b32 s{s_o}, {KSC}\ns_mov_b32 s{s_o+1}, {KSC}")
    e.wvm('ps'); e.wds('pd')
    M = misc()
    run(M[:2])
    e.wvm0()
    run(hs_read())
    run(M[2:])
    e.wds('hs')
    G = [mfma(PRE0, HS, ID, None), mfma(PRE0, HS + 4, ID + 4, PRE0), mfma(PRE0, OH1A, AW, PRE0)]
    run(dma())
    e(G[0]); e(G[1]); e.wds0(); e(G[2])
    e("s_nop 5")
    if opt.get('prio', 3): e(f"s_setprio {2 if opt.get('pp3') else 3}")
    stamp('wprol')
    if opt.get('stamp'): e(f"s_mov_b32 s{s_dbg}, 0")
    e(".p2align 4\nK_loop:")
    loop_start = len(e.L)
    e.ds = []; e.vm = ['dma'] * 4
    if opt.get('stamp'): e(f"s_add_u32 s{s_dbg}, s{s_dbg}, 1")
    if opt.get('itst'): e(f"s_memtime s[0:1]\ns_add_u32 m0, s{s_dbg}, 31\ns_waitcnt lgkmcnt(0)\nv_writelane_b32 v{vST}, s0, m0")
    pm = opt.get('prio', 1)
    def prio_check(tag, reg, th):
        tail.append(f"""
        K_prio{tag}:
        s_setprio {1 if opt.get('pp3') == 2 else 2}
        s_cmp_le_u32 s{reg}, {th[1]}
        s_cbranch_scc0 K_priob{tag}
        s_setprio 1
        s_cmp_le_u32 s{reg}, {th[2]}
        s_cbranch_scc0 K_priob{tag}
        s_setprio 0
        s_branch K_priob{tag}
        """)
        return [f"s_cmp_le_u32 s{reg}, {th[0]}", f"s_cbranch_scc1 K_prio{tag}\nK_priob{tag}:"]
    W = window()
    hw = opt.get('hw', 19); c2 = opt.get('c2', 13); c3 = opt.get('c3', 19); c4_ = opt.get('c4', 15)
    pr = prio_check('a', s_rem, tuple(int(x) for x in str(opt.get('th', '192_64_0')).split('_'))) if pm else []
    dz = 4 if pair else 0
    phase(PRE0, gemm1(PRE1, 1, OH1A), seg(ACC1),
          {0: [f"v_add_u32 v{vRA}, s{s_p8}, v{cRA}\nv_add_u32 v{vTA}, s{s_p8}, v{cTA}"] + rec_read(), c2: oh2_read() + m_b(), c3: W[:3]},
          [(c3, W[3:]), (45 + dz, pr), (59 + dz, [f"s_cmp_lg_u32 s{s_flush}, 0"])])
    e("s_cbranch_scc1 K_flush\nK_flushb:")
    phase(PRE1, gemm1(PRE0, 0, OH1B), seg(ACC0),
          {0: [lambda: e.wvm('dma')] + hs_read() + idx_read(0), 5: [lambda: e.wds('oh2')], hw: [lambda: e.wds('idx')] + dma()},
          [(53 + dz, [f"s_cmp_gt_u32 s{s_cntCur}, 32", f"s_cselect_b32 s{s_t0}, 1, s{s_cntN}", f"s_cmp_eq_u32 s{s_t0}, 0"])])
    e("s_cbranch_scc1 K_drain")
    M = misc()
    phase(PRE0, gemm1(PRE1, 1, OH1B), seg(ACC1),
          {c2: oh2_read() + M[:1], c4_: [lambda: e.wvm('ps')] + M[1:]},
          [(19, aw_cond())] + ([(45 + dz, prio_check('b', s_rem, tuple(int(x) for x in str(opt['th2']).split('_'))))] if opt.get('th2') else []))
    phase(PRE1, gemm1(PRE0, 0, OH1A), seg(ACC0),
          {0: [lambda: e.wvm('dma')] + hs_read() + idx_read(256) + [lambda: e.wds('oh1')], hw: [lambda: e.wds('idx')] + dma()},
          [(45 + dz, adv + [f"s_cmp_lg_u32 s{s_cntN}, 0"])])
    e("s_cbranch_scc1 K_loop")
    assert e.vm == ['dma'] * 4, e.vm
    def xf(l):
        if opt.get('x_novm') and ('buffer_load' in l or 'vmcnt' in l): return False
        if opt.get('x_nods') and ('_tr_' in l or 'ds_read_b128' in l or 'ds_write' in l): return False
        rm = {'hs': [f"ds_read_b128 v[{HS+4*i}:" for i in range(4)], 'oh2': [f"ds_read_b64_tr_b16 v[{OH2+2*i}:" for i in range(4)],
              'aw': [f"ds_read_b64_tr_b16 v[{AW+2*i}:" for i in range(4)], 'pd': [f"ds_read_b128 v[{PD}:"],
              'oh1': [f"ds_read_b128 v[{OH1A}:", f"ds_read_b128 v[{OH1B}:"], 'mw': ["ds_write_b64"], 'dma': [" lds"], 'ps': ["dwordx3"],
              'mf': ['v_mfma'], 'tr': ['v_exp', 'v_rcp'], 'idx': [f"ds_read_u16 v{IDX+2*j}," for j in range(4)], 'm0': [' m0,'],
              'vmw': ['vmcnt'], 'pk': ['v_pk_'], 'cvt': [f"v_cvt_pk_bf16_f32 v{MR+i}," for i in range(8)], 'perm': ['permlane'],
              'seg': [f"v_mfma_f32_32x32x16_bf16 v[{ACC0}:", f"v_mfma_f32_32x32x16_bf16 v[{ACC1}:"]}
        for k in str(opt.get('x_rm', '')).split('+'):
            if k in rm and any(t in l for t in rm[k]): return False
        return True
    e.L = e.L[:loop_start] + [l for l in e.L[loop_start:] if xf(l)]
    e("K_drain:\ns_nop 0")
    stamp('loop')
    if opt.get('stamp'): e(f"v_writelane_b32 v{vST}, s{s_dbg}, 28")
    for x in seg(ACC1): e(x)
    e(f"ds_write_b64 v{vMA}, v[{ZQ}:{ZQ+1}]")
    flush(s_nbCur)
    e("K_wavedone:")
    e("s_setprio 0")
    e("s_waitcnt vmcnt(0) lgkmcnt(0)")
    stamp('drain')
    e("s_barrier")
    stamp('B3')
    dreg = lambda k: (PRE0 + 4 * k) if k < 8 else (ACC0 + 4 * (k - 8))
    aF = T0
    e(f"ds_read_b32 v{aF}, v{ZQ} offset:{L_FLAG}")
    for k in range(16): e(f"ds_read_b128 {vr(dreg(k),4)}, v{aA} offset:{128*(k>>2)+16*(k&3)}")
    e(f"ds_read_b64 {vr(PD,2)}, v{aPA}\nds_read_b32 v{PD+2}, v{aPO} offset:{L_POSD}")
    e(f"s_waitcnt lgkmcnt(14)\nv_readfirstlane_b32 s{s_t0}, v{aF}")
    for k in range(16):
        if k % 4 == 0 and k: e(f"s_waitcnt lgkmcnt({14-k})")
        r = dreg(k)
        e(f"v_cvt_f32_f64 v{r}, {vr(r,2)}\nv_cvt_f32_f64 v{r+1}, {vr(r+2,2)}")
        if k == 0: e(f"s_cmp_lg_u32 s{s_t0}, 0\ns_cbranch_scc1 K_more")
        if k: e(f"v_cvt_pk_bf16_f32 v{HS+k-1}, v{dreg(k-1)}, v{dreg(k-1)+1}")
        if k % 4 == 1 and k > 4: e(mfma(DH, WHM + 4 * (k // 4 - 1), HS + 4 * (k // 4 - 1), DH))
    e(f"v_cvt_pk_bf16_f32 v{HS+15}, v{dreg(15)}, v{dreg(15)+1}")
    e(f"s_waitcnt lgkmcnt(0)\nv_cvt_f32_f64 v{PD}, {vr(PD,2)}")
    e(mfma(DH, WHM + 12, HS + 12, DH))
    e(f"""
    v_add_f32 v{PD}, v{PD}, v{PD+2}
    v_cvt_pk_bf16_f32 v{PD}, v{PD}, v{PD}
    buffer_store_short v{PD}, v{oP}, {sr(sOP,4)}, 0 offen{OF}
    """)
    e("s_nop 7\ns_nop 1")
    X = TMP
    if not dhs:
        for i in range(0, 16, 2): e(f"v_pk_mul_f32 {vr(X+i,2)}, {vr(DH+i,2)}, {sr(sC,2)}")
    for i in range(16): e(f"v_exp_f32 v{X+i}, v{(DH if dhs else X)+i}")
    for i in range(0, 16, 2): e(f"v_pk_add_f32 {vr(X+i,2)}, {vr(X+i,2)}, 1.0 op_sel_hi:[1,0]")
    for i in range(16): e(f"v_rcp_f32 v{X+i}, v{X+i}")
    for hf in range(2):
        if dhs:
            for i in range(8 * hf, 8 * hf + 8, 2): e(f"v_pk_mul_f32 {vr(X+i,2)}, {vr(DH+i,2)}, {vr(X+i,2)}")
            for i in range(8 * hf, 8 * hf + 8, 2): e(f"v_pk_fma_f32 {vr(X+i,2)}, {vr(X+i,2)}, {sr(sC,2)}, {vr(RS+i,2)}")
        else:
            for i in range(8 * hf, 8 * hf + 8, 2): e(f"v_pk_fma_f32 {vr(X+i,2)}, {vr(DH+i,2)}, {vr(X+i,2)}, {vr(RS+i,2)}")
        for i in range(4 * hf, 4 * hf + 4): e(f"v_cvt_pk_bf16_f32 v{HS+i}, v{X+2*i}, v{X+2*i+1}")
        e(f"ds_write_b128 v{aW+hf}, {vr(HS+4*hf,4)}")
    e(f"ds_read_b128 {vr(HS+8,4)}, v{aR}\nds_read_b128 {vr(HS+12,4)}, v{aR} offset:1024")
    spin(2)
    stamp('epi'); rt(25)
    fin(s_b, s_w, 8, sWS, WS_STAMP, T0 + 1)
    e(f"""
    s_waitcnt lgkmcnt(1)
    buffer_store_dwordx4 {vr(HS+8,4)}, v{nd}, {sr(sOUT,4)}, 0 offen{OF}
    s_waitcnt lgkmcnt(0)
    buffer_store_dwordx4 {vr(HS+12,4)}, v{nd2}, {sr(sOUT,4)}, 0 offen offset:2048{OF}
    K_fin:
    """)
    if opt.get('x_pad') == 'fin': e("s_waitcnt vmcnt(0)"); stamp('fin')
    e("K_end:\ns_endpgm")
    e("K_flush:")
    flush(s_nbOld)
    e("s_branch K_flushb")
    for t in tail: e(t)
    e(f"""
    K_reflg:
    s_add_u32 s63, s63, 1
    s_cmp_gt_u32 s63, 0x40000
    s_cbranch_scc1 K_flgok
    buffer_load_dwordx2 {vr(FLV,2)}, v{aFL}, {sr(sWS,4)}, s62 offen{SC}
    s_branch K_flg
    """)
    e("K_repoll:")
    if opt.get('sleep', 4): e(f"s_sleep {opt.get('sleep', 4)}")
    for i in range(2):
        e(f"s_mov_b64 exec, {sr(4+2*i,2)}\nbuffer_load_dwordx2 {vr(OFFV+2*i,2)}, v{tA}, {sr(sWS,4)}, s{16+i} offen{SC}")
    e("s_mov_b64 exec, -1\ns_branch K_poll")
    for t in ovf_blocks: e(t)
    ovf_blocks.clear()
    e(f"K_setflag:\nv_mov_b32 v{tA}, 1\nv_mov_b32 v{tB}, {L_FLAG}\nds_write_b32 v{tB}, v{tA}\ns_waitcnt lgkmcnt(0)\ns_branch K_flagset")
    def zero_hist():
        e(f"""
        v_cmp_gt_u32 vcc, 65, v0
        v_lshlrev_b32 v{tA}, 4, v0
        s_nop 0
        s_mov_b64 exec, vcc
        ds_write_b128 v{tA}, {vr(ZQ,4)} offset:{L_HIST}
        s_mov_b64 exec, -1
        s_waitcnt lgkmcnt(0)
        s_barrier
        """)
    if epos == 1:
        e(f"K_skip:\ns_cmp_lg_u32 s{s_done}, 0\ns_cbranch_scc1 K_wavedone")
        epi_consts()
        e("s_branch K_wavedone")
    e("K_retry:\ns_waitcnt lgkmcnt(0)\ns_barrier")
    zero_hist()
    e(f"s_mov_b32 s{s_take}, 8\ns_mov_b32 s{s_ovf}, 0\ns_add_u32 s{s_t0}, s{s_done}, 8")
    for i in range(2):
        e(f"v_min_u32 v{tB}, s{s_t0}, v{vU+i}\nv_sub_u32 v{tB}, v{tB}, v{vT2D}")
        for u in range(6): e(f"v_cmp_lt_i32 {sr(smask(6*i+u),2)}, {u}, v{tB}")
    e("s_branch K_hist")
    e("K_more:\ns_waitcnt lgkmcnt(0)\ns_barrier")
    zero_hist()
    e(mfma(ACC0, ZQ, ZQ)); e(mfma(ACC1, ZQ, ZQ))
    for r in range(16): e(f"v_mov_b32 v{OH1A+r}, 0")
    e(f"s_add_u32 s{s_done}, s{s_done}, s{s_take}\ns_mov_b32 s{s_take}, 32")
    e.vm = []
    offs_pre(); offs_loads(); rec_pre(); rec_loads(True, 'b')
    e("s_branch K_hist")
    for t in ovf_blocks: e(t)
    s = HEADER + f"; @launch grid=({NW},1,1) block=(512,1,1) lds={LDS}\n"
    s += DOC
    s += '.amdgcn_target "amdgcn-amd-amdhsa--gfx950"\n.text\n' + e.text()
    s += KD.format(name=nm, vgpr=256, acc=256, sgpr=102)
    return s

if __name__ == "__main__":
    opt = {}
    for a in sys.argv[2:]:
        k, _, v = a.partition("="); opt[k] = (int(v) if v.isdigit() else v) if v else 1
    open(sys.argv[1], "w").write(gen(opt))
    if opt.get('stamp'): print(",".join(opt['names']))
```

```python
import sys
from gen import Em, vr, sr, srd, wave_scan, KD, mk_stamp, mfma, HEADER, LOG2E, NLOG2E, LN2

N = 25000; E = 800000; NPB = 98; NW = 256; CH = 3128; NQ = CH // 4
RECB = 15744; DOFF = 12544
WS_REC = 0; WS_OFF = 0x620000; WS_POS = 0x6A0000; WS_TOK = 0x710000; WS_FLG = 0x720000; WS_B = 0x800000; WS_SZ = 0xC00000; WS_STAMP = 0x780000
CAP = 3584
L_REC = 0; L_H1 = 25088; L_B1 = 26112
L_POSD = 29184; L_OHT = 31232; L_HIST = 31392; L_BASE = 31904; L_FLAG = 32416; L_WDA = 32448
L_MM = 33664; L_ACC = 50048; L_PACC = 105488; L_ATAB = 108848; L_STG = 127360; LDS = 160128
L_W = L_ACC
ACS = 528; ATS = 144
ID = 2; SCR = 10; DH = 34; WHM = 50; HR = 66; ACC0 = 74; ACC1 = 90; PRE0 = 106; PRE1 = 122; TMP = 138; MR = 154
HS = 162; AW = 178; OH1A = 186; OH1B = 190; OH2 = 194; IDX = 202; ZQ = 210; RW = 214; PS = 216; vPI = 219
PD = 220; WP = 224; vMA = 226; vRA = 227; vTA = 228; cRA = 229; cTA = 230; cHS = 231; cM = 235; cMW = 237
vAWA = 238; cAW = 239; cF = 240; cP = 241; wx0 = 242; wx1 = 243; vMX = 244; T0 = 245; vST = 255
sDST = 28; sSRC = 32; sEA = 36; sWS = 40; sH = 44; sPF = 48; sOUT = 52; sOP = 56; sDBG = 60
sWE = 64; sWH = 68; sPOS = 72; sWX = 76; sM0 = 80; sM1 = 82; sMASK = 4
s_w = 3; s_b = 84; s_nb0 = 85; s_rb = 86; s_cb = 87; s_stg = 88; s_t0 = 89; s_t1 = 90; s_t2 = 91
sC = 92; sLO = 94; sQ = 96; s_done = 98; s_take = 99; s_T = 100; s_c = 101
s_p = 64; s_pn = 65; s_end = 66; s_p8 = 67; s_lim = 68; s_nbN = 69; s_nbCur = 70; s_nbOld = 71
s_flN = 72; s_flush = 73; s_cntN = 74; s_cntCur = 75; s_need = 76; s_mkB = 77; sMK = 78; sMV = 80; s_o = 36; s_dbg = 82; L_TOK = L_FLAG + 16; L_BST = L_STG + 16384

DOC = '''; One launch, 256 co-resident workgroups (one per CU, 8 waves each).  Workgroup c
;     together with B = -log2(e) * h[bin] @ w_e[64:128] (bf16) and fp32 positions of its own bin;
;  2. hands over through tagged rows in d_ws (the tag is the word the previous launch left there + 1,
;     published through d_debug; it only tells this launch's rows from older ones);
;     silu on the VALU, segment sums of m and diff*m by MFMA over a sliding 8-node window, f64 LDS accumulators;
'''
NLN2 = LN2 | 0x80000000
s_rem = 83

def gen(opt):
    opt.setdefault('pfp', 1); opt.setdefault('pfb', 0); opt.setdefault('sleep', 0); opt.setdefault('cpf', 21)
    fold = opt.get('fold', 1)
    dhs = fold and opt.get('dhs', 0)
    pair = fold and opt.get('pair', 0)
    assert not (pair and dhs)
    import struct as _st
    KSC = 0x21800000
    NLN2 = globals()['NLN2'] if not pair else _st.unpack('<I', _st.pack('<f', -0.6931471805599453 * 2.0 ** -60))[0]
    ordr = opt.get('ord', 1)
    FL = {0: "", 1: " nt", 2: " sc1", 3: " sc1 nt", 4: " sc0 sc1 nt", 5: " sc0 sc1"}
    EN = FL[opt.get('en', 3)]; ON = FL[opt.get('on', 3)]; RN = FL[opt.get('rn', 2)]; SN = FL[opt.get('sn', 2)]; BN = FL[opt.get('bn', 2)]
    SC = " sc1"
    OF = {0: "", 1: " sc1", 2: " nt", 3: " sc0 sc1", 4: " sc1 nt", 5: " sc0 sc1 nt"}[opt.get("of", 5)]
    e = Em(); nm = "standalone__cheap_equivariant_egnn__graph_kernel"
    stamp, real, fin = mk_stamp(e, opt, vST)
    e(f".globl {nm}\n.p2align 8\n.type {nm},@function\n{nm}:")
    cpf = ""
    if opt.get('cpf', 0):
        n2 = opt.get('cpf')
        cpf = f"s_getpc_b64 s[26:27]\nv_lshlrev_b32 v{HS}, 7, v1\nv_add_u32 v{HS+1}, 0x2000, v{HS}\nglobal_load_dword v{HS+2}, v{HS}, s[26:27] offset:512\n"
        cpf += f"s_mov_b64 exec, {hex((1 << n2) - 1)}\nglobal_load_dword v{HS+3}, v{HS+1}, s[26:27] offset:512\ns_mov_b64 exec, -1"
    o8 = T0 + 4; t8 = T0 + 5
    rho = PD; hb = PD + 1; f3 = PD + 2; r4 = PD + 3; slot = WP; g1 = WP + 1; c4 = RW; tq = RW + 1
    cp2 = opt.get('cp2', 12)
    e(f"""
    s_cmp_ge_u32 s2, {NW}
    s_cbranch_scc1 K_end
    s_load_dwordx16 s[4:19], s[0:1], 0
    s_load_dwordx4 s[20:23], s[0:1], 64
    s_load_dwordx2 s[24:25], s[0:1], 80
    v_lshrrev_b32 v{T0}, 6, v0
    v_and_b32 v1, 63, v0
    """)
    if cp2:
        e(f"""
        s_getpc_b64 s[26:27]
        v_mad_u32_u24 v{HS}, v{T0}, {cp2}, v1
        v_lshlrev_b32 v{HS}, 7, v{HS}
        s_mov_b64 exec, {hex((1 << cp2) - 1)}
        global_load_dword v{HS+1}, v{HS}, s[26:27]
        s_mov_b64 exec, -1
        """)
    if opt.get('x_pad'): e("s_memrealtime s[90:91]")
    e(f"""
    v_readfirstlane_b32 s{s_w}, v{T0}
    s_mul_i32 s{s_t0}, s2, {NQ}
    v_add_u32 v{T0}, s{s_t0}, v0
    v_add_u32 v{T0+1}, 0x200, v{T0}
    s_mov_b32 s{s_c}, {E//4}
    v_cmp_gt_u32 {sr(sM1,2)}, s{s_c}, v{T0+1}
    v_cmp_gt_u32 vcc, {NQ-512}, v0
    v_lshlrev_b32 v{ID}, 4, v{T0}
    v_lshlrev_b32 v{ID+1}, 4, v{T0+1}
    v_mov_b32 v{ZQ}, 0
    s_and_b64 {sr(sM1,2)}, {sr(sM1,2)}, vcc
    s_waitcnt lgkmcnt(0)
    """)
    if opt.get('x_pad'): e("s_mov_b32 s88, s90")
    srd(e, sDST, 12, 13, E * 4)
    e.v('dst', f"buffer_load_dwordx4 {vr(106,4)}, v{ID}, {sr(sDST,4)}, 0 offen{EN}")
    e(f"s_mov_b64 exec, {sr(sM1,2)}")
    e.v('dst', f"buffer_load_dwordx4 {vr(116,4)}, v{ID+1}, {sr(sDST,4)}, 0 offen{EN}")
    e(f"""
    s_mov_b64 exec, -1
    v_cmp_gt_u32 {sr(sM0,2)}, s{s_c}, v{T0}
    s_mov_b32 s{s_c}, s2
    s_and_b32 s{s_b}, s2, 7
    s_lshl_b32 s{s_b}, s{s_b}, 5
    s_lshr_b32 s{s_t0}, s2, 3
    s_add_u32 s{s_b}, s{s_b}, s{s_t0}
    s_mul_i32 s{s_nb0}, s{s_b}, {NPB}
    s_lshr_b32 s{s_rb}, s{s_w}, 1
    s_and_b32 s{s_cb}, s{s_w}, 1
    v_lshlrev_b32 v{ID+2}, 3, v{T0}
    v_lshlrev_b32 v{ID+3}, 3, v{T0+1}
    v_lshrrev_b32 v{o8}, 3, v1
    v_and_b32 v{t8}, 7, v1
    v_mov_b32 v{ZQ+1}, 0
    v_mov_b32 v{ZQ+2}, 0
    v_mov_b32 v{ZQ+3}, 0
    v_lshlrev_b32 v{tq}, 4, v0
    s_cmp_lg_u32 s{s_w}, 7
    s_cbranch_scc1 K_nh1
    ds_write_b128 v{tq}, {vr(ZQ,4)} offset:{L_H1-7*1024}
    K_nh1:
    """)
    def spin(tag):
        if opt.get('x_spin') == tag:
            e(f"""
            s_memtime s[0:1]
            s_waitcnt lgkmcnt(0)
            s_add_u32 s2, s0, 20000
            KX_spin:
            s_memtime s[0:1]
            s_waitcnt lgkmcnt(0)
            s_sub_u32 s0, s0, s2
            s_cmp_lt_i32 s0, 0
            s_cbranch_scc1 KX_spin
            """)
    stamp0 = stamp
    def stamp(name):
        stamp0(name)
        if opt.get('x_pad') == name:
            e(f"""
            KX_pad:
            s_memrealtime s[0:1]
            s_waitcnt lgkmcnt(0)
            s_sub_u32 s0, s0, s2
            s_cmp_lt_u32 s0, 5000
            s_cbranch_scc1 KX_pad
            """)
    if opt.get('x_pad'): e("s_mov_b32 s2, s88")
    spin(1)
    real(); stamp('start')
    def rt(lane):
        if opt.get('stamp'): e(f"s_memrealtime s[0:1]\ns_waitcnt lgkmcnt(0)\nv_writelane_b32 v{vST}, s0, {lane}")


    D0, S0, E0, D1, S1, E1 = 106, 110, 114, 116, 120, 124
    REC1 = 126; HA = 142; RK = 150; SCN = 158; PO = OH2; TK = OH1A; RWV = SCR + 16
    vRO = 251; vBG = 252; vBW = 253; nd = vBG; nd2 = 254
    sHR = sH; sBS = sPOS
    HA4 = AW; vONE = PS + 1; vL16 = PS + 2
    aE = ID
    HO = [HR, HR + 4, ACC1, ACC1 + 4]
    def rd(tag, dst, off):
        for s_ in range(4):
            for t in range(2): e.d(tag, f"ds_read_b64_tr_b16 {vr(dst+4*s_+2*t,2)}, v{T0+1+(s_>>1)} offset:{off+1024*(s_&1)+512*t}")
    def mm(d, a):
        for s_ in range(4): e(mfma(d, a + 4 * s_, HO[s_], None if s_ == 0 else d))
    def scale_pack(src):
        if fold:
            for r in range(16): e(f"v_mul_f32 v{src+r}, s7, v{src+r}")
        for r in range(8): e(f"v_cvt_pk_bf16_f32 v{AW+r}, v{src+2*r}, v{src+2*r+1}")
    srd(e, sWS, 24, 25, WS_SZ)
    e(f"""
    s_lshl_b32 s{s_t0}, s{s_c}, 3
    s_add_u32 s{s_t0}, s{s_t0}, s{s_w}
    s_cmp_eq_u32 s{s_t0}, 5
    s_cselect_b64 {sr(26,2)}, 1, 0
    s_mov_b32 s{s_t2}, {WS_TOK}
    s_mov_b64 exec, {sr(26,2)}
    """)
    e.v('dst', f"buffer_load_dwordx2 {vr(TK,2)}, v{ZQ}, {sr(sWS,4)}, s{s_t2} offen{SC}")
    e("s_mov_b64 exec, -1")
    srd(e, sHR, 4, 5, N, stride=128); srd(e, sWE, 14, 15, 130 * 128)
    e(f"""
    s_lshl_b32 s12, s{s_w}, 11
    s_lshl_b32 s13, s{s_w}, 10
    s_mov_b32 s14, 8192
    s_lshl_b32 s{s_t0}, s{s_w}, 4
    s_add_u32 s{s_t0}, s{s_t0}, s{s_nb0}
    v_lshrrev_b32 v{vPI}, 4, v1
    v_xor_b32 v{vPI}, v{t8}, v{vPI}
    v_lshlrev_b32 v{IDX+1}, 4, v{vPI}
    v_add_u32 v{IDX}, s{s_t0}, v{o8}
    v_xor_b32 v{IDX+3}, 64, v{IDX+1}
    v_add_u32 v{IDX+2}, 8, v{IDX}
    v_mov_b32 v{IDX+5}, v{IDX+1}
    """)
    if opt.get('own98', 1):
        e(f"""
        s_add_u32 s{s_t0}, s{s_nb0}, {NPB}
        v_cmp_gt_u32 vcc, s{s_t0}, v{IDX}
        v_cmp_gt_u32 {sr(0,2)}, s{s_t0}, v{IDX+2}
        v_mov_b32 v{vPI}, 0x100000
        v_cndmask_b32 v{IDX}, v{vPI}, v{IDX}, vcc
        v_cndmask_b32 v{IDX+2}, v{vPI}, v{IDX+2}, {sr(0,2)}
        """)
    def own_loads():
        e(f"s_add_u32 m0, s12, {L_STG}\ns_nop 0")
        e.v('own', f"buffer_load_dwordx4 {vr(IDX,2)}, {sr(sHR,4)}, 0 idxen offen{ON} lds")
        e(f"s_add_u32 m0, s12, {L_STG+1024}\ns_nop 0")
        e.v('own', f"buffer_load_dwordx4 {vr(IDX+2,2)}, {sr(sHR,4)}, 0 idxen offen{ON} lds")
        e(f"s_add_u32 m0, s13, {L_W+8192}\ns_nop 0")
        e.v('own', f"buffer_load_dwordx4 v{tq}, {sr(sWE,4)}, s14 offen lds")
    oe = opt.get('oe', 1)
    if not ordr or oe in (1, 2): own_loads()
    def src_loads():
        e.v('src', f"buffer_load_dwordx4 {vr(S0,4)}, v{aE}, {sr(sSRC,4)}, 0 offen{EN}")
        e.v('src', f"buffer_load_dwordx2 {vr(E0,2)}, v{aE+2}, {sr(sEA,4)}, 0 offen{EN}")
        e(f"s_mov_b64 exec, {sr(sM1,2)}")
        e.v('src', f"buffer_load_dwordx4 {vr(S1,4)}, v{aE+1}, {sr(sSRC,4)}, 0 offen{EN}")
        e.v('src', f"buffer_load_dwordx2 {vr(E1,2)}, v{aE+3}, {sr(sEA,4)}, 0 offen{EN}")
        e(f"s_cmp_ge_u32 s{s_w}, 6\ns_cselect_b64 exec, -1, 0")
        for k in range(3): e.v('src', f"buffer_load_ushort v{PO+k}, v{PO+6}, {sr(sPOS,4)}, 0 offen offset:{2*k}")
        e(f"s_cmp_eq_u32 s{s_w}, 5\ns_cselect_b64 exec, -1, 0\ns_mov_b32 s{s_t0}, 16384")
        for k in range(2): e.v('src', f"buffer_load_ushort v{PO+k}, v{PO+7}, {sr(sWE,4)}, s{s_t0} offen offset:{128*k}")
        e("s_mov_b64 exec, -1")
    stamp('iss')
    srd(e, sSRC, 10, 11, E * 4); srd(e, sEA, 8, 9, E * 2)
    srd(e, sPOS, 6, 7, N * 6); srd(e, sDBG, 22, 23, 256)
    e(f"""
    v_mov_b32 v{IDX+7}, v{IDX+3}
    v_and_b32 v{rho}, 31, v1
    v_lshrrev_b32 v{hb}, 5, v1
    v_bfe_u32 v{f3}, v1, 1, 3
    v_bfe_u32 v{r4}, v1, 2, 2
    v_bfe_u32 v{g1}, v1, 4, 1
    v_and_b32 v{c4}, 3, v1
    v_subrev_u32 v{PO+5}, 0x180, v0
    v_add_u32 v{PO+4}, s{s_nb0}, v{PO+5}
    v_mul_u32_u24 v{PO+6}, 6, v{PO+4}
    v_lshlrev_b32 v{PO+7}, 1, v1
    v_cmp_gt_u32 vcc, 152, v0
    ds_write_b128 v{tq}, {vr(ZQ,4)} offset:{L_OHT}
    ds_write_b128 v{tq}, {vr(ZQ,4)} offset:{L_OHT+8192}
    s_mov_b64 exec, vcc
    ds_write_b128 v{tq}, {vr(ZQ,4)} offset:{L_OHT+16384}
    s_mov_b64 exec, -1
    """)
    if ordr and oe != 1: src_loads()
    if oe == 3: own_loads()
    srd(e, sWH, 18, 19, 128 * 128); srd(e, sWX, 16, 17, 128)
    srd(e, sPF, 24, 25, N + 216, add=WS_POS, stride=16)
    srd(e, sOUT, 20, 21, N * 128); srd(e, sOP, 20, 21, N * 6, add=N * 128)
    if opt.get('tlb'):
        a = HS + 12
        e(f"""
        v_mov_b32 v{a}, 0
        s_lshl_b32 s{s_t1}, s{s_nb0}, 7
        s_cmp_lg_u32 s{s_w}, 6
        s_cbranch_scc1 K_notlb
        s_mul_i32 s{s_t0}, s{s_c}, {RECB}
        v_mov_b32 v{a}, s{s_t0}
        s_lshl_b32 s{s_t0}, s{s_c}, 11
        s_add_u32 s{s_t0}, s{s_t0}, {WS_OFF}
        v_writelane_b32 v{a}, s{s_t0}, 1
        s_add_u32 s{s_t0}, s{s_t1}, {WS_B}
        v_writelane_b32 v{a}, s{s_t0}, 2
        s_lshl_b32 s{s_t0}, s{s_c}, 7
        s_add_u32 s{s_t0}, s{s_t0}, {WS_FLG}
        v_writelane_b32 v{a}, s{s_t0}, 3
        K_notlb:
        s_cmp_eq_u32 s{s_w}, 6
        s_cselect_b64 exec, 15, 0
        """)
        e.v('tlb', f"buffer_load_dword v{a+1}, v{a}, {sr(sWS,4)}, 0 offen")
        e("s_cselect_b64 exec, 1, 0")
        e.v('tlb', f"buffer_load_dword v{a+2}, v{ZQ}, {sr(sOUT,4)}, s{s_t1} offen")
        e.v('tlb', f"buffer_load_ushort v{a+3}, v{ZQ}, {sr(sOP,4)}, 0 offen")
        e("s_mov_b64 exec, -1")
    e(f"""
    s_mov_b32 s4, 42800
    s_mov_b32 s5, -98
    s_mov_b32 s6, 0xffff0000
    s_mov_b32 s7, {NLOG2E}
    s_mul_i32 s8, s{s_c}, {RECB}
    s_add_u32 s9, s8, 8192
    v_mov_b32 v{vONE}, 1
    v_lshlrev_b32 v{vL16}, 4, v1
    v_lshl_or_b32 v{slot}, v{g1}, 2, v{c4}
    v_lshl_or_b32 v{T0}, v{hb}, 3, v{r4}
    v_lshlrev_b32 v{T0}, 7, v{T0}
    v_and_b32 v{T0+1}, 1, v{c4}
    v_lshrrev_b32 v{T0+2}, 1, v{c4}
    v_lshlrev_b32 v{T0+1}, 5, v{T0+1}
    v_lshl_or_b32 v{T0+1}, v{g1}, 4, v{T0+1}
    v_lshl_or_b32 v{T0+1}, v{T0+2}, 3, v{T0+1}
    s_lshl_b32 s{s_t0}, s{s_cb}, 6
    s_add_u32 s{s_t0}, s{s_t0}, {L_W}
    v_add3_u32 v{T0+3}, v{T0}, v{T0+1}, s{s_t0}
    v_lshl_add_u32 v{T0+1}, v{hb}, 10, v{T0+3}
    s_lshl_b32 s{s_t0}, s{s_cb}, 12
    s_xor_b32 s{s_t1}, s{s_t0}, 4096
    v_add_u32 v{T0+2}, s{s_t1}, v{T0+1}
    v_add_u32 v{T0+1}, s{s_t0}, v{T0+1}
    s_lshl_b32 s{s_t0}, s{s_rb}, 12
    s_add_u32 s{s_t1}, s{s_t0}, {L_STG}
    v_lshl_add_u32 v{HA4+5}, v{rho}, 7, s{s_t1}
    s_lshl_b32 s{s_t1}, s{s_cb}, 2
    v_lshlrev_b32 v{HA4+4}, 1, v{hb}
    v_xor_b32 v{HA4+4}, s{s_t1}, v{HA4+4}
    v_xor_b32 v{HA4+4}, v{HA4+4}, v{f3}
    """)
    for s_ in range(4):
        k = 4 * (s_ >> 1) + (s_ & 1)
        e(f"v_xor_b32 v{HA4+s_}, {k}, v{HA4+4}\nv_lshl_add_u32 v{HA4+s_}, v{HA4+s_}, 4, v{HA4+5}")
    e(f"""
    s_add_u32 s{s_t1}, s12, {L_BST}
    v_and_b32 v{T0}, 3, v{f3}
    v_lshlrev_b32 v{vBW}, 1, v{hb}
    v_xor_b32 v{vBW}, v{vBW}, v{T0}
    v_lshlrev_b32 v{vBW}, 4, v{vBW}
    v_lshl_add_u32 v{vBW}, v{rho}, 6, v{vBW}
    v_add_u32 v{vBW}, s{s_t1}, v{vBW}
    v_add_u32 v{ID+5}, s{s_t1}, v{vL16}
    s_lshl_b32 s{s_t0}, s{s_rb}, 5
    v_lshrrev_b32 v{T0}, 2, v1
    v_add_u32 v{T0}, s{s_t0}, v{T0}
    v_cmp_gt_u32 vcc, {NPB}, v{T0}
    s_movk_i32 s{s_t1}, {NPB-16}
    v_cmp_gt_u32 {sr(18,2)}, s{s_t1}, v{T0}
    v_add_u32 v{T0}, s{s_nb0}, v{T0}
    v_xor_b32 v{vBG}, v{o8}, v1
    v_and_b32 v{vBG}, 3, v{vBG}
    v_lshlrev_b32 v{T0}, 7, v{T0}
    v_lshl_add_u32 v{T0}, v{vBG}, 4, v{T0}
    s_lshl_b32 s{s_t1}, s{s_cb}, 6
    v_add_u32 v{T0}, s{s_t1}, v{T0}
    v_mov_b32 v{vPI}, 0x1000000
    v_cndmask_b32 v{vBG}, v{vPI}, v{T0}, vcc
    v_cndmask_b32 v{nd2}, v{vPI}, v{T0}, {sr(18,2)}
    v_cmp_gt_u32 vcc, 468, v0
    v_lshlrev_b32 v{vRO}, 5, v1
    s_lshl_b32 s15, s{s_c}, 11
    s_add_u32 s15, s15, {WS_OFF}
    v_cndmask_b32 v{vPI}, v{vPI}, v{tq}, vcc
    v_lshlrev_b32 v{ID+4}, 1, v{rho}
    """)
    srcpos = opt.get('srcpos', 1) if (not ordr or oe == 1) else -1
    e("s_waitcnt lgkmcnt(0)\ns_barrier")
    stamp('Ba')
    e.wvm('dst')
    stamp('dst')
    if srcpos == 1: src_loads()
    e(f"""
    s_mov_b64 exec, {sr(26,2)}
    s_cbranch_execz K_notok
    v_add_u32 v{TK}, 1, v{TK}
    v_add_u32 v{TK+1}, 1, v{TK+1}
    v_mov_b32 v{TK+4}, v{TK}
    v_lshl_or_b32 v{TK+5}, v{TK+1}, 24, 1
    buffer_store_dwordx2 {vr(TK+4,2)}, v{ZQ}, {sr(sDBG,4)}, 0 offen{SC}
    buffer_store_dwordx2 {vr(TK,2)}, v{ZQ}, {sr(sWS,4)}, s{s_t2} offen{SC}
    K_notok:
    """)
    for r, D in enumerate((D0, D1)):
        if r: e(f"s_mov_b64 exec, {sr(sM1,2)}\ns_cbranch_execz K_h1")
        else: e(f"s_mov_b64 exec, {sr(sM0,2)}")
        for k in range(4): e(f"v_mul_u32_u24 v{HA+4*r+k}, s4, v{D+k}")
        for k in range(4): e(f"v_lshrrev_b32 v{HA+4*r+k}, 22, v{HA+4*r+k}")
        for k in range(4): e(f"v_mad_i32_i24 v{REC1+8*r+2*k+1}, v{HA+4*r+k}, s5, v{D+k}")
        for k in range(4): e(f"v_lshlrev_b32 v{HA+4*r+k}, 2, v{HA+4*r+k}")
        for k in range(4): e(f"ds_add_rtn_u32 v{RK+4*r+k}, v{HA+4*r+k}, v{vONE} offset:{L_H1}")
    e("K_h1:\ns_mov_b64 exec, -1")
    if srcpos == 2: src_loads()
    def w1_loads():
        e(f"s_add_u32 m0, s13, {L_W}\ns_nop 0")
        e.v('w1', f"buffer_load_dwordx4 v{tq}, {sr(sWE,4)}, 0 offen lds")
        e.v('w1', f"buffer_load_ushort v{wx0}, v{ID+4}, {sr(sWX,4)}, 0 offen")
        e.v('w1', f"buffer_load_ushort v{wx1}, v{ID+4}, {sr(sWX,4)}, 0 offen offset:64")
    def wh_loads():
        if ordr != 4: tok_load()
        e(f"s_add_u32 m0, s12, {L_W+16384}\ns_nop 0")
        e.v('wh', f"buffer_load_dwordx4 v{vL16}, {sr(sWH,4)}, s12 offen lds")
        e.v('wh', f"buffer_load_dwordx4 v{vL16}, {sr(sWH,4)}, s12 offen offset:1024 lds")
    def tok_load():
        e(f"s_cmp_eq_u32 s{s_w}, 4\ns_cselect_b64 exec, -1, 0")
        e.v('tok', f"buffer_load_dwordx2 {vr(TK,2)}, v{ZQ}, {sr(sDBG,4)}, 0 offen{SC}")
        e("s_mov_b64 exec, -1")
    def b_reads():
        for s_ in range(4): e.d('ho', f"ds_read_b128 {vr(HO[s_],4)}, v{HA4+s_}")
        rd('w2', SCR, 8192)
    def b_out(pre):
        scale_pack(ACC0)
        e(f"ds_write_b128 v{vBW}, {vr(AW,4)}\nds_write_b128 v{T0}, {vr(AW+4,4)}")
        e(f"ds_read_b128 {vr(ACC0,4)}, v{ID+5}\nds_read_b128 {vr(ACC0+4,4)}, v{ID+5} offset:1024")
        pre()
        srd(e, sBS, 24, 25, N * 128, add=WS_B)
        e("s_waitcnt lgkmcnt(1)")
        e.v('bst', f"buffer_store_dwordx4 {vr(ACC0,4)}, v{nd}, {sr(sBS,4)}, 0 offen{BN}")
        e("s_waitcnt lgkmcnt(0)")
        e.v('bst', f"buffer_store_dwordx4 {vr(ACC0+4,4)}, v{nd2}, {sr(sBS,4)}, 0 offen offset:2048{BN}")
        e.ds = []
    if not ordr: e.wvm('own')
    e("s_waitcnt lgkmcnt(0)\ns_barrier")
    e.ds = []
    stamp('Bb')
    e.d('h', f"ds_read_b128 {vr(SCN,4)}, v{vL16} offset:{L_H1}")
    late = ordr == 4
    if not late and not oe: own_loads()
    e.wds('h')
    e(f"""
    v_add_u32 v{SCN+4}, v{SCN}, v{SCN+1}
    v_add_u32 v{SCN+5}, v{SCN+4}, v{SCN+2}
    v_add_u32 v{SCN+6}, v{SCN+5}, v{SCN+3}
    v_mov_b32 v{SCN+7}, v{SCN+6}
    """)
    wave_scan(e, SCN + 7)
    e(f"""
    v_sub_u32 v{SCN+8}, v{SCN+7}, v{SCN+6}
    v_add_u32 v{SCN+9}, v{SCN+8}, v{SCN}
    v_add_u32 v{SCN+10}, v{SCN+8}, v{SCN+4}
    v_add_u32 v{SCN+11}, v{SCN+8}, v{SCN+5}
    """)
    e.d('bw', f"ds_write_b128 v{vL16}, {vr(SCN+8,4)} offset:{L_B1}")
    e(f"s_mov_b64 exec, {sr(sM0,2)}")
    for k in range(4): e.d('b0', f"ds_read_b32 v{HA+k}, v{HA+k} offset:{L_B1}")
    e(f"s_mov_b64 exec, {sr(sM1,2)}")
    for k in range(4, 8): e.d('b1', f"ds_read_b32 v{HA+k}, v{HA+k} offset:{L_B1}")
    e("s_mov_b64 exec, -1")
    if not ordr:
        e.wds('w2')
        mm(ACC0, SCR)
    def rec_words():
        for r, (S, EE) in enumerate(((S0, E0), (S1, E1))):
            e(f"""
            v_lshl_or_b32 v{REC1+8*r}, v{EE}, 16, v{S}
            v_and_or_b32 v{REC1+8*r+2}, v{EE}, s6, v{S+1}
            v_lshl_or_b32 v{REC1+8*r+4}, v{EE+1}, 16, v{S+2}
            v_and_or_b32 v{REC1+8*r+6}, v{EE+1}, s6, v{S+3}
            """)
    if ordr:
        e.wvm('src'); rec_words()
    e.wds('b1')
    for k in range(8): e(f"v_add_u32 v{HA+k}, v{HA+k}, v{RK+k}")
    e(f"s_mov_b64 exec, {sr(sM0,2)}")
    for k in range(4): e(f"ds_write_b8 v{HA+k}, v{REC1+2*k+1} offset:{L_REC+DOFF}")
    e(f"s_mov_b64 exec, {sr(sM1,2)}")
    for k in range(4, 8): e(f"ds_write_b8 v{HA+k}, v{REC1+2*k+1} offset:{L_REC+DOFF}")
    e(f"s_mov_b64 exec, -1\nv_xor_b32 v{T0}, 16, v{vBW}")
    for k in range(8): e(f"v_lshlrev_b32 v{HA+k}, 2, v{HA+k}")
    if not ordr: b_out(wh_loads)
    stamp('scan')
    if not ordr:
        e.wvm('src'); rec_words()
    stamp('src')
    for r in range(2):
        e(f"s_mov_b64 exec, {sr(sM0 if r == 0 else sM1,2)}")
        for k in range(4 * r, 4 * r + 4): e(f"ds_write_b32 v{HA+k}, v{REC1+2*k} offset:{L_REC}")
    e("s_mov_b64 exec, -1")
    e(f"""
    s_cmp_lt_u32 s{s_w}, 6
    s_cbranch_scc1 K_nopf
    s_mov_b32 s{s_t0}, {N}
    v_cmp_gt_u32 vcc, {NPB}, v{PO+5}
    v_cmp_gt_u32 {sr(16,2)}, s{s_t0}, v{PO+4}
    v_lshlrev_b32 v{PO}, 16, v{PO}
    v_lshlrev_b32 v{PO+1}, 16, v{PO+1}
    v_lshlrev_b32 v{PO+2}, 16, v{PO+2}
    v_mov_b32 v{PO+3}, 0
    v_lshlrev_b32 v{PO+5}, 4, v{PO+5}
    ds_write_b128 v{PO+5}, {vr(PO,4)} offset:{L_POSD}
    s_and_b64 {sr(16,2)}, {sr(16,2)}, vcc
    K_nopf:
    """)
    nobx = opt.get('nobx', 0)
    if late: tok_load()
    elif ordr == 1:
        w1_loads(); wh_loads()
        if 'own' in e.vm: e.wvm('own')
    elif ordr == 2:
        w1_loads(); wh_loads()
    else: e.wvm('wh' if nobx else 'w1')
    e("s_waitcnt lgkmcnt(0)\ns_barrier")
    e.ds = []
    stamp('Bc')
    for r in range(2): e.d(f'c{r}', f"ds_read_b128 {vr(PRE0+4*r,4)}, v{tq} offset:{L_REC+8192*r}")
    if ordr == 1: b_reads()
    if not ordr: rd('w1', SCR, 0)
    for r in range(2):
        e.wds(f'c{r}')
        e.v('st', f"buffer_store_dwordx4 {vr(PRE0+4*r,4)}, v{tq if r < 1 else vPI}, {sr(sWS,4)}, s{8+r} offen{SN}")
    def posf_store():
        e(f"s_cmp_ge_u32 s{s_w}, 6\ns_cselect_b64 exec, {sr(16,2)}, 0")
        e.v('bst', f"buffer_store_dwordx4 {vr(PO,4)}, v{PO+4}, {sr(sPF,4)}, 0 idxen{SC}")
        e("s_mov_b64 exec, -1")
    def row_prep():
        e(f"""
        s_cmp_lg_u32 s{s_w}, 4
        s_cbranch_scc1 K_row_done
        s_mov_b32 s{s_t0}, 0
        K_tk:
        v_readfirstlane_b32 s{s_t1}, v{TK+1}
        s_add_u32 s{s_t0}, s{s_t0}, 1
        s_cmp_gt_u32 s{s_t0}, 0x40000
        s_cbranch_scc1 K_tkok
        s_bitcmp1_b32 s{s_t1}, 0
        s_cbranch_scc1 K_tkok
        buffer_load_dwordx2 {vr(TK,2)}, v{ZQ}, {sr(sDBG,4)}, 0 offen{SC}
        s_waitcnt vmcnt(0)
        s_branch K_tk
        K_tkok:
        v_and_b32 v{TK+1}, 0xff000000, v{TK+1}
        v_mov_b32 v{TK+2}, {L_TOK}
        ds_write_b64 v{TK+2}, {vr(TK,2)}
        """)
        for k in range(4):
            e(f"v_lshl_or_b32 v{RWV+2*k}, v{SCN+k}, 12, v{SCN+8+k}\nv_mov_b32 v{RWV+2*k+1}, v{TK}\nv_or_b32 v{RWV+2*k}, v{RWV+2*k}, v{TK+1}")

        e("K_row_done:")
    def row_store():
        e(f"s_cmp_eq_u32 s{s_w}, 4\ns_cselect_b64 exec, -1, 0")
        e.v('row', f"buffer_store_dwordx4 {vr(RWV,4)}, v{vRO}, {sr(sWS,4)}, s15 offen{SC}")
        e.v('row', f"buffer_store_dwordx4 {vr(RWV+4,4)}, v{vRO}, {sr(sWS,4)}, s15 offen offset:16{SC}")
        e("s_mov_b64 exec, -1")
    if not late:
        posf_store()
        e.wds('w2')
        mm(ACC0, SCR)
        e.wvm('wh')
        e("s_nop 6")
        row_prep()
        e("s_nop 2")
        b_out(lambda: None)
        stamp('Bx')
        e.wvm('st')
        e("s_barrier")
        stamp('Bd'); rt(27)
        row_store()
        nrow = 2
    else:
        own_loads(); posf_store(); w1_loads(); wh_loads()
        sv = list(e.vm); e.wvm('tok'); e.vm = sv
        row_prep()
        stamp('Bx')
        e.wvm('st')
        e("s_waitcnt lgkmcnt(0)\ns_barrier")
        stamp('Bd'); rt(27)
        row_store()
        e.wvm('wh')
        e("s_barrier")
        b_reads()
        e.wds('w2')
        mm(ACC0, SCR)
        rd('w1', SCR, 0)
        e("s_nop 4")
        b_out(lambda: None)
        nrow = 0
    e.d('tk', f"ds_read_b64 {vr(TK,2)}, v{ZQ} offset:{L_TOK}")
    if not late: rd('w1', SCR, 0)
    e.wds0()
    mm(ACC0, SCR)
    e(f"v_readfirstlane_b32 s60, v{TK}\nv_readfirstlane_b32 s61, v{TK+1}")
    srd(e, sH, 24, 25, N, add=WS_B - 3072, stride=128)
    e(f"""
    s_lshl_b32 s{s_t0}, s{s_rb}, 5
    v_add_u32 v{PS}, s{s_t0}, v{rho}
    v_mul_u32_u24 v{PS}, {ATS}, v{PS}
    s_lshl_b32 s{s_t0}, s{s_cb}, 6
    s_add_u32 s{s_t0}, s{s_t0}, {L_ATAB}
    v_lshl_add_u32 v{PS}, v{hb}, 5, v{PS}
    v_add_u32 v{PS}, s{s_t0}, v{PS}
    """)
    rd('wh', TMP, 16384)
    for s_ in range(4):
        for t in range(2): e.d('wm', f"ds_read_b64_tr_b16 {vr(WHM+4*s_+2*t,2)}, v{T0+3} offset:{24576+2048*s_+512*t}")
    scale_pack(ACC0)
    e.wds('wh')
    mm(DH, TMP)
    e(f"ds_write_b128 v{PS}, {vr(AW,4)}\nds_write_b128 v{PS}, {vr(AW+4,4)} offset:16")
    e(mfma(ACC0, ZQ, ZQ)); e(mfma(ACC1, ZQ, ZQ))
    e(f"""
    s_cmp_eq_u32 s{s_w}, 5
    s_cbranch_scc1 K_side5
    s_cmp_lg_u32 s{s_w}, 4
    s_cbranch_scc1 K_side_done
    v_mul_u32_u24 v{PO}, 18, v1
    v_mov_b32 v{PO+1}, 0x3f80
    s_mov_b64 exec, 0xff
    ds_write_b16 v{PO}, v{PO+1} offset:{L_OHT}
    s_mov_b64 exec, -1
    """)
    e("s_branch K_side_done\nK_side5:")
    if not fold:
        e(f"ds_write_b16 v{PO+7}, v{PO} offset:{L_WDA}\nds_write_b16 v{PO+7}, v{PO+1} offset:{L_WDA+ATS}")
    else:
        e(f"""
        v_lshlrev_b32 v{PO}, 16, v{PO}
        v_lshlrev_b32 v{PO+1}, 16, v{PO+1}
        v_mul_f32 v{PO}, s7, v{PO}
        v_mul_f32 v{PO+1}, s7, v{PO+1}
        v_cvt_pk_bf16_f32 v{PO+2}, v{PO}, v{PO+1}
        v_lshlrev_b32 v{PO+3}, 16, v{PO+2}
        v_sub_f32 v{PO}, v{PO}, v{PO+3}
        v_and_b32 v{PO+3}, s6, v{PO+2}
        v_sub_f32 v{PO+1}, v{PO+1}, v{PO+3}
        v_cvt_pk_bf16_f32 v{PO+3}, v{PO}, v{PO+1}
        ds_write_b16 v{PO+7}, v{PO+2} offset:{L_WDA}
        ds_write_b16_d16_hi v{PO+7}, v{PO+2} offset:{L_WDA+ATS}
        ds_write_b16 v{PO+7}, v{PO+3} offset:{L_WDA+2*ATS}
        ds_write_b16_d16_hi v{PO+7}, v{PO+3} offset:{L_WDA+3*ATS}
        """)
    e(f"""
    K_side_done:
    v_lshlrev_b32 v{ID}, 3, v{hb}
    v_sub_u32 v{ID}, v{rho}, v{ID}
    v_subrev_u32 v{ID+4}, 16, v{ID}
    v_min_u32 v{ID}, 8, v{ID}
    v_min_u32 v{ID+4}, 8, v{ID+4}
    v_lshlrev_b32 v{ID}, 4, v{ID}
    v_lshlrev_b32 v{ID+4}, 4, v{ID+4}
    s_mov_b32 s{s_done}, 0
    s_mov_b32 s{s_take}, 32
    v_add_u32 v{T0+3}, {L_ACC}, v{tq}
    v_cmp_gt_u32 vcc, 91, v0
    s_lshl_b32 s14, s{s_c}, 7
    s_add_u32 s14, s14, {WS_FLG}
    """)
    OFFV = 162; cREC = 174; vT2D = 175; tA = 176; tB = 177
    RECV = PRE0; HADR = TMP; RANK = MR
    def offs_pre():
        e(f"""
        v_lshrrev_b32 v{tA}, 2, v1
        v_lshlrev_b32 v{tA}, 11, v{tA}
        s_lshl_b32 s{s_t0}, s{s_w}, 16
        s_lshl_b32 s{s_t1}, s{s_b}, 3
        s_add_u32 s{s_t0}, s{s_t0}, s{s_t1}
        s_add_u32 s16, s{s_t0}, {WS_OFF}
        s_add_u32 s17, s16, 32768
        """)
    def offs_loads():
        for i in range(2):
            e.v('off', f"buffer_load_dwordx2 {vr(OFFV+2*i,2)}, v{tA}, {sr(sWS,4)}, s{16+i} offen{SC}")
    cRD = 173; RA = PRE0; RD = PRE1; aAr = PRE1 + 6; aDr = PRE1 + 8; vU = PRE1 + 10; vD = PRE1 + 12; s_ovf = s_need
    smask = lambda k: sMASK + 2 * k
    def rec_pre():
        e(f"""
        s_mov_b32 s{s_t0}, {RECB}
        v_lshrrev_b32 v{cREC}, 2, v1
        v_and_b32 v{vT2D}, 3, v1
        v_mul_u32_u24 v{cREC}, s{s_t0}, v{cREC}
        v_mad_u32_u24 v{vT2D}, v{vT2D}, 6, s{s_done}
        s_mul_i32 s{s_o}, s{s_w}, {32*RECB}
        s_add_u32 s{s_o+1}, s{s_o}, {16*RECB}
        v_add_u32 v{cRD}, v{cREC}, v{vT2D}
        v_add_u32 v{cRD}, {DOFF}, v{cRD}
        v_lshl_add_u32 v{cREC}, v{vT2D}, 2, v{cREC}
        s_add_u32 s{s_o+2}, s{s_done}, 24
        """)
    def rec_loads(waits, tag):
        if waits: e("s_waitcnt vmcnt(0)")
        for i in range(2):
            e(f"""
            v_bfe_u32 v{vU+i}, v{OFFV+2*i}, 12, 12
            v_and_b32 v{tA}, 0xfff, v{OFFV+2*i}
            v_sub_u32 v{vD+i}, v{vU+i}, v{vT2D}
            v_add_u32 v{aDr+i}, v{tA}, v{cRD}
            v_cmp_lt_i32 {sr(smask(6*i),2)}, 0, v{vD+i}
            v_lshl_add_u32 v{aAr+i}, v{tA}, 2, v{cREC}
            v_cmp_lt_i32 {sr(smask(6*i+4),2)}, 4, v{vD+i}
            s_mov_b64 exec, {sr(smask(6*i),2)}
            buffer_load_dwordx2 {vr(RD+2*i,2)}, v{aDr+i}, {sr(sWS,4)}, s{s_o+i} offen{RN}
            s_mov_b64 exec, -1
            """)
        e(f"v_max_u32 v{vMX}, v{vU}, v{vU+1}")
        for i in range(2):
            e(f"""
            s_mov_b64 exec, {sr(smask(6*i),2)}
            buffer_load_dwordx4 {vr(RA+6*i,4)}, v{aAr+i}, {sr(sWS,4)}, s{s_o+i} offen{RN}
            s_mov_b64 exec, {sr(smask(6*i+4),2)}
            buffer_load_dwordx2 {vr(RA+6*i+4,2)}, v{aAr+i}, {sr(sWS,4)}, s{s_o+i} offen offset:16{RN}
            """)
        e(f"s_mov_b64 exec, -1\nv_cmp_lt_u32 vcc, s{s_o+2}, v{vMX}\ns_mov_b32 s{s_ovf}, 0")
        for i in range(2):
            for u in (1, 2, 3, 5): e(f"v_cmp_lt_i32 {sr(smask(6*i+u),2)}, {u}, v{vD+i}")
        e(f"s_cbranch_vccnz K_ovl{tag}\nK_ovlb{tag}:")
        t = f"K_ovl{tag}:\ns_mov_b32 s{s_ovf}, 1\nv_and_b32 v{tA}, 3, v1\nv_lshlrev_b32 v{tB}, 2, v{tA}\nv_subrev_u32 v{tB}, 24, v{tB}\n"
        for i in range(2):
            t += f"""v_add_u32 v{HADR+i}, v{vD+i}, v{tB}
            v_sub_u32 v{aDr+i}, v{aDr+i}, v{tB}
            v_lshlrev_b32 v{tA}, 2, v{tB}
            v_cmp_lt_i32 {sr(smask(12+2*i),2)}, 0, v{HADR+i}
            v_sub_u32 v{aAr+i}, v{aAr+i}, v{tA}
            v_cmp_lt_i32 {sr(smask(13+2*i),2)}, 1, v{HADR+i}
            s_mov_b64 exec, {sr(smask(12+2*i),2)}
            buffer_load_ushort v{RD+4+i}, v{aDr+i}, {sr(sWS,4)}, s{s_o+i} offen{RN}
            buffer_load_dwordx2 {vr(RA+12+2*i,2)}, v{aAr+i}, {sr(sWS,4)}, s{s_o+i} offen{RN}
            s_mov_b64 exec, -1
            """
        ovf_blocks.append(t + f"s_branch K_ovlb{tag}")
        e.vm = []
    ovf_blocks = []
    def sdwa(d, sh, k):
        r, b = (RD + 2 * (k // 6) + ((k % 6) >> 2), (k % 6) & 3) if k < 12 else (RD + 4 + ((k - 12) >> 1), k & 1)
        return f"v_lshlrev_b32_sdwa v{d}, {sh}, v{r} dst_sel:DWORD dst_unused:UNUSED_PAD src0_sel:DWORD src1_sel:BYTE_{b}"
    def ovf_call(name, body):
        e(f"s_cmp_lg_u32 s{s_ovf}, 0\ns_cbranch_scc1 K_ov{name}\nK_ov{name}b:")
        ovf_blocks.append(f"K_ov{name}:\n" + body + f"\ns_mov_b64 exec, -1\ns_branch K_ov{name}b")
    def loop_consts():
        e(f"""
        s_lshl_b32 s{s_stg}, s{s_w}, 12
        s_add_u32 s{s_stg}, s{s_stg}, {L_STG}
        v_lshlrev_b32 v{cRA}, 3, v1
        v_lshlrev_b32 v{cTA}, 3, v{o8}
        v_lshl_add_u32 v{HADR+8}, v{rho}, 7, s{s_stg}
        v_xor_b32 v{HADR+9}, v{hb}, v{f3}
        """)
        for s_ in range(4):
            if s_: e(f"v_xor_b32 v{cHS+s_}, {2*s_}, v{HADR+9}\nv_lshl_add_u32 v{cHS+s_}, v{cHS+s_}, 4, v{HADR+8}")
            else: e(f"v_lshl_add_u32 v{cHS}, v{HADR+9}, 4, v{HADR+8}")
        e(f"""
        s_lshl_b32 s{s_t0}, s{s_w}, 11
        s_add_u32 s{s_t0}, s{s_t0}, {L_MM}
        v_lshl_add_u32 v{cMW}, v{rho}, 6, s{s_t0}
        v_lshl_or_b32 v{cMW}, v{f3}, 3, v{cMW}
        v_mov_b32 v{vMA}, v{cMW}
        v_lshl_or_b32 v{HADR+8}, v{hb}, 2, v{r4}
        v_lshrrev_b32 v{HADR+9}, 1, v{HADR+8}
        v_xor_b32 v{HADR+9}, v{HADR+9}, v{slot}
        v_lshl_add_u32 v{HADR+8}, v{HADR+8}, 6, s{s_t0}
        v_lshl_add_u32 v{cM}, v{HADR+9}, 3, v{HADR+8}
        v_xor_b32 v{HADR+9}, 4, v{HADR+9}
        v_lshl_add_u32 v{cM+1}, v{HADR+9}, 3, v{HADR+8}
        v_add_u32 v{cM+1}, 0x200, v{cM+1}
        v_mul_u32_u24 v{cAW}, {ATS}, v{r4}
        v_lshl_add_u32 v{cAW}, v{slot}, 3, v{cAW}
        s_mov_b32 s{s_t0}, {L_WDA-L_ATAB}
        v_mad_i32_i24 v{cAW}, v{hb}, s{s_t0}, v{cAW}
        v_add_u32 v{cAW}, {L_ATAB}, v{cAW}
        v_mov_b32 v{vAWA}, v{cAW}
        v_mul_u32_u24 v{cF}, {ACS}, v{hb}
        v_lshl_add_u32 v{cF}, v{rho}, 3, v{cF}
        v_add_u32 v{cF}, {L_ACC}, v{cF}
        v_lshl_or_b32 v{cP}, v{r4}, 1, v{hb}
        v_lshlrev_b32 v{cP}, 5, v{cP}
        v_add_u32 v{cP}, {L_PACC}, v{cP}
        v_lshlrev_b32 v{wx0}, 16, v{wx0}
        v_lshlrev_b32 v{wx1}, 16, v{wx1}
        v_add_u32 v{IDX+1}, 0xc00, v{IDX+1}
        v_add_u32 v{IDX+3}, 0x800, v{IDX+3}
        v_add_u32 v{IDX+5}, 0x400, v{IDX+5}
        s_mov_b32 s{sLO}, -1
        v_mov_b32 v{SCR+19}, 0x1000000
        s_mov_b32 s{sLO+1}, 0
        s_mov_b32 s{sQ}, 0x11111111
        s_mov_b32 s{sQ+1}, 0x11111111
        s_mov_b32 s{sC}, {NLOG2E}
        s_mov_b32 s{sC+1}, {NLOG2E}
        """)
        if fold: e(f"v_mul_f32 v{wx0}, {NLN2}, v{wx0}\nv_mul_f32 v{wx1}, {NLN2}, v{wx1}")
        for r in list(range(OH1A, OH1A + 8)) + list(range(OH2, OH2 + 8)): e(f"v_mov_b32 v{r}, 0")

    cpos = opt.get('cpos', 2)
    offs_pre()
    if cpos == 0: loop_consts(); rec_pre()
    stamp('side')
    if opt.get('early') == 3: offs_loads(); nrow += 2
    e(f"s_waitcnt vmcnt({nrow}) lgkmcnt(0)\ns_barrier")
    e.ds = []; e.vm = []
    stamp('Bd2')
    e(f"""
    s_cmp_eq_u32 s{s_w}, 3
    s_cselect_b64 exec, 1, 0
    buffer_store_dwordx2 {vr(TK,2)}, v{ZQ}, {sr(sWS,4)}, s14 offen{SC}
    s_mov_b64 exec, -1
    ds_read_b128 {vr(ID,4)}, v{ID} offset:{L_OHT}
    ds_read_b128 {vr(ID+4,4)}, v{ID+4} offset:{L_OHT}
    """)
    RS = SCR; aA = SCR + 16; aPO = SCR + 17; aPA = SCR + 18; oP = SCR + 19; aW = SCR + 20; aR = SCR + 22
    def epi_consts():
        t0_, t1_, t2_, rho, hb, f3, c4 = range(TMP, TMP + 7)
        e(f"""
        v_and_b32 v{rho}, 31, v1
        v_lshrrev_b32 v{hb}, 5, v1
        v_bfe_u32 v{f3}, v1, 1, 3
        v_and_b32 v{c4}, 3, v1
        s_lshl_b32 s{s_t0}, s{s_rb}, 5
        v_add_u32 v{t0_}, s{s_t0}, v{rho}
        v_mul_u32_u24 v{aA}, {ACS}, v{t0_}
        v_lshl_add_u32 v{aA}, v{hb}, 6, v{aA}
        v_add_u32 v{aA}, {L_ACC}, v{aA}
        v_lshlrev_b32 v{aPO}, 2, v0
        v_lshlrev_b32 v{aPA}, 3, v0
        v_add_u32 v{aPA}, {L_PACC}, v{aPA}
        v_lshrrev_b32 v{oP}, 2, v0
        v_cmp_gt_u32 vcc, {NPB}, v{oP}
        v_cmp_gt_u32 {sr(s_o,2)}, 3, v{c4}
        v_add_u32 v{oP}, s{s_nb0}, v{oP}
        v_mul_u32_u24 v{oP}, 6, v{oP}
        v_lshl_add_u32 v{oP}, v{c4}, 1, v{oP}
        s_and_b64 vcc, {sr(s_o,2)}, vcc
        v_mov_b32 v{t2_}, 0x1000000
        v_and_b32 v{t0_}, 3, v{f3}
        v_cndmask_b32 v{oP}, v{t2_}, v{oP}, vcc
        v_lshlrev_b32 v{t1_}, 1, v{hb}
        v_xor_b32 v{t1_}, v{t1_}, v{t0_}
        v_lshl_add_u32 v{aW}, v{rho}, 6, s{s_stg}
        v_lshl_add_u32 v{aW}, v{t1_}, 4, v{aW}
        v_xor_b32 v{aW+1}, 16, v{aW}
        v_lshl_add_u32 v{aR}, v1, 4, s{s_stg}
        """)
        for r in range(8):
            e(f"v_lshlrev_b32 v{RS+2*r}, 16, v{HR+r}\nv_and_b32 v{RS+2*r+1}, 0xffff0000, v{HR+r}")
        if dhs:
            for i in range(0, 16, 2): e(f"v_pk_mul_f32 {vr(DH+i,2)}, {vr(DH+i,2)}, {sr(sC,2)}")
            e(f"s_mov_b32 s{sC}, {NLN2}\ns_mov_b32 s{sC+1}, {NLN2}")

    epos = opt.get('epos', 1)
    nz = opt.get('nz', 8)
    Z = [f"ds_write_b128 v{T0+3}, {vr(ZQ,4)} offset:{8192*r}" for r in range(7)]
    Z.append(f"s_mov_b64 exec, vcc\nds_write_b128 v{T0+3}, {vr(ZQ,4)} offset:{8192*7}\ns_mov_b64 exec, -1")
    for z in Z[:nz]: e(z)
    early = opt.get('early', 0)
    if early == 1: offs_loads()
    if cpos == 2: loop_consts()
    if early == 2: offs_loads()
    if epos == 2: epi_consts()
    if cpos == 2: rec_pre()
    if opt.get('isl'): e(f"s_sleep {opt.get('isl')}")
    if not early:
        if opt.get('zw', 1): e("s_waitcnt lgkmcnt(0)")
        offs_loads()
    for z in Z[nz:]: e(z)
    if cpos == 1: loop_consts(); rec_pre()
    e(f"s_mov_b32 s{s_t0}, 0\nK_poll:\ns_waitcnt vmcnt(0)")
    if opt.get('pst'): e(f"s_memrealtime s[0:1]\ns_min_u32 s2, s{s_t0}, 20\ns_add_u32 m0, s2, 32\ns_waitcnt lgkmcnt(0)\nv_writelane_b32 v{vST}, s0, m0\nv_writelane_b32 v{vST}, s{s_t0}, 24")
    for i in range(2):
        e(f"v_xor_b32 v{HADR+2*i}, s61, v{OFFV+2*i}\nv_xor_b32 v{HADR+2*i+1}, s60, v{OFFV+2*i+1}")
    for i in range(2): e(f"v_lshrrev_b32 v{HADR+2*i}, 24, v{HADR+2*i}")
    for i in range(2): e(f"v_or_b32 v{HADR+2*i}, v{HADR+2*i}, v{HADR+2*i+1}")
    for i in range(2): e(f"v_cmp_ne_u32 {sr(4+2*i,2)}, 0, v{HADR+2*i}")
    e(f"""
    s_add_u32 s{s_t0}, s{s_t0}, 1
    s_cmp_gt_u32 s{s_t0}, 0x40000
    s_cbranch_scc1 K_pollx
    s_or_b64 {sr(12,2)}, {sr(4,2)}, {sr(6,2)}
    s_cbranch_scc1 K_repoll
    K_pollx:
    """)
    stamp('Be'); rt(26)
    rec_loads(False, 'a')
    if epos == 0: epi_consts()
    e.ds = []
    hist1 = lambda k: f"s_mov_b64 exec, {sr(smask(k),2)}\nds_add_rtn_u32 v{RANK+k}, v{HADR+k}, v{tA} offset:{L_HIST}"
    base1 = lambda k: f"s_mov_b64 exec, {sr(smask(k),2)}\nds_read_b32 v{HADR+k}, v{HADR+k} offset:{L_BASE}"
    scat1 = lambda k: f"s_mov_b64 exec, {sr(smask(k),2)}\nds_write2_b32 v{HADR+k}, v{RA+k}, v{RANK+k} offset0:0 offset1:1"
    FLV = PS; aFL = T0; fp = opt.get('fp', 0)
    flag_load = f"buffer_load_dwordx2 {vr(FLV,2)}, v{aFL}, {sr(sWS,4)}, s62 offen{SC}"
    e(f"""
    K_hist:
    v_mov_b32 v{tA}, 1
    v_and_b32 v{aFL}, 31, v1
    v_lshlrev_b32 v{aFL}, 7, v{aFL}
    s_lshl_b32 s62, s{s_w}, 12
    s_add_u32 s62, s62, {WS_FLG}
    """)
    for i in range(2):
        e(f"s_waitcnt vmcnt({5 - i + (1 if fp == 1 and i else 0)})")
        if i == 0: stamp('rec')
        if fp == 1 and i == 0: e(flag_load)
        if fp == 2 and i == 1: e(flag_load)
        for k in range(6 * i, 6 * i + 6): e(sdwa(HADR + k, 2, k))
        for k in range(6 * i, 6 * i + 6): e(hist1(k))
        e("s_mov_b64 exec, -1")
    ovf_call('h', "s_waitcnt vmcnt(0)\n" + "\n".join(sdwa(HADR + k, 2, k) for k in range(12, 16)) + "\n" + "\n".join(hist1(k) for k in range(12, 16)))
    if fp == 0: e(flag_load)
    e(f"""
    s_waitcnt lgkmcnt(0)
    s_barrier
    """)
    stamp('B1')
    e(f"""
    ds_read_b64 v[{OFFV+8}:{OFFV+9}], v{cRA} offset:{L_HIST}
    s_add_u32 s{s_t0}, s{s_done}, s{s_take}
    v_cmp_lt_u32 vcc, s{s_t0}, v{vMX}
    s_waitcnt lgkmcnt(0)
    v_add_u32 v{tA}, v{OFFV+8}, v{OFFV+9}
    v_mov_b32 v{tB}, v{tA}
    """)
    wave_scan(e, tB)
    e(f"""
    v_sub_u32 v{OFFV+10}, v{tB}, v{tA}
    v_readlane_b32 s{s_T}, v{tB}, 63
    v_add_u32 v{OFFV+11}, v{OFFV+10}, v{OFFV+8}
    ds_write_b64 v{cRA}, v[{OFFV+10}:{OFFV+11}] offset:{L_BASE}
    s_cmp_gt_u32 s{s_T}, {CAP}
    s_cbranch_scc1 K_retry
    """)
    for k in range(12): e(base1(k))
    e(f"""
    s_mov_b64 exec, -1
    s_cbranch_vccnz K_setflag
    K_flagset:
    s_add_u32 s{s_t1}, s{s_T}, 31
    s_lshr_b32 s{s_t1}, s{s_t1}, 5
    s_lshr_b32 s{s_t0}, s{s_t1}, 3
    s_and_b32 s{s_t1}, s{s_t1}, 7
    s_mul_i32 s{s_p}, s{s_w}, s{s_t0}
    s_min_u32 s{s_t2}, s{s_w}, s{s_t1}
    s_add_u32 s{s_p}, s{s_p}, s{s_t2}
    s_add_u32 s{s_end}, s{s_p}, s{s_t0}
    s_cmp_lt_u32 s{s_w}, s{s_t1}
    s_addc_u32 s{s_end}, s{s_end}, 0
    s_lshl_b32 s{s_p}, s{s_p}, 5
    s_lshl_b32 s{s_end}, s{s_end}, 5
    s_min_u32 s{s_end}, s{s_end}, s{s_T}
    s_lshl_b32 s{s_t0}, s{s_T}, 3
    v_add_u32 v{tA}, s{s_t0}, v{cRA}
    s_mov_b32 s63, 0
    K_flg:
    s_waitcnt vmcnt(0)
    v_cmp_ne_u32 vcc, s60, v{FLV}
    v_cmp_ne_u32 {sr(0,2)}, s61, v{FLV+1}
    s_lshr_b32 s{s_t0}, s{s_c}, 3
    s_lshl_b32 s{s_t1}, s{s_w}, 5
    s_or_b64 vcc, vcc, {sr(0,2)}
    s_cbranch_scc1 K_reflg
    K_flgok:
    s_add_u32 s{s_t0}, s{s_t0}, s{s_t1}
    s_and_b32 s{s_t1}, s{s_t0}, 7
    s_lshl_b32 s{s_t1}, s{s_t1}, 5
    s_lshr_b32 s{s_t0}, s{s_t0}, 3
    s_add_u32 s{s_t0}, s{s_t0}, s{s_t1}
    s_mul_i32 s{s_t0}, s{s_t0}, {NPB}
    """)
    if opt.get('pfp'):
        e(f"s_add_u32 s{s_t1}, s{s_t0}, 7\ns_and_b32 s{s_t1}, s{s_t1}, -8\nv_lshl_add_u32 v{PS}, v1, 3, s{s_t1}\ns_mov_b64 exec, 0x7ff\nbuffer_load_dword v{PS}, v{PS}, {sr(sPF,4)}, 0 idxen{SC}\ns_mov_b64 exec, -1")
    if opt.get('pfb'):
        e(f"v_add_u32 v{PS+1}, s{s_t0}, v1\ns_bfm_b64 exec, {opt.get('pfb')}, 0\nbuffer_load_dword v{PS+1}, v{PS+1}, {sr(sH,4)}, 0 idxen offset:3072{SC}\ns_mov_b64 exec, -1")
    for q in range(3):
        e("s_waitcnt lgkmcnt(8)")
        for k in range(4 * q, 4 * q + 4): e(f"v_add_lshl_u32 v{HADR+k}, v{HADR+k}, v{RANK+k}, 3")
        for k in range(4 * q, 4 * q + 4): e(sdwa(RANK + k, 4, k))
        for k in range(4 * q, 4 * q + 4): e(scat1(k))
        e("s_mov_b64 exec, -1")
    X4 = range(12, 16)
    ovf_call('s', "\n".join(base1(k) for k in X4) + "\ns_mov_b64 exec, -1\ns_waitcnt lgkmcnt(0)\n"
             + "\n".join(f"v_add_lshl_u32 v{HADR+k}, v{HADR+k}, v{RANK+k}, 3" for k in X4) + "\n"
             + "\n".join(sdwa(RANK + k, 4, k) for k in X4) + "\n" + "\n".join(scat1(k) for k in X4))
    e(f"""
    s_cmp_lg_u32 s{s_w}, 7
    s_cbranch_scc1 K_nopad
    ds_write_b64 v{tA}, v[{ZQ}:{ZQ+1}] offset:{L_REC}
    K_nopad:
    s_lshl_b32 s{s_p8}, s{s_p}, 3
    s_mov_b32 s{s_lim}, 0
    s_mov_b32 s{s_nbCur}, 0
    v_add_u32 v{vRA}, s{s_p8}, v{cRA}
    v_add_u32 v{vTA}, s{s_p8}, v{cTA}
    """)
    for r in range(8): e(f"v_mov_b32 v{MR+r}, 0")
    e("s_waitcnt lgkmcnt(0)\ns_barrier")
    e.ds = []; e.vm = []
    spin(3)
    stamp('B2')
    e(f"s_cmp_ge_u32 s{s_p}, s{s_end}\ns_cbranch_scc1 {'K_skip' if epos == 1 else 'K_wavedone'}")

    tail = []
    D = lambda tag, t: (lambda: e.d(tag, t))
    V = lambda tag, t: (lambda: e.v(tag, t))
    def rec_read():
        return [D('rw', f"ds_read_b64 v[{RW}:{RW+1}], v{vRA} offset:{L_REC}"), D('rw', f"ds_read_u16 v{vPI}, v{vRA} offset:{L_REC}")]
    def window_pre():
        return [f"s_sub_u32 s{s_rem}, s{s_end}, s{s_p}", f"s_min_u32 s{s_need}, s{s_rem}, 64", f"s_bfm_b64 {sr(sMV,2)}, s{s_rem}, 0",
                f"s_cmp_ge_u32 s{s_rem}, 64", f"s_cselect_b64 {sr(sMV,2)}, -1, {sr(sMV,2)}", f"s_mov_b32 s{s_flN}, 0"]
    def window():
        l = e.lab("K_win")
        tail.append(f"""
        {l}a:
        v_readfirstlane_b32 s{s_nbN}, v{RW+1}
        s_mov_b32 s{s_flN}, 1
        s_add_u32 s{s_lim}, s{s_nbN}, 128
        v_cmp_gt_u32 vcc, s{s_lim}, v{RW+1}
        s_nop 0
        s_and_b64 {sr(sMK,2)}, vcc, {sr(sMV,2)}
        s_bcnt1_i32_b64 s{s_cntN}, {sr(sMK,2)}
        s_branch {l}b
        """)
        return [lambda: (e.wds('rw'), e(f"v_cmp_gt_u32 vcc, s{s_lim}, v{RW+1}")),
                V('ps', f"buffer_load_dwordx3 {vr(PS,3)}, v{vPI}, {sr(sPF,4)}, 0 idxen{FL[opt.get('pg', 2)]}"),
                D('pd', f"ds_read_b128 {vr(PD,4)}, v{RW+1} offset:{L_POSD}"),
                f"s_and_b64 {sr(sMK,2)}, vcc, {sr(sMV,2)}",
                f"s_bcnt1_i32_b64 s{s_cntN}, {sr(sMK,2)}",
                f"s_cmp_lg_u32 s{s_cntN}, s{s_need}",
                f"s_cbranch_scc1 {l}a\n{l}b:",
                f"s_add_u32 s{s_pn}, s{s_p}, s{s_cntN}" + (f"\ns_and_b32 s0, s{s_dbg}, 7\ns_cselect_b32 s{s_pn}, s{s_p}, s{s_pn}" if opt.get('x_rep') else "")]
    def idx_read(off): return [D('idx', f"ds_read_u16 v{IDX+2*j}, v{vTA} offset:{L_REC+off+64*j}") for j in range(4)]
    def hs_read(): return [D('hs', f"ds_read_b128 {vr(HS+4*s_,4)}, v{cHS+s_}") for s_ in range(4)]
    def oh2_read(): return [D('oh2', f"ds_read_b64_tr_b16 {vr(OH2+4*s_+2*t,2)}, v{cM+t} offset:{1024*s_}") for s_ in range(2) for t in range(2)]
    def aw_read():
        return [f"s_mul_i32 s{s_t0}, s{s_nbN}, {ATS//16}",
                f"s_mov_b64 exec, {sr(sLO,2)}\nv_add_u32 v{vAWA}, s{s_t0}, v{cAW}\ns_mov_b64 exec, -1"] + \
               [D('aw', f"ds_read_b64_tr_b16 {vr(AW+4*blk+2*t,2)}, v{vAWA} offset:{4*ATS*t+64*blk}") for blk in range(2) for t in range(2)]
    def aw_cond():
        t = f"K_aw:\ns_mul_i32 s{s_t0}, s{s_nbN}, {ATS//16}\ns_mov_b64 exec, {sr(sLO,2)}\nv_add_u32 v{vAWA}, s{s_t0}, v{cAW}\ns_mov_b64 exec, -1\n"
        t += "\n".join(f"ds_read_b64_tr_b16 {vr(AW+4*blk+2*t_,2)}, v{vAWA} offset:{4*ATS*t_+64*blk}" for blk in range(2) for t_ in range(2))
        tail.append(t + "\ns_branch K_awb")
        return [f"s_cmp_lg_u32 s{s_flN}, 0", "s_cbranch_scc1 K_aw\nK_awb:"]
    def m_b():
        return [D('mc', f"ds_write_b64 v{vMA}, v[{ZQ}:{ZQ+1}]"),
                f"s_mov_b32 exec_lo, 0\ns_mov_b32 exec_hi, s{s_mkB}\nds_write_b64 v{vMA}, v[{WP}:{WP+1}]\ns_mov_b64 exec, -1"]
    def misc():
        t0, t1, t2, t3 = T0, T0 + 1, T0 + 2, T0 + 3
        t4 = PD + 3
        L = [D('mc', f"ds_write_b64 v{vMA}, v[{ZQ}:{ZQ+1}]"),
             f"""v_subrev_u32 v{t0}, s{s_nbN}, v{RW+1}
             v_sub_f32 v{t1}, v{PD}, v{PS}
             v_sub_f32 v{t2}, v{PD+1}, v{PS+1}
             v_sub_f32 v{t3}, v{PD+2}, v{PS+2}
             v_min_u32 v{OH1A}, 0x80, v{t0}
             v_mul_f32 v{t4}, v{t1}, v{t1}
             v_lshrrev_b32 v{t0}, 1, v{OH1A}
             v_fmac_f32 v{t4}, v{t2}, v{t2}
             v_cvt_pk_bf16_f32 v{WP}, 1.0, v{t1}
             v_fmac_f32 v{t4}, v{t3}, v{t3}
             v_cvt_pk_bf16_f32 v{WP+1}, v{t2}, v{t3}
             v_cvt_pk_bf16_f32 v{OH1B}, v{t4}, v{RW}
             v_xor_b32 v{vMA}, v{t0}, v{cMW}""",
             f"s_mov_b32 s{s_mkB}, s{sMK+1}",
             f"v_permlane32_swap_b32 v{OH1A}, v{OH1B}" + (f"\nv_mov_b32 v{OH1A+1}, v{OH1A}\nv_mov_b32 v{OH1B+1}, v{OH1B}" if fold and opt.get('lo', 1) else ""),
             lambda: (e(f"s_and_b64 exec, {sr(sMK,2)}, {sr(sLO,2)}\nds_write_b64 v{vMA}, v[{WP}:{WP+1}]\ns_mov_b64 exec, {sr(sLO,2)}"), e.d('oh1', f"ds_read_b128 {vr(OH1A,4)}, v{OH1A} offset:{L_OHT}"),
                      e.d('oh1', f"ds_read_b128 {vr(OH1B,4)}, v{OH1B} offset:{L_OHT}"), e("s_mov_b64 exec, -1"))]
        return L
    def dma():
        return [V('dma', f"buffer_load_dwordx4 {vr(IDX+2*j,2)}, {sr(sH,4)}, 0 idxen offen offset:{1024*j}{FL[opt.get('gf', 2)]} lds") for j in range(4)]
    def run(L, gap=False):
        for x in L:
            if callable(x): x()
            else:
                e(x)
                if gap and 'm0' in x: e("s_nop 0")
    def flush(snb):
        e(f"s_mul_i32 s{s_t0}, s{snb}, {ACS//16}\nv_lshl_add_u32 v{T0+1}, s{snb}, 1, v{cP}\nv_add_u32 v{T0}, s{s_t0}, v{cF}")
        R = [4 * j + 1 + c for j in range(4) for c in range(3)]
        for blk, A in enumerate((ACC0, ACC1)):
            if fold and not dhs:
                for j in range(4): e(f"v_mul_f32 v{A+4*j}, {NLN2}, v{A+4*j}")
            if blk == 0:
                for r in R: e(f"v_mul_f32 v{ACC0+r}, v{ACC0+r}, v{wx0}")
            for j in range(4): e(f"v_cvt_f64_f32 {vr(TMP+4*j+2*blk,2)}, v{A+4*j}")
        for j in range(4):
            e(f"ds_add_f64 v{T0}, {vr(TMP+4*j,2)} offset:{2*ACS*j}\nds_add_f64 v{T0}, {vr(TMP+4*j+2,2)} offset:{2*ACS*j+256}")
        for r in R: e(f"v_fmac_f32 v{ACC0+r}, v{ACC1+r}, v{wx1}")
        e(mfma(ACC1, ZQ, ZQ))
        lo = [ACC0 + 4 * j + 1 + c for j in range(2) for c in range(3)]
        for r in lo: e(f"v_add_f32_dpp v{r}, v{r}, v{r} row_ror:8 row_mask:0xf bank_mask:0x3")
        for r in lo: e(f"v_add_f32_dpp v{r}, v{r+8}, v{r+8} row_ror:8 row_mask:0xf bank_mask:0xc")
        lo = [ACC0 + 1 + c for c in range(3)]
        for r in lo: e(f"v_add_f32_dpp v{r}, v{r}, v{r} row_half_mirror row_mask:0xf bank_mask:0x5")
        for r in lo: e(f"v_add_f32_dpp v{r}, v{r+4}, v{r+4} row_half_mirror row_mask:0xf bank_mask:0xa")
        for r in lo: e(f"v_add_f32_dpp v{r}, v{r}, v{r} quad_perm:[1,0,3,2] row_mask:0xf bank_mask:0xf")
        for r in lo: e(f"v_add_f32_dpp v{r}, v{r}, v{r} quad_perm:[2,3,0,1] row_mask:0xf bank_mask:0xf")
        for c in range(3): e(f"v_cvt_f64_f32 {vr(TMP+2*c,2)}, v{ACC0+1+c}")
        e(mfma(ACC0, ZQ, ZQ))
        e(f"s_mov_b64 exec, {sr(sQ,2)}")
        for c in range(3): e(f"ds_add_f64 v{T0+1}, {vr(TMP+2*c,2)} offset:{8*c}")
        e("s_mov_b64 exec, -1")
    def gemm1(q, blk, oh1):
        return [mfma(q, oh1, AW + 4 * blk, None)] + [mfma(q, HS + 8 * blk + 4 * s_, ID + 4 * s_, q) for s_ in range(2)]
    def seg(acc): return [mfma(acc, OH2 + 4 * s_, MR + 4 * s_, acc) for s_ in range(2)]
    def phase(P, G, S, pre, side):
        head = []
        if not fold:
            head = [f"v_pk_mul_f32 {vr(TMP+i,2)}, {vr(P+i,2)}, {sr(sC,2)}" for i in range(0, 16, 2)]
            ex = [f"v_exp_f32 v{TMP+i}, v{TMP+i}" for i in range(16)]
        else:
            ex = [f"v_exp_f32 v{TMP+i}, v{P+i}" for i in range(16)]
        base = []
        for m, x in enumerate([G[0], S[0], S[1]]): base += [x] + ex[4 * m:4 * m + 4]
        base += ex[12:]
        if not pair:
            base += [f"v_pk_add_f32 {vr(TMP+i,2)}, {vr(TMP+i,2)}, 1.0 op_sel_hi:[1,0]" for i in range(0, 16, 2)]
            rc = [f"v_rcp_f32 v{TMP+i}, v{TMP+i}" for i in range(16)]
            for m, x in enumerate(G[1:3]): base += [x] + rc[4 * m:4 * m + 4]
            base += rc[8:]
            base += [f"v_pk_mul_f32 {vr(TMP+i,2)}, {vr(P+i,2)}, {vr(TMP+i,2)}" for i in range(0, 16, 2)]
            base += [f"v_cvt_pk_bf16_f32 v{MR+i//2}, v{TMP+i}, v{TMP+i+1}" for i in range(0, 16, 2)]
        else:
            R2 = HR
            base += [f"v_pk_fma_f32 {vr(TMP+i,2)}, {vr(TMP+i,2)}, {sr(s_o,2)}, {sr(s_o,2)} clamp" for i in range(0, 16, 2)]
            base += [f"v_pk_mul_f32 {vr(R2+i//2,2)}, {vr(TMP+i,2)}, {vr(TMP+i+2,2)}" for i in range(0, 16, 4)]
            rc = [f"v_rcp_f32 v{R2+i}, v{R2+i}" for i in range(8)]
            base += [G[1]] + rc[:3] + [G[2]] + rc[3:]
            base += [f"v_pk_mul_f32 {vr(TMP+i,2)}, {vr(TMP+i,2)}, {vr(R2+2*(i//4),2)}" for i in range(0, 16, 2)]
            base += [f"v_pk_mul_f32 {vr(TMP+i,2)}, {vr(TMP+i,2)}, {vr(P+(i^2),2)}" for i in range(0, 16, 2)]
            base += [f"v_cvt_pk_bf16_f32 v{MR+i//2}, v{TMP+(i^2)}, v{TMP+(i^2)+1}" for i in range(0, 16, 2)]
        assert len(base) == (65 if pair else 61)
        if opt.get('plain', 0) & 1:
            base = [x if 'v_pk_add' not in x else None for x in base]
            k = 0
            for i, x in enumerate(base):
                if x is None: base[i] = f"v_add_f32 v{TMP+k}, 1.0, v{TMP+k}\nv_add_f32 v{TMP+k+1}, 1.0, v{TMP+k+1} ; v_pk_"; k += 2
        if opt.get('plain', 0) & 2:
            k = 0
            for i, x in enumerate(base):
                if 'v_pk_mul' in x: base[i] = f"v_mul_f32 v{TMP+k}, v{P+k}, v{TMP+k}\nv_mul_f32 v{TMP+k+1}, v{P+k+1}, v{TMP+k+1} ; v_pk_"; k += 2
        for x in head: e(x)
        q = [(st, it) for st, L in side for it in L]
        slot_ok = lambda x: 'v_pk_' in x or 'v_cvt_pk' in x
        for i, x in enumerate(base):
            if i in pre: run(pre[i])
            e(x)
            if slot_ok(x) and q and q[0][0] <= i:
                run([q.pop(0)[1]])
        assert not q, q

    if opt.get('x_rep'): e(f"s_mov_b32 s{s_dbg}, 0")
    if opt.get('pp3'): e("s_setprio 3")
    e(f"s_mov_b32 m0, s{s_stg}")
    run(rec_read()); run(idx_read(0)); run(window_pre())
    e.wds('idx')
    e.ds = ['rw']
    W = window()
    run(W[:3])
    run(dma(), True)
    run(W[3:])
    e(f"s_mov_b32 s{s_flN}, 0")
    run(aw_read())
    run(idx_read(256))
    if epos == 1:
        e(f"s_cmp_lg_u32 s{s_done}, 0\ns_cbranch_scc1 K_noepi")
        epi_consts()
        e("K_noepi:")
    wp = window_pre()
    adv = [f"s_lshl_b32 s{s_p8}, s{s_pn}, 3", f"s_mov_b32 s{s_p}, s{s_pn}", f"s_mov_b32 s{s_flush}, s{s_flN}",
           f"s_mov_b32 s{s_nbOld}, s{s_nbCur}", f"s_mov_b32 s{s_nbCur}, s{s_nbN}", f"s_mov_b32 s{s_cntCur}, s{s_cntN}"] + wp
    run(adv)
    if pair: e(f"s_mov_b32 s{s_o}, {KSC}\ns_mov_b32 s{s_o+1}, {KSC}")
    e.wvm('ps'); e.wds('pd')
    M = misc()
    run(M[:2])
    e.wvm0()
    run(hs_read())
    run(M[2:])
    e.wds('hs')
    G = [mfma(PRE0, HS, ID, None), mfma(PRE0, HS + 4, ID + 4, PRE0), mfma(PRE0, OH1A, AW, PRE0)]
    run(dma())
    e(G[0]); e(G[1]); e.wds0(); e(G[2])
    e("s_nop 5")
    if opt.get('prio', 3): e(f"s_setprio {2 if opt.get('pp3') else 3}")
    stamp('wprol')
    if opt.get('stamp'): e(f"s_mov_b32 s{s_dbg}, 0")
    if 'la' in opt:
        e(".p2align 6"); e("\n".join(["s_nop 0"] * (opt['la'] // 4))); e("K_loop:")
    else: e(".p2align 4\nK_loop:")
    loop_start = len(e.L)
    e.ds = []; e.vm = ['dma'] * 4
    if opt.get('stamp'): e(f"s_add_u32 s{s_dbg}, s{s_dbg}, 1")
    if opt.get('itst'): e(f"s_memtime s[0:1]\ns_add_u32 m0, s{s_dbg}, 31\ns_waitcnt lgkmcnt(0)\nv_writelane_b32 v{vST}, s0, m0")
    pm = opt.get('prio', 1)
    def prio_check(tag, reg, th):
        tail.append(f"""
        K_prio{tag}:
        s_setprio {1 if opt.get('pp3') == 2 else 2}
        s_cmp_le_u32 s{reg}, {th[1]}
        s_cbranch_scc0 K_priob{tag}
        s_setprio 1
        s_cmp_le_u32 s{reg}, {th[2]}
        s_cbranch_scc0 K_priob{tag}
        s_setprio 0
        s_branch K_priob{tag}
        """)
        return [f"s_cmp_le_u32 s{reg}, {th[0]}", f"s_cbranch_scc1 K_prio{tag}\nK_priob{tag}:"]
    W = window()
    hw = opt.get('hw', 19); c2 = opt.get('c2', 13); c3 = opt.get('c3', 19); c4_ = opt.get('c4', 15)
    pr = prio_check('a', s_rem, tuple(int(x) for x in str(opt.get('th', '192_64_0')).split('_'))) if pm else []
    dz = 4 if pair else 0
    phase(PRE0, gemm1(PRE1, 1, OH1A), seg(ACC1),
          {0: [f"v_add_u32 v{vRA}, s{s_p8}, v{cRA}\nv_add_u32 v{vTA}, s{s_p8}, v{cTA}"] + rec_read(), c2: oh2_read() + m_b(), c3: W[:3]},
          [(c3, W[3:]), (45 + dz, pr), (59 + dz, [f"s_cmp_lg_u32 s{s_flush}, 0"])])
    e("s_cbranch_scc1 K_flush\nK_flushb:")
    phase(PRE1, gemm1(PRE0, 0, OH1B), seg(ACC0),
          {0: [lambda: e.wvm('dma')] + hs_read() + idx_read(0), 5: [lambda: e.wds('oh2')], hw: [lambda: e.wds('idx')] + dma()},
          [(53 + dz, [f"s_cmp_gt_u32 s{s_cntCur}, 32", f"s_cselect_b32 s{s_t0}, 1, s{s_cntN}", f"s_cmp_eq_u32 s{s_t0}, 0"])])
    e("s_cbranch_scc1 K_drain")
    M = misc()
    phase(PRE0, gemm1(PRE1, 1, OH1B), seg(ACC1),
          {c2: oh2_read() + M[:1], c4_: [lambda: e.wvm('ps')] + M[1:]},
          [(19, aw_cond())] + ([(45 + dz, prio_check('b', s_rem, tuple(int(x) for x in str(opt['th2']).split('_'))))] if opt.get('th2') else []))
    phase(PRE1, gemm1(PRE0, 0, OH1A), seg(ACC0),
          {0: [lambda: e.wvm('dma')] + hs_read() + idx_read(256) + [lambda: e.wds('oh1')], hw: [lambda: e.wds('idx')] + dma()},
          [(45 + dz, adv + [f"s_cmp_lg_u32 s{s_cntN}, 0"])])
    e("s_cbranch_scc1 K_loop")
    assert e.vm == ['dma'] * 4, e.vm
    def xf(l):
        if opt.get('x_novm') and ('buffer_load' in l or 'vmcnt' in l): return False
        if opt.get('x_nods') and ('_tr_' in l or 'ds_read_b128' in l or 'ds_write' in l): return False
        rm = {'hs': [f"ds_read_b128 v[{HS+4*i}:" for i in range(4)], 'oh2': [f"ds_read_b64_tr_b16 v[{OH2+2*i}:" for i in range(4)],
              'aw': [f"ds_read_b64_tr_b16 v[{AW+2*i}:" for i in range(4)], 'pd': [f"ds_read_b128 v[{PD}:"],
              'oh1': [f"ds_read_b128 v[{OH1A}:", f"ds_read_b128 v[{OH1B}:"], 'mw': ["ds_write_b64"], 'dma': [" lds"], 'ps': ["dwordx3"],
              'mf': ['v_mfma'], 'tr': ['v_exp', 'v_rcp'], 'idx': [f"ds_read_u16 v{IDX+2*j}," for j in range(4)], 'm0': [' m0,'],
              'vmw': ['vmcnt'], 'pk': ['v_pk_'], 'cvt': [f"v_cvt_pk_bf16_f32 v{MR+i}," for i in range(8)], 'perm': ['permlane'],
              'seg': [f"v_mfma_f32_32x32x16_bf16 v[{ACC0}:", f"v_mfma_f32_32x32x16_bf16 v[{ACC1}:"]}
        for k in str(opt.get('x_rm', '')).split('+'):
            if k in rm and any(t in l for t in rm[k]): return False
        return True
    e.L = e.L[:loop_start] + [l for l in e.L[loop_start:] if xf(l)]
    e("K_drain:\ns_nop 0")
    stamp('loop')
    if opt.get('stamp'): e(f"v_writelane_b32 v{vST}, s{s_dbg}, 28")
    for x in seg(ACC1): e(x)
    e(f"ds_write_b64 v{vMA}, v[{ZQ}:{ZQ+1}]")
    flush(s_nbCur)
    e("K_wavedone:")
    e("s_setprio 0")
    e("s_waitcnt vmcnt(0) lgkmcnt(0)")
    stamp('drain')
    e("s_barrier")
    stamp('B3')
    dreg = lambda k: (PRE0 + 4 * k) if k < 8 else (ACC0 + 4 * (k - 8))
    aF = T0
    e(f"ds_read_b32 v{aF}, v{ZQ} offset:{L_FLAG}")
    for k in range(16): e(f"ds_read_b128 {vr(dreg(k),4)}, v{aA} offset:{128*(k>>2)+16*(k&3)}")
    e(f"ds_read_b64 {vr(PD,2)}, v{aPA}\nds_read_b32 v{PD+2}, v{aPO} offset:{L_POSD}")
    e(f"s_waitcnt lgkmcnt(14)\nv_readfirstlane_b32 s{s_t0}, v{aF}")
    for k in range(16):
        if k % 4 == 0 and k: e(f"s_waitcnt lgkmcnt({14-k})")
        r = dreg(k)
        e(f"v_cvt_f32_f64 v{r}, {vr(r,2)}\nv_cvt_f32_f64 v{r+1}, {vr(r+2,2)}")
        if k == 0: e(f"s_cmp_lg_u32 s{s_t0}, 0\ns_cbranch_scc1 K_more")
        if k: e(f"v_cvt_pk_bf16_f32 v{HS+k-1}, v{dreg(k-1)}, v{dreg(k-1)+1}")
        if k % 4 == 1 and k > 4: e(mfma(DH, WHM + 4 * (k // 4 - 1), HS + 4 * (k // 4 - 1), DH))
    e(f"v_cvt_pk_bf16_f32 v{HS+15}, v{dreg(15)}, v{dreg(15)+1}")
    e(f"s_waitcnt lgkmcnt(0)\nv_cvt_f32_f64 v{PD}, {vr(PD,2)}")
    e(mfma(DH, WHM + 12, HS + 12, DH))
    e(f"""
    v_add_f32 v{PD}, v{PD}, v{PD+2}
    v_cvt_pk_bf16_f32 v{PD}, v{PD}, v{PD}
    buffer_store_short v{PD}, v{oP}, {sr(sOP,4)}, 0 offen{OF}
    """)
    e("s_nop 7\ns_nop 1")
    X = TMP
    if not dhs:
        for i in range(0, 16, 2): e(f"v_pk_mul_f32 {vr(X+i,2)}, {vr(DH+i,2)}, {sr(sC,2)}")
    for i in range(16): e(f"v_exp_f32 v{X+i}, v{(DH if dhs else X)+i}")
    for i in range(0, 16, 2): e(f"v_pk_add_f32 {vr(X+i,2)}, {vr(X+i,2)}, 1.0 op_sel_hi:[1,0]")
    for i in range(16): e(f"v_rcp_f32 v{X+i}, v{X+i}")
    for hf in range(2):
        if dhs:
            for i in range(8 * hf, 8 * hf + 8, 2): e(f"v_pk_mul_f32 {vr(X+i,2)}, {vr(DH+i,2)}, {vr(X+i,2)}")
            for i in range(8 * hf, 8 * hf + 8, 2): e(f"v_pk_fma_f32 {vr(X+i,2)}, {vr(X+i,2)}, {sr(sC,2)}, {vr(RS+i,2)}")
        else:
            for i in range(8 * hf, 8 * hf + 8, 2): e(f"v_pk_fma_f32 {vr(X+i,2)}, {vr(DH+i,2)}, {vr(X+i,2)}, {vr(RS+i,2)}")
        for i in range(4 * hf, 4 * hf + 4): e(f"v_cvt_pk_bf16_f32 v{HS+i}, v{X+2*i}, v{X+2*i+1}")
        e(f"ds_write_b128 v{aW+hf}, {vr(HS+4*hf,4)}")
    e(f"ds_read_b128 {vr(HS+8,4)}, v{aR}\nds_read_b128 {vr(HS+12,4)}, v{aR} offset:1024")
    spin(2)
    stamp('epi'); rt(25)
    fin(s_b, s_w, 8, sWS, WS_STAMP, T0 + 1)
    e(f"""
    s_waitcnt lgkmcnt(1)
    buffer_store_dwordx4 {vr(HS+8,4)}, v{nd}, {sr(sOUT,4)}, 0 offen{OF}
    s_waitcnt lgkmcnt(0)
    buffer_store_dwordx4 {vr(HS+12,4)}, v{nd2}, {sr(sOUT,4)}, 0 offen offset:2048{OF}
    K_fin:
    """)
    if opt.get('x_pad') == 'fin': e("s_waitcnt vmcnt(0)"); stamp('fin')
    e("K_end:\ns_endpgm")
    e("K_flush:")
    flush(s_nbOld)
    e("s_branch K_flushb")
    for t in tail: e(t)
    e(f"""
    K_reflg:
    s_add_u32 s63, s63, 1
    s_cmp_gt_u32 s63, 0x40000
    s_cbranch_scc1 K_flgok
    buffer_load_dwordx2 {vr(FLV,2)}, v{aFL}, {sr(sWS,4)}, s62 offen{SC}
    s_branch K_flg
    """)
    e("K_repoll:")
    if opt.get('sleep', 4): e(f"s_sleep {opt.get('sleep', 4)}")
    for i in range(2):
        e(f"s_mov_b64 exec, {sr(4+2*i,2)}\nbuffer_load_dwordx2 {vr(OFFV+2*i,2)}, v{tA}, {sr(sWS,4)}, s{16+i} offen{SC}")
    e("s_mov_b64 exec, -1\ns_branch K_poll")
    for t in ovf_blocks: e(t)
    ovf_blocks.clear()
    e(f"K_setflag:\nv_mov_b32 v{tA}, 1\nv_mov_b32 v{tB}, {L_FLAG}\nds_write_b32 v{tB}, v{tA}\ns_waitcnt lgkmcnt(0)\ns_branch K_flagset")
    def zero_hist():
        e(f"""
        v_cmp_gt_u32 vcc, 65, v0
        v_lshlrev_b32 v{tA}, 4, v0
        s_nop 0
        s_mov_b64 exec, vcc
        ds_write_b128 v{tA}, {vr(ZQ,4)} offset:{L_HIST}
        s_mov_b64 exec, -1
        s_waitcnt lgkmcnt(0)
        s_barrier
        """)
    if epos == 1:
        e(f"K_skip:\ns_cmp_lg_u32 s{s_done}, 0\ns_cbranch_scc1 K_wavedone")
        epi_consts()
        e("s_branch K_wavedone")
    e("K_retry:\ns_waitcnt lgkmcnt(0)\ns_barrier")
    zero_hist()
    e(f"s_mov_b32 s{s_take}, 8\ns_mov_b32 s{s_ovf}, 0\ns_add_u32 s{s_t0}, s{s_done}, 8")
    for i in range(2):
        e(f"v_min_u32 v{tB}, s{s_t0}, v{vU+i}\nv_sub_u32 v{tB}, v{tB}, v{vT2D}")
        for u in range(6): e(f"v_cmp_lt_i32 {sr(smask(6*i+u),2)}, {u}, v{tB}")
    e("s_branch K_hist")
    e("K_more:\ns_waitcnt lgkmcnt(0)\ns_barrier")
    zero_hist()
    e(mfma(ACC0, ZQ, ZQ)); e(mfma(ACC1, ZQ, ZQ))
    for r in range(16): e(f"v_mov_b32 v{OH1A+r}, 0")
    e(f"s_add_u32 s{s_done}, s{s_done}, s{s_take}\ns_mov_b32 s{s_take}, 32")
    e.vm = []
    offs_pre(); offs_loads(); rec_pre(); rec_loads(True, 'b')
    e("s_branch K_hist")
    for t in ovf_blocks: e(t)
    s = HEADER + f"; @launch grid=({NW},1,1) block=(512,1,1) lds={LDS}\n"
    s += DOC
    s += '.amdgcn_target "amdgcn-amd-amdhsa--gfx950"\n.text\n' + e.text()
    s += KD.format(name=nm, vgpr=256, acc=256, sgpr=102)
    return s

if __name__ == "__main__":
    opt = {}
    for a in sys.argv[2:]:
        k, _, v = a.partition("="); opt[k] = (int(v) if v.isdigit() else v) if v else 1
    open(sys.argv[1], "w").write(gen(opt))
    if opt.get('stamp'): print(",".join(opt['names']))
```

```python
import sys
from gen import Em, vr, sr, srd, wave_scan, KD, mk_stamp, mfma, HEADER, LOG2E, NLOG2E, LN2

N = 25000; E = 800000; NPB = 98; NW = 256; CH = 3128; NQ = CH // 4
RECB = 15744; DOFF = 12544
WS_REC = 0; WS_OFF = 0x620000; WS_POS = 0x6A0000; WS_TOK = 0x710000; WS_FLG = 0x720000; WS_B = 0x800000; WS_SZ = 0xC00000; WS_STAMP = 0x780000
CAP = 3584
L_REC = 0; L_H1 = 25088; L_B1 = 26112
L_POSD = 29184; L_OHT = 31232; L_HIST = 31392; L_BASE = 31904; L_FLAG = 32416; L_WDA = 32448
L_MM = 33664; L_ACC = 50048; L_PACC = 105488; L_ATAB = 108848; L_STG = 127360; LDS = 160128
L_W = L_ACC
ACS = 528; ATS = 144
ID = 2; SCR = 10; DH = 34; WHM = 50; HR = 66; ACC0 = 74; ACC1 = 90; PRE0 = 106; PRE1 = 122; TMP = 138; MR = 154
HS = 162; AW = 178; OH1A = 186; OH1B = 190; OH2 = 194; IDX = 202; ZQ = 210; RW = 214; PS = 216; vPI = 219
PD = 220; WP = 224; vMA = 226; vRA = 227; vTA = 228; cRA = 229; cTA = 230; cHS = 231; cM = 235; cMW = 237
vAWA = 238; cAW = 239; cF = 240; cP = 241; wx0 = 242; wx1 = 243; vMX = 244; T0 = 245; vST = 255
sDST = 28; sSRC = 32; sEA = 36; sWS = 40; sH = 44; sPF = 48; sOUT = 52; sOP = 56; sDBG = 60
sWE = 64; sWH = 68; sPOS = 72; sWX = 76; sM0 = 80; sM1 = 82; sMASK = 4
s_w = 3; s_b = 84; s_nb0 = 85; s_rb = 86; s_cb = 87; s_stg = 88; s_t0 = 89; s_t1 = 90; s_t2 = 91
sC = 92; sLO = 94; sQ = 96; s_done = 98; s_take = 99; s_T = 100; s_c = 101
s_p = 64; s_pn = 65; s_end = 66; s_p8 = 67; s_lim = 68; s_nbN = 69; s_nbCur = 70; s_nbOld = 71
s_flN = 72; s_flush = 73; s_cntN = 74; s_cntCur = 75; s_need = 76; s_mkB = 77; sMK = 78; sMV = 80; s_o = 36; s_dbg = 82; L_TOK = L_FLAG + 16; L_BST = L_STG + 16384

DOC = '''; One launch, 256 co-resident workgroups (one per CU, 8 waves each).  Workgroup c
;     together with B = -log2(e) * h[bin] @ w_e[64:128] (bf16) and fp32 positions of its own bin;
;  2. hands over through tagged rows in d_ws (the tag is the word the previous launch left there + 1,
;     published through d_debug; it only tells this launch's rows from older ones);
;     silu on the VALU, segment sums of m and diff*m by MFMA over a sliding 8-node window, f64 LDS accumulators;
'''
NLN2 = LN2 | 0x80000000
s_rem = 83

def gen(opt):
    opt.setdefault('pfp', 1); opt.setdefault('pfb', 0); opt.setdefault('sleep', 0); opt.setdefault('cpf', 21)
    fold = opt.get('fold', 1)
    dhs = fold and opt.get('dhs', 0)
    pair = fold and opt.get('pair', 0)
    assert not (pair and dhs)
    import struct as _st
    KSC = 0x21800000
    NLN2 = globals()['NLN2'] if not pair else _st.unpack('<I', _st.pack('<f', -0.6931471805599453 * 2.0 ** -60))[0]
    ordr = opt.get('ord', 1)
    FL = {0: "", 1: " nt", 2: " sc1", 3: " sc1 nt", 4: " sc0 sc1 nt", 5: " sc0 sc1"}
    EN = FL[opt.get('en', 3)]; ON = FL[opt.get('on', 3)]; RN = FL[opt.get('rn', 2)]; SN = FL[opt.get('sn', 2)]; BN = FL[opt.get('bn', 2)]
    SC = " sc1"
    OF = {0: "", 1: " sc1", 2: " nt", 3: " sc0 sc1", 4: " sc1 nt", 5: " sc0 sc1 nt"}[opt.get("of", 5)]
    e = Em(); nm = "standalone__cheap_equivariant_egnn__graph_kernel"
    stamp, real, fin = mk_stamp(e, opt, vST)
    e(f".globl {nm}\n.p2align 8\n.type {nm},@function\n{nm}:")
    cpf = ""
    if opt.get('cpf', 0):
        n2 = opt.get('cpf')
        cpf = f"s_getpc_b64 s[26:27]\nv_lshlrev_b32 v{HS}, 7, v1\nv_add_u32 v{HS+1}, 0x2000, v{HS}\nglobal_load_dword v{HS+2}, v{HS}, s[26:27] offset:512\n"
        cpf += f"s_mov_b64 exec, {hex((1 << n2) - 1)}\nglobal_load_dword v{HS+3}, v{HS+1}, s[26:27] offset:512\ns_mov_b64 exec, -1"
    o8 = T0 + 4; t8 = T0 + 5
    rho = PD; hb = PD + 1; f3 = PD + 2; r4 = PD + 3; slot = WP; g1 = WP + 1; c4 = RW; tq = RW + 1
    cp2 = opt.get('cp2', 12)
    GN = EN
    e(f"""
    s_cmpk_ge_u32 s2, {NW}
    s_cbranch_scc1 K_end
    s_load_dwordx16 s[4:19], s[0:1], 0
    s_getpc_b64 s[26:27]
    v_lshrrev_b32 v{T0+2}, 6, v0
    v_and_b32 v1, 63, v0
    v_mad_u32_u24 v{HS}, v{T0+2}, {cp2}, v1
    v_lshlrev_b32 v{HS}, 7, v{HS}
    s_bfm_b64 exec, {cp2}, 0
    global_load_dword v{HS+1}, v{HS}, s[26:27]
    s_mov_b64 exec, -1
    s_load_dwordx4 s[20:23], s[0:1], 64
    s_load_dwordx2 s[24:25], s[0:1], 80
    s_mul_i32 s{s_t0}, s2, {NQ}
    v_add_u32 v{T0}, s{s_t0}, v0
    v_lshlrev_b32 v{ID}, 4, v{T0}
    v_lshlrev_b32 v{ID+2}, 3, v{T0}
    s_waitcnt lgkmcnt(0)
    """)
    fs = opt.get('fs', 0)
    e.v('dst', f"global_load_dwordx4 {vr(106,4)}, v{ID}, s[12:13]{GN}")
    if fs:
        e.v('dst', f"global_load_dwordx4 {vr(110,4)}, v{ID}, s[10:11]{GN}")
        e.v('dst', f"global_load_dwordx2 {vr(114,2)}, v{ID+2}, s[8:9]{GN}")
    e(f"""
    v_add_u32 v{T0+1}, 0x200, v{T0}
    s_mov_b32 s{s_c}, {E//4}
    v_cmp_gt_u32 {sr(sM1,2)}, s{s_c}, v{T0+1}
    v_cmp_gt_u32 vcc, {NQ-512}, v0
    v_lshlrev_b32 v{ID+1}, 4, v{T0+1}
    v_readfirstlane_b32 s{s_w}, v{T0+2}
    s_and_b64 {sr(sM1,2)}, {sr(sM1,2)}, vcc
    """)
    srd(e, sDST, 12, 13, E * 4)
    e(f"s_mov_b64 exec, {sr(sM1,2)}")
    e.v('dst', f"buffer_load_dwordx4 {vr(116,4)}, v{ID+1}, {sr(sDST,4)}, 0 offen{EN}")
    e(f"""
    s_mov_b64 exec, -1
    v_mov_b32 v{ZQ}, 0
    v_cmp_gt_u32 {sr(sM0,2)}, s{s_c}, v{T0}
    s_mov_b32 s{s_c}, s2
    s_and_b32 s{s_b}, s2, 7
    s_lshl_b32 s{s_b}, s{s_b}, 5
    s_lshr_b32 s{s_t0}, s2, 3
    s_add_u32 s{s_b}, s{s_b}, s{s_t0}
    s_mul_i32 s{s_nb0}, s{s_b}, {NPB}
    s_lshr_b32 s{s_rb}, s{s_w}, 1
    s_and_b32 s{s_cb}, s{s_w}, 1
    v_lshlrev_b32 v{ID+3}, 3, v{T0+1}
    v_lshrrev_b32 v{o8}, 3, v1
    v_and_b32 v{t8}, 7, v1
    v_mov_b32 v{ZQ+1}, 0
    v_mov_b32 v{ZQ+2}, 0
    v_mov_b32 v{ZQ+3}, 0
    v_lshlrev_b32 v{tq}, 4, v0
    s_cmp_lg_u32 s{s_w}, 7
    s_cbranch_scc1 K_nh1
    ds_write_b128 v{tq}, {vr(ZQ,4)} offset:{L_H1-7*1024}
    K_nh1:
    """)
    def spin(tag):
        if opt.get('x_spin') == tag:
            e(f"""
            s_memtime s[0:1]
            s_waitcnt lgkmcnt(0)
            s_add_u32 s2, s0, 20000
            KX_spin:
            s_memtime s[0:1]
            s_waitcnt lgkmcnt(0)
            s_sub_u32 s0, s0, s2
            s_cmp_lt_i32 s0, 0
            s_cbranch_scc1 KX_spin
            """)
    stamp0 = stamp
    def stamp(name):
        stamp0(name)
        if opt.get('x_pad') == name:
            e(f"""
            KX_pad:
            s_memrealtime s[0:1]
            s_waitcnt lgkmcnt(0)
            s_sub_u32 s0, s0, s2
            s_cmp_lt_u32 s0, 5000
            s_cbranch_scc1 KX_pad
            """)
    assert not opt.get('x_pad')
    spin(1)
    real(); stamp('start')
    def rt(lane):
        if opt.get('stamp'): e(f"s_memrealtime s[0:1]\ns_waitcnt lgkmcnt(0)\nv_writelane_b32 v{vST}, s0, {lane}")


    D0, S0, E0, D1, S1, E1 = 106, 110, 114, 116, 120, 124
    REC1 = 126; HA = 142; RK = 150; SCN = 158; PO = OH2; TK = OH1A; RWV = SCR + 16
    vRO = 251; vBG = 252; vBW = 253; nd = vBG; nd2 = 254
    sHR = sH; sBS = sPOS
    HA4 = AW; vONE = PS + 1; vL16 = PS + 2
    aE = ID
    HO = [HR, HR + 4, ACC1, ACC1 + 4]
    def rd(tag, dst, off):
        for s_ in range(4):
            for t in range(2): e.d(tag, f"ds_read_b64_tr_b16 {vr(dst+4*s_+2*t,2)}, v{T0+1+(s_>>1)} offset:{off+1024*(s_&1)+512*t}")
    def mm(d, a):
        for s_ in range(4): e(mfma(d, a + 4 * s_, HO[s_], None if s_ == 0 else d))
    def scale_pack(src):
        if fold:
            for r in range(16): e(f"v_mul_f32 v{src+r}, s7, v{src+r}")
        for r in range(8): e(f"v_cvt_pk_bf16_f32 v{AW+r}, v{src+2*r}, v{src+2*r+1}")
    srd(e, sWS, 24, 25, WS_SZ)
    e(f"""
    s_lshl_b32 s{s_t0}, s{s_c}, 3
    s_add_u32 s{s_t0}, s{s_t0}, s{s_w}
    s_cmp_eq_u32 s{s_t0}, 5
    s_cselect_b64 {sr(26,2)}, 1, 0
    s_mov_b32 s{s_t2}, {WS_TOK}
    s_mov_b64 exec, {sr(26,2)}
    """)
    e.v('dst', f"buffer_load_dwordx2 {vr(TK,2)}, v{ZQ}, {sr(sWS,4)}, s{s_t2} offen{SC}")
    e("s_mov_b64 exec, -1")
    srd(e, sHR, 4, 5, N, stride=128); srd(e, sWE, 14, 15, 130 * 128)
    e(f"""
    s_lshl_b32 s12, s{s_w}, 11
    s_lshl_b32 s13, s{s_w}, 10
    s_mov_b32 s14, 8192
    s_lshl_b32 s{s_t0}, s{s_w}, 4
    s_add_u32 s{s_t0}, s{s_t0}, s{s_nb0}
    v_lshrrev_b32 v{vPI}, 4, v1
    v_xor_b32 v{vPI}, v{t8}, v{vPI}
    v_lshlrev_b32 v{IDX+1}, 4, v{vPI}
    v_add_u32 v{IDX}, s{s_t0}, v{o8}
    v_xor_b32 v{IDX+3}, 64, v{IDX+1}
    v_add_u32 v{IDX+2}, 8, v{IDX}
    v_mov_b32 v{IDX+5}, v{IDX+1}
    """)
    if opt.get('own98', 1):
        e(f"""
        s_add_u32 s{s_t0}, s{s_nb0}, {NPB}
        v_cmp_gt_u32 vcc, s{s_t0}, v{IDX}
        v_cmp_gt_u32 {sr(0,2)}, s{s_t0}, v{IDX+2}
        v_mov_b32 v{vPI}, 0x100000
        v_cndmask_b32 v{IDX}, v{vPI}, v{IDX}, vcc
        v_cndmask_b32 v{IDX+2}, v{vPI}, v{IDX+2}, {sr(0,2)}
        """)
    def own_loads():
        e(f"s_add_u32 m0, s12, {L_STG}\ns_nop 0")
        e.v('own', f"buffer_load_dwordx4 {vr(IDX,2)}, {sr(sHR,4)}, 0 idxen offen{ON} lds")
        e(f"s_add_u32 m0, s12, {L_STG+1024}\ns_nop 0")
        e.v('own', f"buffer_load_dwordx4 {vr(IDX+2,2)}, {sr(sHR,4)}, 0 idxen offen{ON} lds")
        e(f"s_add_u32 m0, s13, {L_W+8192}\ns_nop 0")
        e.v('own', f"buffer_load_dwordx4 v{tq}, {sr(sWE,4)}, s14 offen lds")
    oe = opt.get('oe', 1)
    if not ordr or oe in (1, 2): own_loads()
    def src_loads():
        if not fs:
            e.v('src', f"buffer_load_dwordx4 {vr(S0,4)}, v{aE}, {sr(sSRC,4)}, 0 offen{EN}")
            e.v('src', f"buffer_load_dwordx2 {vr(E0,2)}, v{aE+2}, {sr(sEA,4)}, 0 offen{EN}")
        e(f"s_mov_b64 exec, {sr(sM1,2)}")
        e.v('src', f"buffer_load_dwordx4 {vr(S1,4)}, v{aE+1}, {sr(sSRC,4)}, 0 offen{EN}")
        e.v('src', f"buffer_load_dwordx2 {vr(E1,2)}, v{aE+3}, {sr(sEA,4)}, 0 offen{EN}")
        e(f"s_cmp_ge_u32 s{s_w}, 6\ns_cselect_b64 exec, -1, 0")
        for k in range(3): e.v('src', f"buffer_load_ushort v{PO+k}, v{PO+6}, {sr(sPOS,4)}, 0 offen offset:{2*k}")
        e(f"s_cmp_eq_u32 s{s_w}, 5\ns_cselect_b64 exec, -1, 0\ns_mov_b32 s{s_t0}, 16384")
        for k in range(2): e.v('src', f"buffer_load_ushort v{PO+k}, v{PO+7}, {sr(sWE,4)}, s{s_t0} offen offset:{128*k}")
        e("s_mov_b64 exec, -1")
    stamp('iss')
    srd(e, sSRC, 10, 11, E * 4); srd(e, sEA, 8, 9, E * 2)
    srd(e, sPOS, 6, 7, N * 6); srd(e, sDBG, 22, 23, 256)
    e(f"""
    v_mov_b32 v{IDX+7}, v{IDX+3}
    v_and_b32 v{rho}, 31, v1
    v_lshrrev_b32 v{hb}, 5, v1
    v_bfe_u32 v{f3}, v1, 1, 3
    v_bfe_u32 v{r4}, v1, 2, 2
    v_bfe_u32 v{g1}, v1, 4, 1
    v_and_b32 v{c4}, 3, v1
    v_subrev_u32 v{PO+5}, 0x180, v0
    v_add_u32 v{PO+4}, s{s_nb0}, v{PO+5}
    v_mul_u32_u24 v{PO+6}, 6, v{PO+4}
    v_lshlrev_b32 v{PO+7}, 1, v1
    v_cmp_gt_u32 vcc, 152, v0
    ds_write_b128 v{tq}, {vr(ZQ,4)} offset:{L_OHT}
    ds_write_b128 v{tq}, {vr(ZQ,4)} offset:{L_OHT+8192}
    s_mov_b64 exec, vcc
    ds_write_b128 v{tq}, {vr(ZQ,4)} offset:{L_OHT+16384}
    s_mov_b64 exec, -1
    """)
    if ordr and oe != 1: src_loads()
    if oe == 3: own_loads()
    srd(e, sWH, 18, 19, 128 * 128); srd(e, sWX, 16, 17, 128)
    srd(e, sPF, 24, 25, N + 216, add=WS_POS, stride=16)
    srd(e, sOUT, 20, 21, N * 128); srd(e, sOP, 20, 21, N * 6, add=N * 128)
    if opt.get('tlb'):
        a = HS + 12
        e(f"""
        v_mov_b32 v{a}, 0
        s_lshl_b32 s{s_t1}, s{s_nb0}, 7
        s_cmp_lg_u32 s{s_w}, 6
        s_cbranch_scc1 K_notlb
        s_mul_i32 s{s_t0}, s{s_c}, {RECB}
        v_mov_b32 v{a}, s{s_t0}
        s_lshl_b32 s{s_t0}, s{s_c}, 11
        s_add_u32 s{s_t0}, s{s_t0}, {WS_OFF}
        v_writelane_b32 v{a}, s{s_t0}, 1
        s_add_u32 s{s_t0}, s{s_t1}, {WS_B}
        v_writelane_b32 v{a}, s{s_t0}, 2
        s_lshl_b32 s{s_t0}, s{s_c}, 7
        s_add_u32 s{s_t0}, s{s_t0}, {WS_FLG}
        v_writelane_b32 v{a}, s{s_t0}, 3
        K_notlb:
        s_cmp_eq_u32 s{s_w}, 6
        s_cselect_b64 exec, 15, 0
        """)
        e.v('tlb', f"buffer_load_dword v{a+1}, v{a}, {sr(sWS,4)}, 0 offen")
        e("s_cselect_b64 exec, 1, 0")
        e.v('tlb', f"buffer_load_dword v{a+2}, v{ZQ}, {sr(sOUT,4)}, s{s_t1} offen")
        e.v('tlb', f"buffer_load_ushort v{a+3}, v{ZQ}, {sr(sOP,4)}, 0 offen")
        e("s_mov_b64 exec, -1")
    e(f"""
    s_mov_b32 s4, 42800
    s_mov_b32 s5, -98
    s_mov_b32 s6, 0xffff0000
    s_mov_b32 s7, {NLOG2E}
    s_mul_i32 s8, s{s_c}, {RECB}
    s_add_u32 s9, s8, 8192
    v_mov_b32 v{vONE}, 1
    v_lshlrev_b32 v{vL16}, 4, v1
    v_lshl_or_b32 v{slot}, v{g1}, 2, v{c4}
    v_lshl_or_b32 v{T0}, v{hb}, 3, v{r4}
    v_lshlrev_b32 v{T0}, 7, v{T0}
    v_and_b32 v{T0+1}, 1, v{c4}
    v_lshrrev_b32 v{T0+2}, 1, v{c4}
    v_lshlrev_b32 v{T0+1}, 5, v{T0+1}
    v_lshl_or_b32 v{T0+1}, v{g1}, 4, v{T0+1}
    v_lshl_or_b32 v{T0+1}, v{T0+2}, 3, v{T0+1}
    s_lshl_b32 s{s_t0}, s{s_cb}, 6
    s_add_u32 s{s_t0}, s{s_t0}, {L_W}
    v_add3_u32 v{T0+3}, v{T0}, v{T0+1}, s{s_t0}
    v_lshl_add_u32 v{T0+1}, v{hb}, 10, v{T0+3}
    s_lshl_b32 s{s_t0}, s{s_cb}, 12
    s_xor_b32 s{s_t1}, s{s_t0}, 4096
    v_add_u32 v{T0+2}, s{s_t1}, v{T0+1}
    v_add_u32 v{T0+1}, s{s_t0}, v{T0+1}
    s_lshl_b32 s{s_t0}, s{s_rb}, 12
    s_add_u32 s{s_t1}, s{s_t0}, {L_STG}
    v_lshl_add_u32 v{HA4+5}, v{rho}, 7, s{s_t1}
    s_lshl_b32 s{s_t1}, s{s_cb}, 2
    v_lshlrev_b32 v{HA4+4}, 1, v{hb}
    v_xor_b32 v{HA4+4}, s{s_t1}, v{HA4+4}
    v_xor_b32 v{HA4+4}, v{HA4+4}, v{f3}
    """)
    for s_ in range(4):
        k = 4 * (s_ >> 1) + (s_ & 1)
        e(f"v_xor_b32 v{HA4+s_}, {k}, v{HA4+4}\nv_lshl_add_u32 v{HA4+s_}, v{HA4+s_}, 4, v{HA4+5}")
    e(f"""
    s_add_u32 s{s_t1}, s12, {L_BST}
    v_and_b32 v{T0}, 3, v{f3}
    v_lshlrev_b32 v{vBW}, 1, v{hb}
    v_xor_b32 v{vBW}, v{vBW}, v{T0}
    v_lshlrev_b32 v{vBW}, 4, v{vBW}
    v_lshl_add_u32 v{vBW}, v{rho}, 6, v{vBW}
    v_add_u32 v{vBW}, s{s_t1}, v{vBW}
    v_add_u32 v{ID+5}, s{s_t1}, v{vL16}
    s_lshl_b32 s{s_t0}, s{s_rb}, 5
    v_lshrrev_b32 v{T0}, 2, v1
    v_add_u32 v{T0}, s{s_t0}, v{T0}
    v_cmp_gt_u32 vcc, {NPB}, v{T0}
    s_movk_i32 s{s_t1}, {NPB-16}
    v_cmp_gt_u32 {sr(18,2)}, s{s_t1}, v{T0}
    v_add_u32 v{T0}, s{s_nb0}, v{T0}
    v_xor_b32 v{vBG}, v{o8}, v1
    v_and_b32 v{vBG}, 3, v{vBG}
    v_lshlrev_b32 v{T0}, 7, v{T0}
    v_lshl_add_u32 v{T0}, v{vBG}, 4, v{T0}
    s_lshl_b32 s{s_t1}, s{s_cb}, 6
    v_add_u32 v{T0}, s{s_t1}, v{T0}
    v_mov_b32 v{vPI}, 0x1000000
    v_cndmask_b32 v{vBG}, v{vPI}, v{T0}, vcc
    v_cndmask_b32 v{nd2}, v{vPI}, v{T0}, {sr(18,2)}
    v_cmp_gt_u32 vcc, 468, v0
    v_lshlrev_b32 v{vRO}, 5, v1
    s_lshl_b32 s15, s{s_c}, 11
    s_add_u32 s15, s15, {WS_OFF}
    v_cndmask_b32 v{vPI}, v{vPI}, v{tq}, vcc
    v_lshlrev_b32 v{ID+4}, 1, v{rho}
    """)
    srcpos = opt.get('srcpos', 1) if (not ordr or oe == 1) else -1
    e("s_waitcnt lgkmcnt(0)\ns_barrier")
    stamp('Ba')
    e.wvm('dst')
    stamp('dst')
    if srcpos == 1: src_loads()
    e(f"""
    s_mov_b64 exec, {sr(26,2)}
    s_cbranch_execz K_notok
    v_add_u32 v{TK}, 1, v{TK}
    v_add_u32 v{TK+1}, 1, v{TK+1}
    v_mov_b32 v{TK+4}, v{TK}
    v_lshl_or_b32 v{TK+5}, v{TK+1}, 24, 1
    buffer_store_dwordx2 {vr(TK+4,2)}, v{ZQ}, {sr(sDBG,4)}, 0 offen{SC}
    buffer_store_dwordx2 {vr(TK,2)}, v{ZQ}, {sr(sWS,4)}, s{s_t2} offen{SC}
    K_notok:
    """)
    for r, D in enumerate((D0, D1)):
        if r: e(f"s_mov_b64 exec, {sr(sM1,2)}\ns_cbranch_execz K_h1")
        else: e(f"s_mov_b64 exec, {sr(sM0,2)}")
        for k in range(4): e(f"v_mul_u32_u24 v{HA+4*r+k}, s4, v{D+k}")
        for k in range(4): e(f"v_lshrrev_b32 v{HA+4*r+k}, 22, v{HA+4*r+k}")
        for k in range(4): e(f"v_mad_i32_i24 v{REC1+8*r+2*k+1}, v{HA+4*r+k}, s5, v{D+k}")
        for k in range(4): e(f"v_lshlrev_b32 v{HA+4*r+k}, 2, v{HA+4*r+k}")
        for k in range(4): e(f"ds_add_rtn_u32 v{RK+4*r+k}, v{HA+4*r+k}, v{vONE} offset:{L_H1}")
    e("K_h1:\ns_mov_b64 exec, -1")
    if srcpos == 2: src_loads()
    def w1_loads():
        e(f"s_add_u32 m0, s13, {L_W}\ns_nop 0")
        e.v('w1', f"buffer_load_dwordx4 v{tq}, {sr(sWE,4)}, 0 offen lds")
        e.v('w1', f"buffer_load_ushort v{wx0}, v{ID+4}, {sr(sWX,4)}, 0 offen")
        e.v('w1', f"buffer_load_ushort v{wx1}, v{ID+4}, {sr(sWX,4)}, 0 offen offset:64")
    def wh_loads():
        if ordr != 4: tok_load()
        e(f"s_add_u32 m0, s12, {L_W+16384}\ns_nop 0")
        e.v('wh', f"buffer_load_dwordx4 v{vL16}, {sr(sWH,4)}, s12 offen lds")
        e.v('wh', f"buffer_load_dwordx4 v{vL16}, {sr(sWH,4)}, s12 offen offset:1024 lds")
    def tok_load():
        e(f"s_cmp_eq_u32 s{s_w}, 4\ns_cselect_b64 exec, -1, 0")
        e.v('tok', f"buffer_load_dwordx2 {vr(TK,2)}, v{ZQ}, {sr(sDBG,4)}, 0 offen{SC}")
        e("s_mov_b64 exec, -1")
    def b_reads():
        for s_ in range(4): e.d('ho', f"ds_read_b128 {vr(HO[s_],4)}, v{HA4+s_}")
        rd('w2', SCR, 8192)
    def b_out(pre):
        scale_pack(ACC0)
        e(f"ds_write_b128 v{vBW}, {vr(AW,4)}\nds_write_b128 v{T0}, {vr(AW+4,4)}")
        e(f"ds_read_b128 {vr(ACC0,4)}, v{ID+5}\nds_read_b128 {vr(ACC0+4,4)}, v{ID+5} offset:1024")
        pre()
        srd(e, sBS, 24, 25, N * 128, add=WS_B)
        e("s_waitcnt lgkmcnt(1)")
        e.v('bst', f"buffer_store_dwordx4 {vr(ACC0,4)}, v{nd}, {sr(sBS,4)}, 0 offen{BN}")
        e("s_waitcnt lgkmcnt(0)")
        e.v('bst', f"buffer_store_dwordx4 {vr(ACC0+4,4)}, v{nd2}, {sr(sBS,4)}, 0 offen offset:2048{BN}")
        e.ds = []
    if not ordr: e.wvm('own')
    e("s_waitcnt lgkmcnt(0)\ns_barrier")
    e.ds = []
    stamp('Bb')
    e.d('h', f"ds_read_b128 {vr(SCN,4)}, v{vL16} offset:{L_H1}")
    late = ordr == 4
    if not late and not oe: own_loads()
    e.wds('h')
    e(f"""
    v_add_u32 v{SCN+4}, v{SCN}, v{SCN+1}
    v_add_u32 v{SCN+5}, v{SCN+4}, v{SCN+2}
    v_add_u32 v{SCN+6}, v{SCN+5}, v{SCN+3}
    v_mov_b32 v{SCN+7}, v{SCN+6}
    """)
    wave_scan(e, SCN + 7)
    e(f"""
    v_sub_u32 v{SCN+8}, v{SCN+7}, v{SCN+6}
    v_add_u32 v{SCN+9}, v{SCN+8}, v{SCN}
    v_add_u32 v{SCN+10}, v{SCN+8}, v{SCN+4}
    v_add_u32 v{SCN+11}, v{SCN+8}, v{SCN+5}
    """)
    e.d('bw', f"ds_write_b128 v{vL16}, {vr(SCN+8,4)} offset:{L_B1}")
    e(f"s_mov_b64 exec, {sr(sM0,2)}")
    for k in range(4): e.d('b0', f"ds_read_b32 v{HA+k}, v{HA+k} offset:{L_B1}")
    e(f"s_mov_b64 exec, {sr(sM1,2)}")
    for k in range(4, 8): e.d('b1', f"ds_read_b32 v{HA+k}, v{HA+k} offset:{L_B1}")
    e("s_mov_b64 exec, -1")
    if not ordr:
        e.wds('w2')
        mm(ACC0, SCR)
    def rec_words():
        for r, (S, EE) in enumerate(((S0, E0), (S1, E1))):
            e(f"""
            v_lshl_or_b32 v{REC1+8*r}, v{EE}, 16, v{S}
            v_and_or_b32 v{REC1+8*r+2}, v{EE}, s6, v{S+1}
            v_lshl_or_b32 v{REC1+8*r+4}, v{EE+1}, 16, v{S+2}
            v_and_or_b32 v{REC1+8*r+6}, v{EE+1}, s6, v{S+3}
            """)
    if ordr:
        e.wvm('src'); rec_words()
    e.wds('b1')
    for k in range(8): e(f"v_add_u32 v{HA+k}, v{HA+k}, v{RK+k}")
    e(f"s_mov_b64 exec, {sr(sM0,2)}")
    for k in range(4): e(f"ds_write_b8 v{HA+k}, v{REC1+2*k+1} offset:{L_REC+DOFF}")
    e(f"s_mov_b64 exec, {sr(sM1,2)}")
    for k in range(4, 8): e(f"ds_write_b8 v{HA+k}, v{REC1+2*k+1} offset:{L_REC+DOFF}")
    e(f"s_mov_b64 exec, -1\nv_xor_b32 v{T0}, 16, v{vBW}")
    for k in range(8): e(f"v_lshlrev_b32 v{HA+k}, 2, v{HA+k}")
    if not ordr: b_out(wh_loads)
    stamp('scan')
    if not ordr:
        e.wvm('src'); rec_words()
    stamp('src')
    for r in range(2):
        e(f"s_mov_b64 exec, {sr(sM0 if r == 0 else sM1,2)}")
        for k in range(4 * r, 4 * r + 4): e(f"ds_write_b32 v{HA+k}, v{REC1+2*k} offset:{L_REC}")
    e("s_mov_b64 exec, -1")
    e(f"""
    s_cmp_lt_u32 s{s_w}, 6
    s_cbranch_scc1 K_nopf
    s_mov_b32 s{s_t0}, {N}
    v_cmp_gt_u32 vcc, {NPB}, v{PO+5}
    v_cmp_gt_u32 {sr(16,2)}, s{s_t0}, v{PO+4}
    v_lshlrev_b32 v{PO}, 16, v{PO}
    v_lshlrev_b32 v{PO+1}, 16, v{PO+1}
    v_lshlrev_b32 v{PO+2}, 16, v{PO+2}
    v_mov_b32 v{PO+3}, 0
    v_lshlrev_b32 v{PO+5}, 4, v{PO+5}
    ds_write_b128 v{PO+5}, {vr(PO,4)} offset:{L_POSD}
    s_and_b64 {sr(16,2)}, {sr(16,2)}, vcc
    K_nopf:
    """)
    nobx = opt.get('nobx', 0)
    if late: tok_load()
    elif ordr == 1:
        w1_loads(); wh_loads()
        if 'own' in e.vm: e.wvm('own')
    elif ordr == 2:
        w1_loads(); wh_loads()
    else: e.wvm('wh' if nobx else 'w1')
    e("s_waitcnt lgkmcnt(0)\ns_barrier")
    e.ds = []
    stamp('Bc')
    for r in range(2): e.d(f'c{r}', f"ds_read_b128 {vr(PRE0+4*r,4)}, v{tq} offset:{L_REC+8192*r}")
    if ordr == 1: b_reads()
    if not ordr: rd('w1', SCR, 0)
    for r in range(2):
        e.wds(f'c{r}')
        e.v('st', f"buffer_store_dwordx4 {vr(PRE0+4*r,4)}, v{tq if r < 1 else vPI}, {sr(sWS,4)}, s{8+r} offen{SN}")
    def posf_store():
        e(f"s_cmp_ge_u32 s{s_w}, 6\ns_cselect_b64 exec, {sr(16,2)}, 0")
        e.v('bst', f"buffer_store_dwordx4 {vr(PO,4)}, v{PO+4}, {sr(sPF,4)}, 0 idxen{SC}")
        e("s_mov_b64 exec, -1")
    def row_prep():
        e(f"""
        s_cmp_lg_u32 s{s_w}, 4
        s_cbranch_scc1 K_row_done
        s_mov_b32 s{s_t0}, 0
        K_tk:
        v_readfirstlane_b32 s{s_t1}, v{TK+1}
        s_add_u32 s{s_t0}, s{s_t0}, 1
        s_cmp_gt_u32 s{s_t0}, 0x40000
        s_cbranch_scc1 K_tkok
        s_bitcmp1_b32 s{s_t1}, 0
        s_cbranch_scc1 K_tkok
        buffer_load_dwordx2 {vr(TK,2)}, v{ZQ}, {sr(sDBG,4)}, 0 offen{SC}
        s_waitcnt vmcnt(0)
        s_branch K_tk
        K_tkok:
        v_and_b32 v{TK+1}, 0xff000000, v{TK+1}
        v_mov_b32 v{TK+2}, {L_TOK}
        ds_write_b64 v{TK+2}, {vr(TK,2)}
        """)
        for k in range(4):
            e(f"v_lshl_or_b32 v{RWV+2*k}, v{SCN+k}, 12, v{SCN+8+k}\nv_mov_b32 v{RWV+2*k+1}, v{TK}\nv_or_b32 v{RWV+2*k}, v{RWV+2*k}, v{TK+1}")

        e("K_row_done:")
    def row_store():
        e(f"s_cmp_eq_u32 s{s_w}, 4\ns_cselect_b64 exec, -1, 0")
        e.v('row', f"buffer_store_dwordx4 {vr(RWV,4)}, v{vRO}, {sr(sWS,4)}, s15 offen{SC}")
        e.v('row', f"buffer_store_dwordx4 {vr(RWV+4,4)}, v{vRO}, {sr(sWS,4)}, s15 offen offset:16{SC}")
        e("s_mov_b64 exec, -1")
    if not late:
        posf_store()
        e.wds('w2')
        mm(ACC0, SCR)
        e.wvm('wh')
        e("s_nop 6")
        row_prep()
        e("s_nop 2")
        b_out(lambda: None)
        stamp('Bx')
        e.wvm('st')
        e("s_barrier")
        stamp('Bd'); rt(27)
        row_store()
        nrow = 2
    else:
        own_loads(); posf_store(); w1_loads(); wh_loads()
        sv = list(e.vm); e.wvm('tok'); e.vm = sv
        row_prep()
        stamp('Bx')
        e.wvm('st')
        e("s_waitcnt lgkmcnt(0)\ns_barrier")
        stamp('Bd'); rt(27)
        row_store()
        e.wvm('wh')
        e("s_barrier")
        b_reads()
        e.wds('w2')
        mm(ACC0, SCR)
        rd('w1', SCR, 0)
        e("s_nop 4")
        b_out(lambda: None)
        nrow = 0
    e.d('tk', f"ds_read_b64 {vr(TK,2)}, v{ZQ} offset:{L_TOK}")
    if not late: rd('w1', SCR, 0)
    e.wds0()
    mm(ACC0, SCR)
    e(f"v_readfirstlane_b32 s60, v{TK}\nv_readfirstlane_b32 s61, v{TK+1}")
    srd(e, sH, 24, 25, N, add=WS_B - 3072, stride=128)
    e(f"""
    s_lshl_b32 s{s_t0}, s{s_rb}, 5
    v_add_u32 v{PS}, s{s_t0}, v{rho}
    v_mul_u32_u24 v{PS}, {ATS}, v{PS}
    s_lshl_b32 s{s_t0}, s{s_cb}, 6
    s_add_u32 s{s_t0}, s{s_t0}, {L_ATAB}
    v_lshl_add_u32 v{PS}, v{hb}, 5, v{PS}
    v_add_u32 v{PS}, s{s_t0}, v{PS}
    """)
    rd('wh', TMP, 16384)
    for s_ in range(4):
        for t in range(2): e.d('wm', f"ds_read_b64_tr_b16 {vr(WHM+4*s_+2*t,2)}, v{T0+3} offset:{24576+2048*s_+512*t}")
    scale_pack(ACC0)
    e.wds('wh')
    mm(DH, TMP)
    e(f"ds_write_b128 v{PS}, {vr(AW,4)}\nds_write_b128 v{PS}, {vr(AW+4,4)} offset:16")
    e(mfma(ACC0, ZQ, ZQ)); e(mfma(ACC1, ZQ, ZQ))
    e(f"""
    s_cmp_eq_u32 s{s_w}, 5
    s_cbranch_scc1 K_side5
    s_cmp_lg_u32 s{s_w}, 4
    s_cbranch_scc1 K_side_done
    v_mul_u32_u24 v{PO}, 18, v1
    v_mov_b32 v{PO+1}, 0x3f80
    s_mov_b64 exec, 0xff
    ds_write_b16 v{PO}, v{PO+1} offset:{L_OHT}
    s_mov_b64 exec, -1
    """)
    e("s_branch K_side_done\nK_side5:")
    if not fold:
        e(f"ds_write_b16 v{PO+7}, v{PO} offset:{L_WDA}\nds_write_b16 v{PO+7}, v{PO+1} offset:{L_WDA+ATS}")
    else:
        e(f"""
        v_lshlrev_b32 v{PO}, 16, v{PO}
        v_lshlrev_b32 v{PO+1}, 16, v{PO+1}
        v_mul_f32 v{PO}, s7, v{PO}
        v_mul_f32 v{PO+1}, s7, v{PO+1}
        v_cvt_pk_bf16_f32 v{PO+2}, v{PO}, v{PO+1}
        v_lshlrev_b32 v{PO+3}, 16, v{PO+2}
        v_sub_f32 v{PO}, v{PO}, v{PO+3}
        v_and_b32 v{PO+3}, s6, v{PO+2}
        v_sub_f32 v{PO+1}, v{PO+1}, v{PO+3}
        v_cvt_pk_bf16_f32 v{PO+3}, v{PO}, v{PO+1}
        ds_write_b16 v{PO+7}, v{PO+2} offset:{L_WDA}
        ds_write_b16_d16_hi v{PO+7}, v{PO+2} offset:{L_WDA+ATS}
        ds_write_b16 v{PO+7}, v{PO+3} offset:{L_WDA+2*ATS}
        ds_write_b16_d16_hi v{PO+7}, v{PO+3} offset:{L_WDA+3*ATS}
        """)
    e(f"""
    K_side_done:
    v_lshlrev_b32 v{ID}, 3, v{hb}
    v_sub_u32 v{ID}, v{rho}, v{ID}
    v_subrev_u32 v{ID+4}, 16, v{ID}
    v_min_u32 v{ID}, 8, v{ID}
    v_min_u32 v{ID+4}, 8, v{ID+4}
    v_lshlrev_b32 v{ID}, 4, v{ID}
    v_lshlrev_b32 v{ID+4}, 4, v{ID+4}
    s_mov_b32 s{s_done}, 0
    s_mov_b32 s{s_take}, 32
    v_add_u32 v{T0+3}, {L_ACC}, v{tq}
    v_cmp_gt_u32 vcc, 91, v0
    s_lshl_b32 s14, s{s_c}, 7
    s_add_u32 s14, s14, {WS_FLG}
    """)
    OFFV = 162; cREC = 174; vT2D = 175; tA = 176; tB = 177
    RECV = PRE0; HADR = TMP; RANK = MR
    def offs_pre():
        e(f"""
        v_lshrrev_b32 v{tA}, 2, v1
        v_lshlrev_b32 v{tA}, 11, v{tA}
        s_lshl_b32 s{s_t0}, s{s_w}, 16
        s_lshl_b32 s{s_t1}, s{s_b}, 3
        s_add_u32 s{s_t0}, s{s_t0}, s{s_t1}
        s_add_u32 s16, s{s_t0}, {WS_OFF}
        s_add_u32 s17, s16, 32768
        """)
    def offs_loads():
        for i in range(2):
            e.v('off', f"buffer_load_dwordx2 {vr(OFFV+2*i,2)}, v{tA}, {sr(sWS,4)}, s{16+i} offen{SC}")
    cRD = 173; RA = PRE0; RD = PRE1; aAr = PRE1 + 6; aDr = PRE1 + 8; vU = PRE1 + 10; vD = PRE1 + 12; s_ovf = s_need
    smask = lambda k: sMASK + 2 * k
    def rec_pre():
        e(f"""
        s_mov_b32 s{s_t0}, {RECB}
        v_lshrrev_b32 v{cREC}, 2, v1
        v_and_b32 v{vT2D}, 3, v1
        v_mul_u32_u24 v{cREC}, s{s_t0}, v{cREC}
        v_mad_u32_u24 v{vT2D}, v{vT2D}, 6, s{s_done}
        s_mul_i32 s{s_o}, s{s_w}, {32*RECB}
        s_add_u32 s{s_o+1}, s{s_o}, {16*RECB}
        v_add_u32 v{cRD}, v{cREC}, v{vT2D}
        v_add_u32 v{cRD}, {DOFF}, v{cRD}
        v_lshl_add_u32 v{cREC}, v{vT2D}, 2, v{cREC}
        s_add_u32 s{s_o+2}, s{s_done}, 24
        """)
    def rec_loads(waits, tag):
        if waits: e("s_waitcnt vmcnt(0)")
        for i in range(2):
            e(f"""
            v_bfe_u32 v{vU+i}, v{OFFV+2*i}, 12, 12
            v_and_b32 v{tA}, 0xfff, v{OFFV+2*i}
            v_sub_u32 v{vD+i}, v{vU+i}, v{vT2D}
            v_add_u32 v{aDr+i}, v{tA}, v{cRD}
            v_cmp_lt_i32 {sr(smask(6*i),2)}, 0, v{vD+i}
            v_lshl_add_u32 v{aAr+i}, v{tA}, 2, v{cREC}
            v_cmp_lt_i32 {sr(smask(6*i+4),2)}, 4, v{vD+i}
            s_mov_b64 exec, {sr(smask(6*i),2)}
            buffer_load_dwordx2 {vr(RD+2*i,2)}, v{aDr+i}, {sr(sWS,4)}, s{s_o+i} offen{RN}
            s_mov_b64 exec, -1
            """)
        e(f"v_max_u32 v{vMX}, v{vU}, v{vU+1}")
        for i in range(2):
            e(f"""
            s_mov_b64 exec, {sr(smask(6*i),2)}
            buffer_load_dwordx4 {vr(RA+6*i,4)}, v{aAr+i}, {sr(sWS,4)}, s{s_o+i} offen{RN}
            s_mov_b64 exec, {sr(smask(6*i+4),2)}
            buffer_load_dwordx2 {vr(RA+6*i+4,2)}, v{aAr+i}, {sr(sWS,4)}, s{s_o+i} offen offset:16{RN}
            """)
        e(f"s_mov_b64 exec, -1\nv_cmp_lt_u32 vcc, s{s_o+2}, v{vMX}\ns_mov_b32 s{s_ovf}, 0")
        for i in range(2):
            for u in (1, 2, 3, 5): e(f"v_cmp_lt_i32 {sr(smask(6*i+u),2)}, {u}, v{vD+i}")
        e(f"s_cbranch_vccnz K_ovl{tag}\nK_ovlb{tag}:")
        t = f"K_ovl{tag}:\ns_mov_b32 s{s_ovf}, 1\nv_and_b32 v{tA}, 3, v1\nv_lshlrev_b32 v{tB}, 2, v{tA}\nv_subrev_u32 v{tB}, 24, v{tB}\n"
        for i in range(2):
            t += f"""v_add_u32 v{HADR+i}, v{vD+i}, v{tB}
            v_sub_u32 v{aDr+i}, v{aDr+i}, v{tB}
            v_lshlrev_b32 v{tA}, 2, v{tB}
            v_cmp_lt_i32 {sr(smask(12+2*i),2)}, 0, v{HADR+i}
            v_sub_u32 v{aAr+i}, v{aAr+i}, v{tA}
            v_cmp_lt_i32 {sr(smask(13+2*i),2)}, 1, v{HADR+i}
            s_mov_b64 exec, {sr(smask(12+2*i),2)}
            buffer_load_ushort v{RD+4+i}, v{aDr+i}, {sr(sWS,4)}, s{s_o+i} offen{RN}
            buffer_load_dwordx2 {vr(RA+12+2*i,2)}, v{aAr+i}, {sr(sWS,4)}, s{s_o+i} offen{RN}
            s_mov_b64 exec, -1
            """
        ovf_blocks.append(t + f"s_branch K_ovlb{tag}")
        e.vm = []
    ovf_blocks = []
    def sdwa(d, sh, k):
        r, b = (RD + 2 * (k // 6) + ((k % 6) >> 2), (k % 6) & 3) if k < 12 else (RD + 4 + ((k - 12) >> 1), k & 1)
        return f"v_lshlrev_b32_sdwa v{d}, {sh}, v{r} dst_sel:DWORD dst_unused:UNUSED_PAD src0_sel:DWORD src1_sel:BYTE_{b}"
    def ovf_call(name, body):
        e(f"s_cmp_lg_u32 s{s_ovf}, 0\ns_cbranch_scc1 K_ov{name}\nK_ov{name}b:")
        ovf_blocks.append(f"K_ov{name}:\n" + body + f"\ns_mov_b64 exec, -1\ns_branch K_ov{name}b")
    def loop_consts():
        e(f"""
        s_lshl_b32 s{s_stg}, s{s_w}, 12
        s_add_u32 s{s_stg}, s{s_stg}, {L_STG}
        v_lshlrev_b32 v{cRA}, 3, v1
        v_lshlrev_b32 v{cTA}, 3, v{o8}
        v_lshl_add_u32 v{HADR+8}, v{rho}, 7, s{s_stg}
        v_xor_b32 v{HADR+9}, v{hb}, v{f3}
        """)
        for s_ in range(4):
            if s_: e(f"v_xor_b32 v{cHS+s_}, {2*s_}, v{HADR+9}\nv_lshl_add_u32 v{cHS+s_}, v{cHS+s_}, 4, v{HADR+8}")
            else: e(f"v_lshl_add_u32 v{cHS}, v{HADR+9}, 4, v{HADR+8}")
        e(f"""
        s_lshl_b32 s{s_t0}, s{s_w}, 11
        s_add_u32 s{s_t0}, s{s_t0}, {L_MM}
        v_lshl_add_u32 v{cMW}, v{rho}, 6, s{s_t0}
        v_lshl_or_b32 v{cMW}, v{f3}, 3, v{cMW}
        v_mov_b32 v{vMA}, v{cMW}
        v_lshl_or_b32 v{HADR+8}, v{hb}, 2, v{r4}
        v_lshrrev_b32 v{HADR+9}, 1, v{HADR+8}
        v_xor_b32 v{HADR+9}, v{HADR+9}, v{slot}
        v_lshl_add_u32 v{HADR+8}, v{HADR+8}, 6, s{s_t0}
        v_lshl_add_u32 v{cM}, v{HADR+9}, 3, v{HADR+8}
        v_xor_b32 v{HADR+9}, 4, v{HADR+9}
        v_lshl_add_u32 v{cM+1}, v{HADR+9}, 3, v{HADR+8}
        v_add_u32 v{cM+1}, 0x200, v{cM+1}
        v_mul_u32_u24 v{cAW}, {ATS}, v{r4}
        v_lshl_add_u32 v{cAW}, v{slot}, 3, v{cAW}
        s_mov_b32 s{s_t0}, {L_WDA-L_ATAB}
        v_mad_i32_i24 v{cAW}, v{hb}, s{s_t0}, v{cAW}
        v_add_u32 v{cAW}, {L_ATAB}, v{cAW}
        v_mov_b32 v{vAWA}, v{cAW}
        v_mul_u32_u24 v{cF}, {ACS}, v{hb}
        v_lshl_add_u32 v{cF}, v{rho}, 3, v{cF}
        v_add_u32 v{cF}, {L_ACC}, v{cF}
        v_lshl_or_b32 v{cP}, v{r4}, 1, v{hb}
        v_lshlrev_b32 v{cP}, 5, v{cP}
        v_add_u32 v{cP}, {L_PACC}, v{cP}
        v_lshlrev_b32 v{wx0}, 16, v{wx0}
        v_lshlrev_b32 v{wx1}, 16, v{wx1}
        v_add_u32 v{IDX+1}, 0xc00, v{IDX+1}
        v_add_u32 v{IDX+3}, 0x800, v{IDX+3}
        v_add_u32 v{IDX+5}, 0x400, v{IDX+5}
        s_mov_b32 s{sLO}, -1
        v_mov_b32 v{SCR+19}, 0x1000000
        s_mov_b32 s{sLO+1}, 0
        s_mov_b32 s{sQ}, 0x11111111
        s_mov_b32 s{sQ+1}, 0x11111111
        s_mov_b32 s{sC}, {NLOG2E}
        s_mov_b32 s{sC+1}, {NLOG2E}
        """)
        if fold: e(f"v_mul_f32 v{wx0}, {NLN2}, v{wx0}\nv_mul_f32 v{wx1}, {NLN2}, v{wx1}")
        for r in list(range(OH1A, OH1A + 8)) + list(range(OH2, OH2 + 8)): e(f"v_mov_b32 v{r}, 0")

    cpos = opt.get('cpos', 2)
    offs_pre()
    if cpos == 0: loop_consts(); rec_pre()
    stamp('side')
    if opt.get('early') == 3: offs_loads(); nrow += 2
    e(f"s_waitcnt vmcnt({nrow}) lgkmcnt(0)\ns_barrier")
    e.ds = []; e.vm = []
    stamp('Bd2')
    e(f"""
    s_cmp_eq_u32 s{s_w}, 3
    s_cselect_b64 exec, 1, 0
    buffer_store_dwordx2 {vr(TK,2)}, v{ZQ}, {sr(sWS,4)}, s14 offen{SC}
    s_mov_b64 exec, -1
    ds_read_b128 {vr(ID,4)}, v{ID} offset:{L_OHT}
    ds_read_b128 {vr(ID+4,4)}, v{ID+4} offset:{L_OHT}
    """)
    RS = SCR; aA = SCR + 16; aPO = SCR + 17; aPA = SCR + 18; oP = SCR + 19; aW = SCR + 20; aR = SCR + 22
    def epi_consts():
        t0_, t1_, t2_, rho, hb, f3, c4 = range(TMP, TMP + 7)
        e(f"""
        v_and_b32 v{rho}, 31, v1
        v_lshrrev_b32 v{hb}, 5, v1
        v_bfe_u32 v{f3}, v1, 1, 3
        v_and_b32 v{c4}, 3, v1
        s_lshl_b32 s{s_t0}, s{s_rb}, 5
        v_add_u32 v{t0_}, s{s_t0}, v{rho}
        v_mul_u32_u24 v{aA}, {ACS}, v{t0_}
        v_lshl_add_u32 v{aA}, v{hb}, 6, v{aA}
        v_add_u32 v{aA}, {L_ACC}, v{aA}
        v_lshlrev_b32 v{aPO}, 2, v0
        v_lshlrev_b32 v{aPA}, 3, v0
        v_add_u32 v{aPA}, {L_PACC}, v{aPA}
        v_lshrrev_b32 v{oP}, 2, v0
        v_cmp_gt_u32 vcc, {NPB}, v{oP}
        v_cmp_gt_u32 {sr(s_o,2)}, 3, v{c4}
        v_add_u32 v{oP}, s{s_nb0}, v{oP}
        v_mul_u32_u24 v{oP}, 6, v{oP}
        v_lshl_add_u32 v{oP}, v{c4}, 1, v{oP}
        s_and_b64 vcc, {sr(s_o,2)}, vcc
        v_mov_b32 v{t2_}, 0x1000000
        v_and_b32 v{t0_}, 3, v{f3}
        v_cndmask_b32 v{oP}, v{t2_}, v{oP}, vcc
        v_lshlrev_b32 v{t1_}, 1, v{hb}
        v_xor_b32 v{t1_}, v{t1_}, v{t0_}
        v_lshl_add_u32 v{aW}, v{rho}, 6, s{s_stg}
        v_lshl_add_u32 v{aW}, v{t1_}, 4, v{aW}
        v_xor_b32 v{aW+1}, 16, v{aW}
        v_lshl_add_u32 v{aR}, v1, 4, s{s_stg}
        """)
        for r in range(8):
            e(f"v_lshlrev_b32 v{RS+2*r}, 16, v{HR+r}\nv_and_b32 v{RS+2*r+1}, 0xffff0000, v{HR+r}")
        if dhs:
            for i in range(0, 16, 2): e(f"v_pk_mul_f32 {vr(DH+i,2)}, {vr(DH+i,2)}, {sr(sC,2)}")
            e(f"s_mov_b32 s{sC}, {NLN2}\ns_mov_b32 s{sC+1}, {NLN2}")

    epos = opt.get('epos', 1)
    nz = opt.get('nz', 8)
    Z = [f"ds_write_b128 v{T0+3}, {vr(ZQ,4)} offset:{8192*r}" for r in range(7)]
    Z.append(f"s_mov_b64 exec, vcc\nds_write_b128 v{T0+3}, {vr(ZQ,4)} offset:{8192*7}\ns_mov_b64 exec, -1")
    for z in Z[:nz]: e(z)
    early = opt.get('early', 0)
    if early == 1: offs_loads()
    if cpos == 2: loop_consts()
    if early == 2: offs_loads()
    if epos == 2: epi_consts()
    if cpos == 2: rec_pre()
    if opt.get('isl'): e(f"s_sleep {opt.get('isl')}")
    if not early:
        if opt.get('zw', 1): e("s_waitcnt lgkmcnt(0)")
        offs_loads()
    for z in Z[nz:]: e(z)
    if cpos == 1: loop_consts(); rec_pre()
    e(f"s_mov_b32 s{s_t0}, 0\nK_poll:\ns_waitcnt vmcnt(0)")
    if opt.get('pst'): e(f"s_memrealtime s[0:1]\ns_min_u32 s2, s{s_t0}, 20\ns_add_u32 m0, s2, 32\ns_waitcnt lgkmcnt(0)\nv_writelane_b32 v{vST}, s0, m0\nv_writelane_b32 v{vST}, s{s_t0}, 24")
    for i in range(2):
        e(f"v_xor_b32 v{HADR+2*i}, s61, v{OFFV+2*i}\nv_xor_b32 v{HADR+2*i+1}, s60, v{OFFV+2*i+1}")
    for i in range(2): e(f"v_lshrrev_b32 v{HADR+2*i}, 24, v{HADR+2*i}")
    for i in range(2): e(f"v_or_b32 v{HADR+2*i}, v{HADR+2*i}, v{HADR+2*i+1}")
    for i in range(2): e(f"v_cmp_ne_u32 {sr(4+2*i,2)}, 0, v{HADR+2*i}")
    e(f"""
    s_add_u32 s{s_t0}, s{s_t0}, 1
    s_cmp_gt_u32 s{s_t0}, 0x40000
    s_cbranch_scc1 K_pollx
    s_or_b64 {sr(12,2)}, {sr(4,2)}, {sr(6,2)}
    s_cbranch_scc1 K_repoll
    K_pollx:
    """)
    stamp('Be'); rt(26)
    rec_loads(False, 'a')
    if epos == 0: epi_consts()
    e.ds = []
    hist1 = lambda k: f"s_mov_b64 exec, {sr(smask(k),2)}\nds_add_rtn_u32 v{RANK+k}, v{HADR+k}, v{tA} offset:{L_HIST}"
    base1 = lambda k: f"s_mov_b64 exec, {sr(smask(k),2)}\nds_read_b32 v{HADR+k}, v{HADR+k} offset:{L_BASE}"
    scat1 = lambda k: f"s_mov_b64 exec, {sr(smask(k),2)}\nds_write2_b32 v{HADR+k}, v{RA+k}, v{RANK+k} offset0:0 offset1:1"
    FLV = PS; aFL = T0; fp = opt.get('fp', 0)
    flag_load = f"buffer_load_dwordx2 {vr(FLV,2)}, v{aFL}, {sr(sWS,4)}, s62 offen{SC}"
    e(f"""
    K_hist:
    v_mov_b32 v{tA}, 1
    v_and_b32 v{aFL}, 31, v1
    v_lshlrev_b32 v{aFL}, 7, v{aFL}
    s_lshl_b32 s62, s{s_w}, 12
    s_add_u32 s62, s62, {WS_FLG}
    """)
    for i in range(2):
        e(f"s_waitcnt vmcnt({5 - i + (1 if fp == 1 and i else 0)})")
        if i == 0: stamp('rec')
        if fp == 1 and i == 0: e(flag_load)
        if fp == 2 and i == 1: e(flag_load)
        for k in range(6 * i, 6 * i + 6): e(sdwa(HADR + k, 2, k))
        for k in range(6 * i, 6 * i + 6): e(hist1(k))
        e("s_mov_b64 exec, -1")
    ovf_call('h', "s_waitcnt vmcnt(0)\n" + "\n".join(sdwa(HADR + k, 2, k) for k in range(12, 16)) + "\n" + "\n".join(hist1(k) for k in range(12, 16)))
    if fp == 0: e(flag_load)
    e(f"""
    s_waitcnt lgkmcnt(0)
    s_barrier
    """)
    stamp('B1')
    e(f"""
    ds_read_b64 v[{OFFV+8}:{OFFV+9}], v{cRA} offset:{L_HIST}
    s_add_u32 s{s_t0}, s{s_done}, s{s_take}
    v_cmp_lt_u32 vcc, s{s_t0}, v{vMX}
    s_waitcnt lgkmcnt(0)
    v_add_u32 v{tA}, v{OFFV+8}, v{OFFV+9}
    v_mov_b32 v{tB}, v{tA}
    """)
    wave_scan(e, tB)
    e(f"""
    v_sub_u32 v{OFFV+10}, v{tB}, v{tA}
    v_readlane_b32 s{s_T}, v{tB}, 63
    v_add_u32 v{OFFV+11}, v{OFFV+10}, v{OFFV+8}
    ds_write_b64 v{cRA}, v[{OFFV+10}:{OFFV+11}] offset:{L_BASE}
    s_cmp_gt_u32 s{s_T}, {CAP}
    s_cbranch_scc1 K_retry
    """)
    for k in range(12): e(base1(k))
    e(f"""
    s_mov_b64 exec, -1
    s_cbranch_vccnz K_setflag
    K_flagset:
    s_add_u32 s{s_t1}, s{s_T}, 31
    s_lshr_b32 s{s_t1}, s{s_t1}, 5
    s_lshr_b32 s{s_t0}, s{s_t1}, 3
    s_and_b32 s{s_t1}, s{s_t1}, 7
    s_mul_i32 s{s_p}, s{s_w}, s{s_t0}
    s_min_u32 s{s_t2}, s{s_w}, s{s_t1}
    s_add_u32 s{s_p}, s{s_p}, s{s_t2}
    s_add_u32 s{s_end}, s{s_p}, s{s_t0}
    s_cmp_lt_u32 s{s_w}, s{s_t1}
    s_addc_u32 s{s_end}, s{s_end}, 0
    s_lshl_b32 s{s_p}, s{s_p}, 5
    s_lshl_b32 s{s_end}, s{s_end}, 5
    s_min_u32 s{s_end}, s{s_end}, s{s_T}
    s_lshl_b32 s{s_t0}, s{s_T}, 3
    v_add_u32 v{tA}, s{s_t0}, v{cRA}
    s_mov_b32 s63, 0
    K_flg:
    s_waitcnt vmcnt(0)
    v_cmp_ne_u32 vcc, s60, v{FLV}
    v_cmp_ne_u32 {sr(0,2)}, s61, v{FLV+1}
    s_lshr_b32 s{s_t0}, s{s_c}, 3
    s_lshl_b32 s{s_t1}, s{s_w}, 5
    s_or_b64 vcc, vcc, {sr(0,2)}
    s_cbranch_scc1 K_reflg
    K_flgok:
    s_add_u32 s{s_t0}, s{s_t0}, s{s_t1}
    s_and_b32 s{s_t1}, s{s_t0}, 7
    s_lshl_b32 s{s_t1}, s{s_t1}, 5
    s_lshr_b32 s{s_t0}, s{s_t0}, 3
    s_add_u32 s{s_t0}, s{s_t0}, s{s_t1}
    s_mul_i32 s{s_t0}, s{s_t0}, {NPB}
    """)
    if opt.get('pfp'):
        e(f"s_add_u32 s{s_t1}, s{s_t0}, 7\ns_and_b32 s{s_t1}, s{s_t1}, -8\nv_lshl_add_u32 v{PS}, v1, 3, s{s_t1}\ns_mov_b64 exec, 0x7ff\nbuffer_load_dword v{PS}, v{PS}, {sr(sPF,4)}, 0 idxen{SC}\ns_mov_b64 exec, -1")
    if opt.get('pfb'):
        e(f"v_add_u32 v{PS+1}, s{s_t0}, v1\ns_bfm_b64 exec, {opt.get('pfb')}, 0\nbuffer_load_dword v{PS+1}, v{PS+1}, {sr(sH,4)}, 0 idxen offset:3072{SC}\ns_mov_b64 exec, -1")
    for q in range(3):
        e("s_waitcnt lgkmcnt(8)")
        for k in range(4 * q, 4 * q + 4): e(f"v_add_lshl_u32 v{HADR+k}, v{HADR+k}, v{RANK+k}, 3")
        for k in range(4 * q, 4 * q + 4): e(sdwa(RANK + k, 4, k))
        for k in range(4 * q, 4 * q + 4): e(scat1(k))
        e("s_mov_b64 exec, -1")
    X4 = range(12, 16)
    ovf_call('s', "\n".join(base1(k) for k in X4) + "\ns_mov_b64 exec, -1\ns_waitcnt lgkmcnt(0)\n"
             + "\n".join(f"v_add_lshl_u32 v{HADR+k}, v{HADR+k}, v{RANK+k}, 3" for k in X4) + "\n"
             + "\n".join(sdwa(RANK + k, 4, k) for k in X4) + "\n" + "\n".join(scat1(k) for k in X4))
    e(f"""
    s_cmp_lg_u32 s{s_w}, 7
    s_cbranch_scc1 K_nopad
    ds_write_b64 v{tA}, v[{ZQ}:{ZQ+1}] offset:{L_REC}
    K_nopad:
    s_lshl_b32 s{s_p8}, s{s_p}, 3
    s_mov_b32 s{s_lim}, 0
    s_mov_b32 s{s_nbCur}, 0
    v_add_u32 v{vRA}, s{s_p8}, v{cRA}
    v_add_u32 v{vTA}, s{s_p8}, v{cTA}
    """)
    for r in range(8): e(f"v_mov_b32 v{MR+r}, 0")
    e("s_waitcnt lgkmcnt(0)\ns_barrier")
    e.ds = []; e.vm = []
    spin(3)
    stamp('B2')
    e(f"s_cmp_ge_u32 s{s_p}, s{s_end}\ns_cbranch_scc1 {'K_skip' if epos == 1 else 'K_wavedone'}")

    tail = []
    D = lambda tag, t: (lambda: e.d(tag, t))
    V = lambda tag, t: (lambda: e.v(tag, t))
    def rec_read():
        return [D('rw', f"ds_read_b64 v[{RW}:{RW+1}], v{vRA} offset:{L_REC}"), D('rw', f"ds_read_u16 v{vPI}, v{vRA} offset:{L_REC}")]
    def window_pre():
        return [f"s_sub_u32 s{s_rem}, s{s_end}, s{s_p}", f"s_min_u32 s{s_need}, s{s_rem}, 64", f"s_bfm_b64 {sr(sMV,2)}, s{s_rem}, 0",
                f"s_cmp_ge_u32 s{s_rem}, 64", f"s_cselect_b64 {sr(sMV,2)}, -1, {sr(sMV,2)}", f"s_mov_b32 s{s_flN}, 0"]
    def window():
        l = e.lab("K_win")
        tail.append(f"""
        {l}a:
        v_readfirstlane_b32 s{s_nbN}, v{RW+1}
        s_mov_b32 s{s_flN}, 1
        s_add_u32 s{s_lim}, s{s_nbN}, 128
        v_cmp_gt_u32 vcc, s{s_lim}, v{RW+1}
        s_nop 0
        s_and_b64 {sr(sMK,2)}, vcc, {sr(sMV,2)}
        s_bcnt1_i32_b64 s{s_cntN}, {sr(sMK,2)}
        s_branch {l}b
        """)
        return [lambda: (e.wds('rw'), e(f"v_cmp_gt_u32 vcc, s{s_lim}, v{RW+1}")),
                V('ps', f"buffer_load_dwordx3 {vr(PS,3)}, v{vPI}, {sr(sPF,4)}, 0 idxen{FL[opt.get('pg', 2)]}"),
                D('pd', f"ds_read_b128 {vr(PD,4)}, v{RW+1} offset:{L_POSD}"),
                f"s_and_b64 {sr(sMK,2)}, vcc, {sr(sMV,2)}",
                f"s_bcnt1_i32_b64 s{s_cntN}, {sr(sMK,2)}",
                f"s_cmp_lg_u32 s{s_cntN}, s{s_need}",
                f"s_cbranch_scc1 {l}a\n{l}b:",
                f"s_add_u32 s{s_pn}, s{s_p}, s{s_cntN}" + (f"\ns_and_b32 s0, s{s_dbg}, 7\ns_cselect_b32 s{s_pn}, s{s_p}, s{s_pn}" if opt.get('x_rep') else "")]
    def idx_read(off): return [D('idx', f"ds_read_u16 v{IDX+2*j}, v{vTA} offset:{L_REC+off+64*j}") for j in range(4)]
    def hs_read(): return [D('hs', f"ds_read_b128 {vr(HS+4*s_,4)}, v{cHS+s_}") for s_ in range(4)]
    def oh2_read(): return [D('oh2', f"ds_read_b64_tr_b16 {vr(OH2+4*s_+2*t,2)}, v{cM+t} offset:{1024*s_}") for s_ in range(2) for t in range(2)]
    def aw_read():
        return [f"s_mul_i32 s{s_t0}, s{s_nbN}, {ATS//16}",
                f"s_mov_b64 exec, {sr(sLO,2)}\nv_add_u32 v{vAWA}, s{s_t0}, v{cAW}\ns_mov_b64 exec, -1"] + \
               [D('aw', f"ds_read_b64_tr_b16 {vr(AW+4*blk+2*t,2)}, v{vAWA} offset:{4*ATS*t+64*blk}") for blk in range(2) for t in range(2)]
    def aw_cond():
        t = f"K_aw:\ns_mul_i32 s{s_t0}, s{s_nbN}, {ATS//16}\ns_mov_b64 exec, {sr(sLO,2)}\nv_add_u32 v{vAWA}, s{s_t0}, v{cAW}\ns_mov_b64 exec, -1\n"
        t += "\n".join(f"ds_read_b64_tr_b16 {vr(AW+4*blk+2*t_,2)}, v{vAWA} offset:{4*ATS*t_+64*blk}" for blk in range(2) for t_ in range(2))
        tail.append(t + "\ns_branch K_awb")
        return [f"s_cmp_lg_u32 s{s_flN}, 0", "s_cbranch_scc1 K_aw\nK_awb:"]
    def m_b():
        return [D('mc', f"ds_write_b64 v{vMA}, v[{ZQ}:{ZQ+1}]"),
                f"s_mov_b32 exec_lo, 0\ns_mov_b32 exec_hi, s{s_mkB}\nds_write_b64 v{vMA}, v[{WP}:{WP+1}]\ns_mov_b64 exec, -1"]
    def misc():
        t0, t1, t2, t3 = T0, T0 + 1, T0 + 2, T0 + 3
        t4 = PD + 3
        L = [D('mc', f"ds_write_b64 v{vMA}, v[{ZQ}:{ZQ+1}]"),
             f"""v_subrev_u32 v{t0}, s{s_nbN}, v{RW+1}
             v_sub_f32 v{t1}, v{PD}, v{PS}
             v_sub_f32 v{t2}, v{PD+1}, v{PS+1}
             v_sub_f32 v{t3}, v{PD+2}, v{PS+2}
             v_min_u32 v{OH1A}, 0x80, v{t0}
             v_mul_f32 v{t4}, v{t1}, v{t1}
             v_lshrrev_b32 v{t0}, 1, v{OH1A}
             v_fmac_f32 v{t4}, v{t2}, v{t2}
             v_cvt_pk_bf16_f32 v{WP}, 1.0, v{t1}
             v_fmac_f32 v{t4}, v{t3}, v{t3}
             v_cvt_pk_bf16_f32 v{WP+1}, v{t2}, v{t3}
             v_cvt_pk_bf16_f32 v{OH1B}, v{t4}, v{RW}
             v_xor_b32 v{vMA}, v{t0}, v{cMW}""",
             f"s_mov_b32 s{s_mkB}, s{sMK+1}",
             f"v_permlane32_swap_b32 v{OH1A}, v{OH1B}" + (f"\nv_mov_b32 v{OH1A+1}, v{OH1A}\nv_mov_b32 v{OH1B+1}, v{OH1B}" if fold and opt.get('lo', 1) else ""),
             lambda: (e(f"s_and_b64 exec, {sr(sMK,2)}, {sr(sLO,2)}\nds_write_b64 v{vMA}, v[{WP}:{WP+1}]\ns_mov_b64 exec, {sr(sLO,2)}"), e.d('oh1', f"ds_read_b128 {vr(OH1A,4)}, v{OH1A} offset:{L_OHT}"),
                      e.d('oh1', f"ds_read_b128 {vr(OH1B,4)}, v{OH1B} offset:{L_OHT}"), e("s_mov_b64 exec, -1"))]
        return L
    def dma():
        return [V('dma', f"buffer_load_dwordx4 {vr(IDX+2*j,2)}, {sr(sH,4)}, 0 idxen offen offset:{1024*j}{FL[opt.get('gf', 2)]} lds") for j in range(4)]
    def run(L, gap=False):
        for x in L:
            if callable(x): x()
            else:
                e(x)
                if gap and 'm0' in x: e("s_nop 0")
    def flush(snb):
        e(f"s_mul_i32 s{s_t0}, s{snb}, {ACS//16}\nv_lshl_add_u32 v{T0+1}, s{snb}, 1, v{cP}\nv_add_u32 v{T0}, s{s_t0}, v{cF}")
        R = [4 * j + 1 + c for j in range(4) for c in range(3)]
        for blk, A in enumerate((ACC0, ACC1)):
            if fold and not dhs:
                for j in range(4): e(f"v_mul_f32 v{A+4*j}, {NLN2}, v{A+4*j}")
            if blk == 0:
                for r in R: e(f"v_mul_f32 v{ACC0+r}, v{ACC0+r}, v{wx0}")
            for j in range(4): e(f"v_cvt_f64_f32 {vr(TMP+4*j+2*blk,2)}, v{A+4*j}")
        for j in range(4):
            e(f"ds_add_f64 v{T0}, {vr(TMP+4*j,2)} offset:{2*ACS*j}\nds_add_f64 v{T0}, {vr(TMP+4*j+2,2)} offset:{2*ACS*j+256}")
        for r in R: e(f"v_fmac_f32 v{ACC0+r}, v{ACC1+r}, v{wx1}")
        e(mfma(ACC1, ZQ, ZQ))
        lo = [ACC0 + 4 * j + 1 + c for j in range(2) for c in range(3)]
        for r in lo: e(f"v_add_f32_dpp v{r}, v{r}, v{r} row_ror:8 row_mask:0xf bank_mask:0x3")
        for r in lo: e(f"v_add_f32_dpp v{r}, v{r+8}, v{r+8} row_ror:8 row_mask:0xf bank_mask:0xc")
        lo = [ACC0 + 1 + c for c in range(3)]
        for r in lo: e(f"v_add_f32_dpp v{r}, v{r}, v{r} row_half_mirror row_mask:0xf bank_mask:0x5")
        for r in lo: e(f"v_add_f32_dpp v{r}, v{r+4}, v{r+4} row_half_mirror row_mask:0xf bank_mask:0xa")
        for r in lo: e(f"v_add_f32_dpp v{r}, v{r}, v{r} quad_perm:[1,0,3,2] row_mask:0xf bank_mask:0xf")
        for r in lo: e(f"v_add_f32_dpp v{r}, v{r}, v{r} quad_perm:[2,3,0,1] row_mask:0xf bank_mask:0xf")
        for c in range(3): e(f"v_cvt_f64_f32 {vr(TMP+2*c,2)}, v{ACC0+1+c}")
        e(mfma(ACC0, ZQ, ZQ))
        e(f"s_mov_b64 exec, {sr(sQ,2)}")
        for c in range(3): e(f"ds_add_f64 v{T0+1}, {vr(TMP+2*c,2)} offset:{8*c}")
        e("s_mov_b64 exec, -1")
    def gemm1(q, blk, oh1):
        return [mfma(q, oh1, AW + 4 * blk, None)] + [mfma(q, HS + 8 * blk + 4 * s_, ID + 4 * s_, q) for s_ in range(2)]
    def seg(acc): return [mfma(acc, OH2 + 4 * s_, MR + 4 * s_, acc) for s_ in range(2)]
    def phase(P, G, S, pre, side):
        head = []
        if not fold:
            head = [f"v_pk_mul_f32 {vr(TMP+i,2)}, {vr(P+i,2)}, {sr(sC,2)}" for i in range(0, 16, 2)]
            ex = [f"v_exp_f32 v{TMP+i}, v{TMP+i}" for i in range(16)]
        else:
            ex = [f"v_exp_f32 v{TMP+i}, v{P+i}" for i in range(16)]
        base = []
        for m, x in enumerate([G[0], S[0], S[1]]): base += [x] + ex[4 * m:4 * m + 4]
        base += ex[12:]
        if not pair:
            base += [f"v_pk_add_f32 {vr(TMP+i,2)}, {vr(TMP+i,2)}, 1.0 op_sel_hi:[1,0]" for i in range(0, 16, 2)]
            rc = [f"v_rcp_f32 v{TMP+i}, v{TMP+i}" for i in range(16)]
            for m, x in enumerate(G[1:3]): base += [x] + rc[4 * m:4 * m + 4]
            base += rc[8:]
            base += [f"v_pk_mul_f32 {vr(TMP+i,2)}, {vr(P+i,2)}, {vr(TMP+i,2)}" for i in range(0, 16, 2)]
            base += [f"v_cvt_pk_bf16_f32 v{MR+i//2}, v{TMP+i}, v{TMP+i+1}" for i in range(0, 16, 2)]
        else:
            R2 = HR
            base += [f"v_pk_fma_f32 {vr(TMP+i,2)}, {vr(TMP+i,2)}, {sr(s_o,2)}, {sr(s_o,2)} clamp" for i in range(0, 16, 2)]
            base += [f"v_pk_mul_f32 {vr(R2+i//2,2)}, {vr(TMP+i,2)}, {vr(TMP+i+2,2)}" for i in range(0, 16, 4)]
            rc = [f"v_rcp_f32 v{R2+i}, v{R2+i}" for i in range(8)]
            base += [G[1]] + rc[:3] + [G[2]] + rc[3:]
            base += [f"v_pk_mul_f32 {vr(TMP+i,2)}, {vr(TMP+i,2)}, {vr(R2+2*(i//4),2)}" for i in range(0, 16, 2)]
            base += [f"v_pk_mul_f32 {vr(TMP+i,2)}, {vr(TMP+i,2)}, {vr(P+(i^2),2)}" for i in range(0, 16, 2)]
            base += [f"v_cvt_pk_bf16_f32 v{MR+i//2}, v{TMP+(i^2)}, v{TMP+(i^2)+1}" for i in range(0, 16, 2)]
        assert len(base) == (65 if pair else 61)
        if opt.get('plain', 0) & 1:
            base = [x if 'v_pk_add' not in x else None for x in base]
            k = 0
            for i, x in enumerate(base):
                if x is None: base[i] = f"v_add_f32 v{TMP+k}, 1.0, v{TMP+k}\nv_add_f32 v{TMP+k+1}, 1.0, v{TMP+k+1} ; v_pk_"; k += 2
        if opt.get('plain', 0) & 2:
            k = 0
            for i, x in enumerate(base):
                if 'v_pk_mul' in x: base[i] = f"v_mul_f32 v{TMP+k}, v{P+k}, v{TMP+k}\nv_mul_f32 v{TMP+k+1}, v{P+k+1}, v{TMP+k+1} ; v_pk_"; k += 2
        for x in head: e(x)
        q = [(st, it) for st, L in side for it in L]
        slot_ok = lambda x: 'v_pk_' in x or 'v_cvt_pk' in x
        for i, x in enumerate(base):
            if i in pre: run(pre[i])
            e(x)
            if slot_ok(x) and q and q[0][0] <= i:
                run([q.pop(0)[1]])
        assert not q, q

    if opt.get('x_rep'): e(f"s_mov_b32 s{s_dbg}, 0")
    if opt.get('pp3'): e("s_setprio 3")
    e(f"s_mov_b32 m0, s{s_stg}")
    run(rec_read()); run(idx_read(0)); run(window_pre())
    e.wds('idx')
    e.ds = ['rw']
    W = window()
    run(W[:3])
    run(dma(), True)
    run(W[3:])
    e(f"s_mov_b32 s{s_flN}, 0")
    run(aw_read())
    run(idx_read(256))
    if epos == 1:
        e(f"s_cmp_lg_u32 s{s_done}, 0\ns_cbranch_scc1 K_noepi")
        epi_consts()
        e("K_noepi:")
    wp = window_pre()
    adv = [f"s_lshl_b32 s{s_p8}, s{s_pn}, 3", f"s_mov_b32 s{s_p}, s{s_pn}", f"s_mov_b32 s{s_flush}, s{s_flN}",
           f"s_mov_b32 s{s_nbOld}, s{s_nbCur}", f"s_mov_b32 s{s_nbCur}, s{s_nbN}", f"s_mov_b32 s{s_cntCur}, s{s_cntN}"] + wp
    run(adv)
    if pair: e(f"s_mov_b32 s{s_o}, {KSC}\ns_mov_b32 s{s_o+1}, {KSC}")
    e.wvm('ps'); e.wds('pd')
    M = misc()
    run(M[:2])
    e.wvm0()
    run(hs_read())
    run(M[2:])
    e.wds('hs')
    G = [mfma(PRE0, HS, ID, None), mfma(PRE0, HS + 4, ID + 4, PRE0), mfma(PRE0, OH1A, AW, PRE0)]
    run(dma())
    e(G[0]); e(G[1]); e.wds0(); e(G[2])
    e("s_nop 5")
    if opt.get('prio', 3): e(f"s_setprio {2 if opt.get('pp3') else 3}")
    stamp('wprol')
    if opt.get('stamp'): e(f"s_mov_b32 s{s_dbg}, 0")
    if 'la' in opt:
        e(".p2align 6"); e("\n".join(["s_nop 0"] * (opt['la'] // 4))); e("K_loop:")
    else: e(".p2align 4\nK_loop:")
    loop_start = len(e.L)
    e.ds = []; e.vm = ['dma'] * 4
    if opt.get('stamp'): e(f"s_add_u32 s{s_dbg}, s{s_dbg}, 1")
    if opt.get('itst'): e(f"s_memtime s[0:1]\ns_add_u32 m0, s{s_dbg}, 31\ns_waitcnt lgkmcnt(0)\nv_writelane_b32 v{vST}, s0, m0")
    pm = opt.get('prio', 1)
    def prio_check(tag, reg, th):
        tail.append(f"""
        K_prio{tag}:
        s_setprio {1 if opt.get('pp3') == 2 else 2}
        s_cmp_le_u32 s{reg}, {th[1]}
        s_cbranch_scc0 K_priob{tag}
        s_setprio 1
        s_cmp_le_u32 s{reg}, {th[2]}
        s_cbranch_scc0 K_priob{tag}
        s_setprio 0
        s_branch K_priob{tag}
        """)
        return [f"s_cmp_le_u32 s{reg}, {th[0]}", f"s_cbranch_scc1 K_prio{tag}\nK_priob{tag}:"]
    W = window()
    hw = opt.get('hw', 19); c2 = opt.get('c2', 13); c3 = opt.get('c3', 19); c4_ = opt.get('c4', 15)
    pr = prio_check('a', s_rem, tuple(int(x) for x in str(opt.get('th', '192_64_0')).split('_'))) if pm else []
    dz = 4 if pair else 0
    phase(PRE0, gemm1(PRE1, 1, OH1A), seg(ACC1),
          {0: [f"v_add_u32 v{vRA}, s{s_p8}, v{cRA}\nv_add_u32 v{vTA}, s{s_p8}, v{cTA}"] + rec_read(), c2: oh2_read() + m_b(), c3: W[:3]},
          [(c3, W[3:]), (45 + dz, pr), (59 + dz, [f"s_cmp_lg_u32 s{s_flush}, 0"])])
    e("s_cbranch_scc1 K_flush\nK_flushb:")
    phase(PRE1, gemm1(PRE0, 0, OH1B), seg(ACC0),
          {0: [lambda: e.wvm('dma')] + hs_read() + idx_read(0), 5: [lambda: e.wds('oh2')], hw: [lambda: e.wds('idx')] + dma()},
          [(53 + dz, [f"s_cmp_gt_u32 s{s_cntCur}, 32", f"s_cselect_b32 s{s_t0}, 1, s{s_cntN}", f"s_cmp_eq_u32 s{s_t0}, 0"])])
    e("s_cbranch_scc1 K_drain")
    M = misc()
    phase(PRE0, gemm1(PRE1, 1, OH1B), seg(ACC1),
          {c2: oh2_read() + M[:1], c4_: [lambda: e.wvm('ps')] + M[1:]},
          [(19, aw_cond())] + ([(45 + dz, prio_check('b', s_rem, tuple(int(x) for x in str(opt['th2']).split('_'))))] if opt.get('th2') else []))
    phase(PRE1, gemm1(PRE0, 0, OH1A), seg(ACC0),
          {0: [lambda: e.wvm('dma')] + hs_read() + idx_read(256) + [lambda: e.wds('oh1')], hw: [lambda: e.wds('idx')] + dma()},
          [(45 + dz, adv + [f"s_cmp_lg_u32 s{s_cntN}, 0"])])
    e("s_cbranch_scc1 K_loop")
    assert e.vm == ['dma'] * 4, e.vm
    def xf(l):
        if opt.get('x_novm') and ('buffer_load' in l or 'vmcnt' in l): return False
        if opt.get('x_nods') and ('_tr_' in l or 'ds_read_b128' in l or 'ds_write' in l): return False
        rm = {'hs': [f"ds_read_b128 v[{HS+4*i}:" for i in range(4)], 'oh2': [f"ds_read_b64_tr_b16 v[{OH2+2*i}:" for i in range(4)],
              'aw': [f"ds_read_b64_tr_b16 v[{AW+2*i}:" for i in range(4)], 'pd': [f"ds_read_b128 v[{PD}:"],
              'oh1': [f"ds_read_b128 v[{OH1A}:", f"ds_read_b128 v[{OH1B}:"], 'mw': ["ds_write_b64"], 'dma': [" lds"], 'ps': ["dwordx3"],
              'mf': ['v_mfma'], 'tr': ['v_exp', 'v_rcp'], 'idx': [f"ds_read_u16 v{IDX+2*j}," for j in range(4)], 'm0': [' m0,'],
              'vmw': ['vmcnt'], 'pk': ['v_pk_'], 'cvt': [f"v_cvt_pk_bf16_f32 v{MR+i}," for i in range(8)], 'perm': ['permlane'],
              'seg': [f"v_mfma_f32_32x32x16_bf16 v[{ACC0}:", f"v_mfma_f32_32x32x16_bf16 v[{ACC1}:"]}
        for k in str(opt.get('x_rm', '')).split('+'):
            if k in rm and any(t in l for t in rm[k]): return False
        return True
    e.L = e.L[:loop_start] + [l for l in e.L[loop_start:] if xf(l)]
    e("K_drain:\ns_nop 0")
    stamp('loop')
    if opt.get('stamp'): e(f"v_writelane_b32 v{vST}, s{s_dbg}, 28")
    for x in seg(ACC1): e(x)
    e(f"ds_write_b64 v{vMA}, v[{ZQ}:{ZQ+1}]")
    flush(s_nbCur)
    e("K_wavedone:")
    e("s_setprio 0")
    e("s_waitcnt vmcnt(0) lgkmcnt(0)")
    stamp('drain')
    e("s_barrier")
    stamp('B3')
    dreg = lambda k: (PRE0 + 4 * k) if k < 8 else (ACC0 + 4 * (k - 8))
    aF = T0
    e(f"ds_read_b32 v{aF}, v{ZQ} offset:{L_FLAG}")
    for k in range(16): e(f"ds_read_b128 {vr(dreg(k),4)}, v{aA} offset:{128*(k>>2)+16*(k&3)}")
    e(f"ds_read_b64 {vr(PD,2)}, v{aPA}\nds_read_b32 v{PD+2}, v{aPO} offset:{L_POSD}")
    e(f"s_waitcnt lgkmcnt(14)\nv_readfirstlane_b32 s{s_t0}, v{aF}")
    for k in range(16):
        if k % 4 == 0 and k: e(f"s_waitcnt lgkmcnt({14-k})")
        r = dreg(k)
        e(f"v_cvt_f32_f64 v{r}, {vr(r,2)}\nv_cvt_f32_f64 v{r+1}, {vr(r+2,2)}")
        if k == 0: e(f"s_cmp_lg_u32 s{s_t0}, 0\ns_cbranch_scc1 K_more")
        if k: e(f"v_cvt_pk_bf16_f32 v{HS+k-1}, v{dreg(k-1)}, v{dreg(k-1)+1}")
        if k % 4 == 1 and k > 4: e(mfma(DH, WHM + 4 * (k // 4 - 1), HS + 4 * (k // 4 - 1), DH))
    e(f"v_cvt_pk_bf16_f32 v{HS+15}, v{dreg(15)}, v{dreg(15)+1}")
    e(f"s_waitcnt lgkmcnt(0)\nv_cvt_f32_f64 v{PD}, {vr(PD,2)}")
    e(mfma(DH, WHM + 12, HS + 12, DH))
    e(f"""
    v_add_f32 v{PD}, v{PD}, v{PD+2}
    v_cvt_pk_bf16_f32 v{PD}, v{PD}, v{PD}
    buffer_store_short v{PD}, v{oP}, {sr(sOP,4)}, 0 offen{OF}
    """)
    e("s_nop 7\ns_nop 1")
    X = TMP
    if not dhs:
        for i in range(0, 16, 2): e(f"v_pk_mul_f32 {vr(X+i,2)}, {vr(DH+i,2)}, {sr(sC,2)}")
    for i in range(16): e(f"v_exp_f32 v{X+i}, v{(DH if dhs else X)+i}")
    for i in range(0, 16, 2): e(f"v_pk_add_f32 {vr(X+i,2)}, {vr(X+i,2)}, 1.0 op_sel_hi:[1,0]")
    for i in range(16): e(f"v_rcp_f32 v{X+i}, v{X+i}")
    for hf in range(2):
        if dhs:
            for i in range(8 * hf, 8 * hf + 8, 2): e(f"v_pk_mul_f32 {vr(X+i,2)}, {vr(DH+i,2)}, {vr(X+i,2)}")
            for i in range(8 * hf, 8 * hf + 8, 2): e(f"v_pk_fma_f32 {vr(X+i,2)}, {vr(X+i,2)}, {sr(sC,2)}, {vr(RS+i,2)}")
        else:
            for i in range(8 * hf, 8 * hf + 8, 2): e(f"v_pk_fma_f32 {vr(X+i,2)}, {vr(DH+i,2)}, {vr(X+i,2)}, {vr(RS+i,2)}")
        for i in range(4 * hf, 4 * hf + 4): e(f"v_cvt_pk_bf16_f32 v{HS+i}, v{X+2*i}, v{X+2*i+1}")
        e(f"ds_write_b128 v{aW+hf}, {vr(HS+4*hf,4)}")
    e(f"ds_read_b128 {vr(HS+8,4)}, v{aR}\nds_read_b128 {vr(HS+12,4)}, v{aR} offset:1024")
    spin(2)
    stamp('epi'); rt(25)
    fin(s_b, s_w, 8, sWS, WS_STAMP, T0 + 1)
    e(f"""
    s_waitcnt lgkmcnt(1)
    buffer_store_dwordx4 {vr(HS+8,4)}, v{nd}, {sr(sOUT,4)}, 0 offen{OF}
    s_waitcnt lgkmcnt(0)
    buffer_store_dwordx4 {vr(HS+12,4)}, v{nd2}, {sr(sOUT,4)}, 0 offen offset:2048{OF}
    K_fin:
    """)
    if opt.get('x_pad') == 'fin': e("s_waitcnt vmcnt(0)"); stamp('fin')
    e("K_end:\ns_endpgm")
    e("K_flush:")
    flush(s_nbOld)
    e("s_branch K_flushb")
    for t in tail: e(t)
    e(f"""
    K_reflg:
    s_add_u32 s63, s63, 1
    s_cmp_gt_u32 s63, 0x40000
    s_cbranch_scc1 K_flgok
    buffer_load_dwordx2 {vr(FLV,2)}, v{aFL}, {sr(sWS,4)}, s62 offen{SC}
    s_branch K_flg
    """)
    e("K_repoll:")
    if opt.get('sleep', 4): e(f"s_sleep {opt.get('sleep', 4)}")
    for i in range(2):
        e(f"s_mov_b64 exec, {sr(4+2*i,2)}\nbuffer_load_dwordx2 {vr(OFFV+2*i,2)}, v{tA}, {sr(sWS,4)}, s{16+i} offen{SC}")
    e("s_mov_b64 exec, -1\ns_branch K_poll")
    for t in ovf_blocks: e(t)
    ovf_blocks.clear()
    e(f"K_setflag:\nv_mov_b32 v{tA}, 1\nv_mov_b32 v{tB}, {L_FLAG}\nds_write_b32 v{tB}, v{tA}\ns_waitcnt lgkmcnt(0)\ns_branch K_flagset")
    def zero_hist():
        e(f"""
        v_cmp_gt_u32 vcc, 65, v0
        v_lshlrev_b32 v{tA}, 4, v0
        s_nop 0
        s_mov_b64 exec, vcc
        ds_write_b128 v{tA}, {vr(ZQ,4)} offset:{L_HIST}
        s_mov_b64 exec, -1
        s_waitcnt lgkmcnt(0)
        s_barrier
        """)
    if epos == 1:
        e(f"K_skip:\ns_cmp_lg_u32 s{s_done}, 0\ns_cbranch_scc1 K_wavedone")
        epi_consts()
        e("s_branch K_wavedone")
    e("K_retry:\ns_waitcnt lgkmcnt(0)\ns_barrier")
    zero_hist()
    e(f"s_mov_b32 s{s_take}, 8\ns_mov_b32 s{s_ovf}, 0\ns_add_u32 s{s_t0}, s{s_done}, 8")
    for i in range(2):
        e(f"v_min_u32 v{tB}, s{s_t0}, v{vU+i}\nv_sub_u32 v{tB}, v{tB}, v{vT2D}")
        for u in range(6): e(f"v_cmp_lt_i32 {sr(smask(6*i+u),2)}, {u}, v{tB}")
    e("s_branch K_hist")
    e("K_more:\ns_waitcnt lgkmcnt(0)\ns_barrier")
    zero_hist()
    e(mfma(ACC0, ZQ, ZQ)); e(mfma(ACC1, ZQ, ZQ))
    for r in range(16): e(f"v_mov_b32 v{OH1A+r}, 0")
    e(f"s_add_u32 s{s_done}, s{s_done}, s{s_take}\ns_mov_b32 s{s_take}, 32")
    e.vm = []
    offs_pre(); offs_loads(); rec_pre(); rec_loads(True, 'b')
    e("s_branch K_hist")
    for t in ovf_blocks: e(t)
    s = HEADER + f"; @launch grid=({NW},1,1) block=(512,1,1) lds={LDS}\n"
    s += DOC
    s += '.amdgcn_target "amdgcn-amd-amdhsa--gfx950"\n.text\n' + e.text()
    s += KD.format(name=nm, vgpr=256, acc=256, sgpr=102)
    return s

if __name__ == "__main__":
    opt = {}
    for a in sys.argv[2:]:
        k, _, v = a.partition("="); opt[k] = (int(v) if v.isdigit() else v) if v else 1
    open(sys.argv[1], "w").write(gen(opt))
    if opt.get('stamp'): print(",".join(opt['names']))
```

```python
import sys
from gen import Em, vr, sr, srd, wave_scan, KD, mk_stamp, mfma, HEADER, LOG2E, NLOG2E, LN2

N = 25000; E = 800000; NPB = 98; NW = 256; CH = 3128; NQ = CH // 4
RECB = 15744; DOFF = 12544
WS_REC = 0; WS_OFF = 0x620000; WS_POS = 0x6A0000; WS_TOK = 0x710000; WS_FLG = 0x720000; WS_B = 0x800000; WS_SZ = 0xC00000; WS_STAMP = 0x780000
CAP = 3584
L_REC = 0; L_H1 = 25088; L_B1 = 26112
L_POSD = 29184; L_OHT = 31232; L_HIST = 31392; L_BASE = 31904; L_FLAG = 32416; L_WDA = 32448
L_MM = 33664; L_ACC = 50048; L_PACC = 105488; L_ATAB = 108848; L_STG = 127360; LDS = 160128
L_W = L_ACC
ACS = 528; ATS = 144
ID = 2; SCR = 10; DH = 34; WHM = 50; HR = 66; ACC0 = 74; ACC1 = 90; PRE0 = 106; PRE1 = 122; TMP = 138; MR = 154
HS = 162; AW = 178; OH1A = 186; OH1B = 190; OH2 = 194; IDX = 202; ZQ = 210; RW = 214; PS = 216; vPI = 219
PD = 220; WP = 224; vMA = 226; vRA = 227; vTA = 228; cRA = 229; cTA = 230; cHS = 231; cM = 235; cMW = 237
vAWA = 238; cAW = 239; cF = 240; cP = 241; wx0 = 242; wx1 = 243; vMX = 244; T0 = 245; vST = 255
sDST = 28; sSRC = 32; sEA = 36; sWS = 40; sH = 44; sPF = 48; sOUT = 52; sOP = 56; sDBG = 60
sWE = 64; sWH = 68; sPOS = 72; sWX = 76; sM0 = 80; sM1 = 82; sMASK = 4
s_w = 3; s_b = 84; s_nb0 = 85; s_rb = 86; s_cb = 87; s_stg = 88; s_t0 = 89; s_t1 = 90; s_t2 = 91
sC = 92; sLO = 94; sQ = 96; s_done = 98; s_take = 99; s_T = 100; s_c = 101
s_p = 64; s_pn = 65; s_end = 66; s_p8 = 67; s_lim = 68; s_nbN = 69; s_nbCur = 70; s_nbOld = 71
s_flN = 72; s_flush = 73; s_cntN = 74; s_cntCur = 75; s_need = 76; s_mkB = 77; sMK = 78; sMV = 80; s_o = 36; s_dbg = 82; L_TOK = L_FLAG + 16; L_BST = L_STG + 16384

DOC = '''; One launch, 256 co-resident workgroups (one per CU, 8 waves each).  Workgroup c
;     together with B = -log2(e) * h[bin] @ w_e[64:128] (bf16) and fp32 positions of its own bin;
;  2. hands over through tagged rows in d_ws (the tag is the word the previous launch left there + 1,
;     published through d_debug; it only tells this launch's rows from older ones);
;     silu on the VALU, segment sums of m and diff*m by MFMA over a sliding 8-node window, f64 LDS accumulators;
'''
NLN2 = LN2 | 0x80000000
s_rem = 83

def gen(opt):
    opt.setdefault('pfp', 1); opt.setdefault('pfb', 0); opt.setdefault('sleep', 0); opt.setdefault('cpf', 21)
    fold = opt.get('fold', 1)
    dhs = fold and opt.get('dhs', 0)
    pair = fold and opt.get('pair', 0)
    assert not (pair and dhs)
    import struct as _st
    KSC = 0x21800000
    NLN2 = globals()['NLN2'] if not pair else _st.unpack('<I', _st.pack('<f', -0.6931471805599453 * 2.0 ** -60))[0]
    ordr = opt.get('ord', 1)
    FL = {0: "", 1: " nt", 2: " sc1", 3: " sc1 nt", 4: " sc0 sc1 nt", 5: " sc0 sc1"}
    EN = FL[opt.get('en', 3)]; ON = FL[opt.get('on', 3)]; RN = FL[opt.get('rn', 2)]; SN = FL[opt.get('sn', 2)]; BN = FL[opt.get('bn', 2)]
    SC = " sc1"
    OF = {0: "", 1: " sc1", 2: " nt", 3: " sc0 sc1", 4: " sc1 nt", 5: " sc0 sc1 nt"}[opt.get("of", 5)]
    e = Em(); nm = "standalone__cheap_equivariant_egnn__graph_kernel"
    stamp, real, fin = mk_stamp(e, opt, vST)
    e(f".globl {nm}\n.p2align 8\n.type {nm},@function\n{nm}:")
    cpf = ""
    if opt.get('cpf', 0):
        n2 = opt.get('cpf')
        cpf = f"s_getpc_b64 s[26:27]\nv_lshlrev_b32 v{HS}, 7, v1\nv_add_u32 v{HS+1}, 0x2000, v{HS}\nglobal_load_dword v{HS+2}, v{HS}, s[26:27] offset:512\n"
        cpf += f"s_mov_b64 exec, {hex((1 << n2) - 1)}\nglobal_load_dword v{HS+3}, v{HS+1}, s[26:27] offset:512\ns_mov_b64 exec, -1"
    o8 = T0 + 4; t8 = T0 + 5
    rho = PD; hb = PD + 1; f3 = PD + 2; r4 = PD + 3; slot = WP; g1 = WP + 1; c4 = RW; tq = RW + 1
    cp2 = opt.get('cp2', 12)
    GN = EN
    e(f"""
    s_cmpk_ge_u32 s2, {NW}
    s_cbranch_scc1 K_end
    s_load_dwordx16 s[4:19], s[0:1], 0
    s_getpc_b64 s[26:27]
    v_lshrrev_b32 v{T0+2}, 6, v0
    v_and_b32 v1, 63, v0
    v_mad_u32_u24 v{HS}, v{T0+2}, {cp2}, v1
    v_lshlrev_b32 v{HS}, 7, v{HS}
    s_bfm_b64 exec, {cp2}, 0
    global_load_dword v{HS+1}, v{HS}, s[26:27]
    s_mov_b64 exec, -1
    s_load_dwordx4 s[20:23], s[0:1], 64
    s_load_dwordx2 s[24:25], s[0:1], 80
    s_mul_i32 s{s_t0}, s2, {NQ}
    v_add_u32 v{T0}, s{s_t0}, v0
    v_lshlrev_b32 v{ID}, 4, v{T0}
    v_lshlrev_b32 v{ID+2}, 3, v{T0}
    s_waitcnt lgkmcnt(0)
    """)
    fs = opt.get('fs', 0)
    e.v('dst0' if fs == 2 else 'dst', f"global_load_dwordx4 {vr(106,4)}, v{ID}, s[12:13]{GN}")
    if fs:
        e.v('dst', f"global_load_dwordx4 {vr(110,4)}, v{ID}, s[10:11]{GN}")
        e.v('dst', f"global_load_dwordx2 {vr(114,2)}, v{ID+2}, s[8:9]{GN}")
    e(f"""
    v_add_u32 v{T0+1}, 0x200, v{T0}
    s_mov_b32 s{s_c}, {E//4}
    v_cmp_gt_u32 {sr(sM1,2)}, s{s_c}, v{T0+1}
    v_cmp_gt_u32 vcc, {NQ-512}, v0
    v_lshlrev_b32 v{ID+1}, 4, v{T0+1}
    v_readfirstlane_b32 s{s_w}, v{T0+2}
    s_and_b64 {sr(sM1,2)}, {sr(sM1,2)}, vcc
    """)
    srd(e, sDST, 12, 13, E * 4)
    e(f"s_mov_b64 exec, {sr(sM1,2)}")
    e.v('dst', f"buffer_load_dwordx4 {vr(116,4)}, v{ID+1}, {sr(sDST,4)}, 0 offen{EN}")
    e(f"""
    s_mov_b64 exec, -1
    v_mov_b32 v{ZQ}, 0
    v_cmp_gt_u32 {sr(sM0,2)}, s{s_c}, v{T0}
    s_mov_b32 s{s_c}, s2
    s_and_b32 s{s_b}, s2, 7
    s_lshl_b32 s{s_b}, s{s_b}, 5
    s_lshr_b32 s{s_t0}, s2, 3
    s_add_u32 s{s_b}, s{s_b}, s{s_t0}
    s_mul_i32 s{s_nb0}, s{s_b}, {NPB}
    s_lshr_b32 s{s_rb}, s{s_w}, 1
    s_and_b32 s{s_cb}, s{s_w}, 1
    v_lshlrev_b32 v{ID+3}, 3, v{T0+1}
    v_lshrrev_b32 v{o8}, 3, v1
    v_and_b32 v{t8}, 7, v1
    v_mov_b32 v{ZQ+1}, 0
    v_mov_b32 v{ZQ+2}, 0
    v_mov_b32 v{ZQ+3}, 0
    v_lshlrev_b32 v{tq}, 4, v0
    s_cmp_lg_u32 s{s_w}, 7
    s_cbranch_scc1 K_nh1
    ds_write_b128 v{tq}, {vr(ZQ,4)} offset:{L_H1-7*1024}
    K_nh1:
    """)
    def spin(tag):
        if opt.get('x_spin') == tag:
            e(f"""
            s_memtime s[0:1]
            s_waitcnt lgkmcnt(0)
            s_add_u32 s2, s0, 20000
            KX_spin:
            s_memtime s[0:1]
            s_waitcnt lgkmcnt(0)
            s_sub_u32 s0, s0, s2
            s_cmp_lt_i32 s0, 0
            s_cbranch_scc1 KX_spin
            """)
    stamp0 = stamp
    def stamp(name):
        stamp0(name)
        if opt.get('x_pad') == name:
            e(f"""
            KX_pad:
            s_memrealtime s[0:1]
            s_waitcnt lgkmcnt(0)
            s_sub_u32 s0, s0, s2
            s_cmp_lt_u32 s0, 5000
            s_cbranch_scc1 KX_pad
            """)
    assert not opt.get('x_pad')
    spin(1)
    real(); stamp('start')
    def rt(lane):
        if opt.get('stamp'): e(f"s_memrealtime s[0:1]\ns_waitcnt lgkmcnt(0)\nv_writelane_b32 v{vST}, s0, {lane}")


    D0, S0, E0, D1, S1, E1 = 106, 110, 114, 116, 120, 124
    REC1 = 126; HA = 142; RK = 150; SCN = 158; PO = OH2; TK = OH1A; RWV = SCR + 16
    vRO = 251; vBG = 252; vBW = 253; nd = vBG; nd2 = 254
    sHR = sH; sBS = sPOS
    HA4 = AW; vONE = PS + 1; vL16 = PS + 2
    aE = ID
    HO = [HR, HR + 4, ACC1, ACC1 + 4]
    def rd(tag, dst, off):
        for s_ in range(4):
            for t in range(2): e.d(tag, f"ds_read_b64_tr_b16 {vr(dst+4*s_+2*t,2)}, v{T0+1+(s_>>1)} offset:{off+1024*(s_&1)+512*t}")
    def mm(d, a):
        for s_ in range(4): e(mfma(d, a + 4 * s_, HO[s_], None if s_ == 0 else d))
    def scale_pack(src):
        if fold:
            for r in range(16): e(f"v_mul_f32 v{src+r}, s7, v{src+r}")
        for r in range(8): e(f"v_cvt_pk_bf16_f32 v{AW+r}, v{src+2*r}, v{src+2*r+1}")
    srd(e, sWS, 24, 25, WS_SZ)
    e(f"""
    s_lshl_b32 s{s_t0}, s{s_c}, 3
    s_add_u32 s{s_t0}, s{s_t0}, s{s_w}
    s_cmp_eq_u32 s{s_t0}, 5
    s_cselect_b64 {sr(26,2)}, 1, 0
    s_mov_b32 s{s_t2}, {WS_TOK}
    s_mov_b64 exec, {sr(26,2)}
    """)
    e.v('dst', f"buffer_load_dwordx2 {vr(TK,2)}, v{ZQ}, {sr(sWS,4)}, s{s_t2} offen{SC}")
    e("s_mov_b64 exec, -1")
    srd(e, sHR, 4, 5, N, stride=128); srd(e, sWE, 14, 15, 130 * 128)
    e(f"""
    s_lshl_b32 s12, s{s_w}, 11
    s_lshl_b32 s13, s{s_w}, 10
    s_mov_b32 s14, 8192
    s_lshl_b32 s{s_t0}, s{s_w}, 4
    s_add_u32 s{s_t0}, s{s_t0}, s{s_nb0}
    v_lshrrev_b32 v{vPI}, 4, v1
    v_xor_b32 v{vPI}, v{t8}, v{vPI}
    v_lshlrev_b32 v{IDX+1}, 4, v{vPI}
    v_add_u32 v{IDX}, s{s_t0}, v{o8}
    v_xor_b32 v{IDX+3}, 64, v{IDX+1}
    v_add_u32 v{IDX+2}, 8, v{IDX}
    v_mov_b32 v{IDX+5}, v{IDX+1}
    """)
    if opt.get('own98', 1):
        e(f"""
        s_add_u32 s{s_t0}, s{s_nb0}, {NPB}
        v_cmp_gt_u32 vcc, s{s_t0}, v{IDX}
        v_cmp_gt_u32 {sr(0,2)}, s{s_t0}, v{IDX+2}
        v_mov_b32 v{vPI}, 0x100000
        v_cndmask_b32 v{IDX}, v{vPI}, v{IDX}, vcc
        v_cndmask_b32 v{IDX+2}, v{vPI}, v{IDX+2}, {sr(0,2)}
        """)
    def own_loads():
        e(f"s_add_u32 m0, s12, {L_STG}\ns_nop 0")
        e.v('own', f"buffer_load_dwordx4 {vr(IDX,2)}, {sr(sHR,4)}, 0 idxen offen{ON} lds")
        e(f"s_add_u32 m0, s12, {L_STG+1024}\ns_nop 0")
        e.v('own', f"buffer_load_dwordx4 {vr(IDX+2,2)}, {sr(sHR,4)}, 0 idxen offen{ON} lds")
        e(f"s_add_u32 m0, s13, {L_W+8192}\ns_nop 0")
        e.v('own', f"buffer_load_dwordx4 v{tq}, {sr(sWE,4)}, s14 offen lds")
    oe = opt.get('oe', 1)
    if not ordr or oe in (1, 2): own_loads()
    def src_loads():
        if not fs:
            e.v('src', f"buffer_load_dwordx4 {vr(S0,4)}, v{aE}, {sr(sSRC,4)}, 0 offen{EN}")
            e.v('src', f"buffer_load_dwordx2 {vr(E0,2)}, v{aE+2}, {sr(sEA,4)}, 0 offen{EN}")
        e(f"s_mov_b64 exec, {sr(sM1,2)}")
        e.v('src', f"buffer_load_dwordx4 {vr(S1,4)}, v{aE+1}, {sr(sSRC,4)}, 0 offen{EN}")
        e.v('src', f"buffer_load_dwordx2 {vr(E1,2)}, v{aE+3}, {sr(sEA,4)}, 0 offen{EN}")
        e(f"s_cmp_ge_u32 s{s_w}, 6\ns_cselect_b64 exec, -1, 0")
        for k in range(3): e.v('src', f"buffer_load_ushort v{PO+k}, v{PO+6}, {sr(sPOS,4)}, 0 offen offset:{2*k}")
        e(f"s_cmp_eq_u32 s{s_w}, 5\ns_cselect_b64 exec, -1, 0\ns_mov_b32 s{s_t0}, 16384")
        for k in range(2): e.v('src', f"buffer_load_ushort v{PO+k}, v{PO+7}, {sr(sWE,4)}, s{s_t0} offen offset:{128*k}")
        e("s_mov_b64 exec, -1")
    stamp('iss')
    srd(e, sSRC, 10, 11, E * 4); srd(e, sEA, 8, 9, E * 2)
    srd(e, sPOS, 6, 7, N * 6); srd(e, sDBG, 22, 23, 256)
    e(f"""
    v_mov_b32 v{IDX+7}, v{IDX+3}
    v_and_b32 v{rho}, 31, v1
    v_lshrrev_b32 v{hb}, 5, v1
    v_bfe_u32 v{f3}, v1, 1, 3
    v_bfe_u32 v{r4}, v1, 2, 2
    v_bfe_u32 v{g1}, v1, 4, 1
    v_and_b32 v{c4}, 3, v1
    v_subrev_u32 v{PO+5}, 0x180, v0
    v_add_u32 v{PO+4}, s{s_nb0}, v{PO+5}
    v_mul_u32_u24 v{PO+6}, 6, v{PO+4}
    v_lshlrev_b32 v{PO+7}, 1, v1
    v_cmp_gt_u32 vcc, 152, v0
    ds_write_b128 v{tq}, {vr(ZQ,4)} offset:{L_OHT}
    ds_write_b128 v{tq}, {vr(ZQ,4)} offset:{L_OHT+8192}
    s_mov_b64 exec, vcc
    ds_write_b128 v{tq}, {vr(ZQ,4)} offset:{L_OHT+16384}
    s_mov_b64 exec, -1
    """)
    if ordr and oe != 1: src_loads()
    if oe == 3: own_loads()
    srd(e, sWH, 18, 19, 128 * 128); srd(e, sWX, 16, 17, 128)
    srd(e, sPF, 24, 25, N + 216, add=WS_POS, stride=16)
    srd(e, sOUT, 20, 21, N * 128); srd(e, sOP, 20, 21, N * 6, add=N * 128)
    if opt.get('tlb'):
        a = HS + 12
        e(f"""
        v_mov_b32 v{a}, 0
        s_lshl_b32 s{s_t1}, s{s_nb0}, 7
        s_cmp_lg_u32 s{s_w}, 6
        s_cbranch_scc1 K_notlb
        s_mul_i32 s{s_t0}, s{s_c}, {RECB}
        v_mov_b32 v{a}, s{s_t0}
        s_lshl_b32 s{s_t0}, s{s_c}, 11
        s_add_u32 s{s_t0}, s{s_t0}, {WS_OFF}
        v_writelane_b32 v{a}, s{s_t0}, 1
        s_add_u32 s{s_t0}, s{s_t1}, {WS_B}
        v_writelane_b32 v{a}, s{s_t0}, 2
        s_lshl_b32 s{s_t0}, s{s_c}, 7
        s_add_u32 s{s_t0}, s{s_t0}, {WS_FLG}
        v_writelane_b32 v{a}, s{s_t0}, 3
        K_notlb:
        s_cmp_eq_u32 s{s_w}, 6
        s_cselect_b64 exec, 15, 0
        """)
        e.v('tlb', f"buffer_load_dword v{a+1}, v{a}, {sr(sWS,4)}, 0 offen")
        e("s_cselect_b64 exec, 1, 0")
        e.v('tlb', f"buffer_load_dword v{a+2}, v{ZQ}, {sr(sOUT,4)}, s{s_t1} offen")
        e.v('tlb', f"buffer_load_ushort v{a+3}, v{ZQ}, {sr(sOP,4)}, 0 offen")
        e("s_mov_b64 exec, -1")
    e(f"""
    s_mov_b32 s4, 42800
    s_mov_b32 s5, -98
    s_mov_b32 s6, 0xffff0000
    s_mov_b32 s7, {NLOG2E}
    s_mul_i32 s8, s{s_c}, {RECB}
    s_add_u32 s9, s8, 8192
    v_mov_b32 v{vONE}, 1
    v_lshlrev_b32 v{vL16}, 4, v1
    v_lshl_or_b32 v{slot}, v{g1}, 2, v{c4}
    v_lshl_or_b32 v{T0}, v{hb}, 3, v{r4}
    v_lshlrev_b32 v{T0}, 7, v{T0}
    v_and_b32 v{T0+1}, 1, v{c4}
    v_lshrrev_b32 v{T0+2}, 1, v{c4}
    v_lshlrev_b32 v{T0+1}, 5, v{T0+1}
    v_lshl_or_b32 v{T0+1}, v{g1}, 4, v{T0+1}
    v_lshl_or_b32 v{T0+1}, v{T0+2}, 3, v{T0+1}
    s_lshl_b32 s{s_t0}, s{s_cb}, 6
    s_add_u32 s{s_t0}, s{s_t0}, {L_W}
    v_add3_u32 v{T0+3}, v{T0}, v{T0+1}, s{s_t0}
    v_lshl_add_u32 v{T0+1}, v{hb}, 10, v{T0+3}
    s_lshl_b32 s{s_t0}, s{s_cb}, 12
    s_xor_b32 s{s_t1}, s{s_t0}, 4096
    v_add_u32 v{T0+2}, s{s_t1}, v{T0+1}
    v_add_u32 v{T0+1}, s{s_t0}, v{T0+1}
    s_lshl_b32 s{s_t0}, s{s_rb}, 12
    s_add_u32 s{s_t1}, s{s_t0}, {L_STG}
    v_lshl_add_u32 v{HA4+5}, v{rho}, 7, s{s_t1}
    s_lshl_b32 s{s_t1}, s{s_cb}, 2
    v_lshlrev_b32 v{HA4+4}, 1, v{hb}
    v_xor_b32 v{HA4+4}, s{s_t1}, v{HA4+4}
    v_xor_b32 v{HA4+4}, v{HA4+4}, v{f3}
    """)
    for s_ in range(4):
        k = 4 * (s_ >> 1) + (s_ & 1)
        e(f"v_xor_b32 v{HA4+s_}, {k}, v{HA4+4}\nv_lshl_add_u32 v{HA4+s_}, v{HA4+s_}, 4, v{HA4+5}")
    e(f"""
    s_add_u32 s{s_t1}, s12, {L_BST}
    v_and_b32 v{T0}, 3, v{f3}
    v_lshlrev_b32 v{vBW}, 1, v{hb}
    v_xor_b32 v{vBW}, v{vBW}, v{T0}
    v_lshlrev_b32 v{vBW}, 4, v{vBW}
    v_lshl_add_u32 v{vBW}, v{rho}, 6, v{vBW}
    v_add_u32 v{vBW}, s{s_t1}, v{vBW}
    v_add_u32 v{ID+5}, s{s_t1}, v{vL16}
    s_lshl_b32 s{s_t0}, s{s_rb}, 5
    v_lshrrev_b32 v{T0}, 2, v1
    v_add_u32 v{T0}, s{s_t0}, v{T0}
    v_cmp_gt_u32 vcc, {NPB}, v{T0}
    s_movk_i32 s{s_t1}, {NPB-16}
    v_cmp_gt_u32 {sr(18,2)}, s{s_t1}, v{T0}
    v_add_u32 v{T0}, s{s_nb0}, v{T0}
    v_xor_b32 v{vBG}, v{o8}, v1
    v_and_b32 v{vBG}, 3, v{vBG}
    v_lshlrev_b32 v{T0}, 7, v{T0}
    v_lshl_add_u32 v{T0}, v{vBG}, 4, v{T0}
    s_lshl_b32 s{s_t1}, s{s_cb}, 6
    v_add_u32 v{T0}, s{s_t1}, v{T0}
    v_mov_b32 v{vPI}, 0x1000000
    v_cndmask_b32 v{vBG}, v{vPI}, v{T0}, vcc
    v_cndmask_b32 v{nd2}, v{vPI}, v{T0}, {sr(18,2)}
    v_cmp_gt_u32 vcc, 468, v0
    v_lshlrev_b32 v{vRO}, 5, v1
    s_lshl_b32 s15, s{s_c}, 11
    s_add_u32 s15, s15, {WS_OFF}
    v_cndmask_b32 v{vPI}, v{vPI}, v{tq}, vcc
    v_lshlrev_b32 v{ID+4}, 1, v{rho}
    """)
    srcpos = opt.get('srcpos', 1) if (not ordr or oe == 1) else -1
    e("s_waitcnt lgkmcnt(0)\ns_barrier")
    stamp('Ba')
    def hist_round(r, D):
        for k in range(4): e(f"v_mul_u32_u24 v{HA+4*r+k}, s4, v{D+k}")
        for k in range(4): e(f"v_lshrrev_b32 v{HA+4*r+k}, 22, v{HA+4*r+k}")
        for k in range(4): e(f"v_mad_i32_i24 v{REC1+8*r+2*k+1}, v{HA+4*r+k}, s5, v{D+k}")
        for k in range(4): e(f"v_lshlrev_b32 v{HA+4*r+k}, 2, v{HA+4*r+k}")
        for k in range(4): e(f"ds_add_rtn_u32 v{RK+4*r+k}, v{HA+4*r+k}, v{vONE} offset:{L_H1}")
    if fs == 2:
        e.wvm('dst0')
        hist_round(0, D0)
    e.wvm('dst')
    stamp('dst')
    if srcpos == 1: src_loads()
    e(f"""
    s_mov_b64 exec, {sr(26,2)}
    s_cbranch_execz K_notok
    v_add_u32 v{TK}, 1, v{TK}
    v_add_u32 v{TK+1}, 1, v{TK+1}
    v_mov_b32 v{TK+4}, v{TK}
    v_lshl_or_b32 v{TK+5}, v{TK+1}, 24, 1
    buffer_store_dwordx2 {vr(TK+4,2)}, v{ZQ}, {sr(sDBG,4)}, 0 offen{SC}
    buffer_store_dwordx2 {vr(TK,2)}, v{ZQ}, {sr(sWS,4)}, s{s_t2} offen{SC}
    K_notok:
    """)
    if fs != 2:
        e(f"s_mov_b64 exec, {sr(sM0,2)}")
        hist_round(0, D0)
    e(f"s_mov_b64 exec, {sr(sM1,2)}\ns_cbranch_execz K_h1")
    hist_round(1, D1)
    e("K_h1:\ns_mov_b64 exec, -1")
    if srcpos == 2: src_loads()
    def w1_loads():
        e(f"s_add_u32 m0, s13, {L_W}\ns_nop 0")
        e.v('w1', f"buffer_load_dwordx4 v{tq}, {sr(sWE,4)}, 0 offen lds")
        e.v('w1', f"buffer_load_ushort v{wx0}, v{ID+4}, {sr(sWX,4)}, 0 offen")
        e.v('w1', f"buffer_load_ushort v{wx1}, v{ID+4}, {sr(sWX,4)}, 0 offen offset:64")
    def wh_loads():
        if ordr != 4: tok_load()
        e(f"s_add_u32 m0, s12, {L_W+16384}\ns_nop 0")
        e.v('wh', f"buffer_load_dwordx4 v{vL16}, {sr(sWH,4)}, s12 offen lds")
        e.v('wh', f"buffer_load_dwordx4 v{vL16}, {sr(sWH,4)}, s12 offen offset:1024 lds")
    def tok_load():
        e(f"s_cmp_eq_u32 s{s_w}, 4\ns_cselect_b64 exec, -1, 0")
        e.v('tok', f"buffer_load_dwordx2 {vr(TK,2)}, v{ZQ}, {sr(sDBG,4)}, 0 offen{SC}")
        e("s_mov_b64 exec, -1")
    def b_reads():
        for s_ in range(4): e.d('ho', f"ds_read_b128 {vr(HO[s_],4)}, v{HA4+s_}")
        rd('w2', SCR, 8192)
    def b_out(pre, hold=False):
        scale_pack(ACC0)
        e(f"ds_write_b128 v{vBW}, {vr(AW,4)}\nds_write_b128 v{T0}, {vr(AW+4,4)}")
        e(f"ds_read_b128 {vr(ACC0,4)}, v{ID+5}\nds_read_b128 {vr(ACC0+4,4)}, v{ID+5} offset:1024")
        pre()
        srd(e, sBS, 24, 25, N * 128, add=WS_B)
        if hold:
            e.wds0(); return
        e("s_waitcnt lgkmcnt(1)")
        e.v('bst', f"buffer_store_dwordx4 {vr(ACC0,4)}, v{nd}, {sr(sBS,4)}, 0 offen{BN}")
        e("s_waitcnt lgkmcnt(0)")
        e.v('bst', f"buffer_store_dwordx4 {vr(ACC0+4,4)}, v{nd2}, {sr(sBS,4)}, 0 offen offset:2048{BN}")
        e.ds = []
    if not ordr: e.wvm('own')
    e("s_waitcnt lgkmcnt(0)\ns_barrier")
    e.ds = []
    stamp('Bb')
    e.d('h', f"ds_read_b128 {vr(SCN,4)}, v{vL16} offset:{L_H1}")
    late = ordr == 4
    if not late and not oe: own_loads()
    e.wds('h')
    e(f"""
    v_add_u32 v{SCN+4}, v{SCN}, v{SCN+1}
    v_add_u32 v{SCN+5}, v{SCN+4}, v{SCN+2}
    v_add_u32 v{SCN+6}, v{SCN+5}, v{SCN+3}
    v_mov_b32 v{SCN+7}, v{SCN+6}
    """)
    wave_scan(e, SCN + 7)
    e(f"""
    v_sub_u32 v{SCN+8}, v{SCN+7}, v{SCN+6}
    v_add_u32 v{SCN+9}, v{SCN+8}, v{SCN}
    v_add_u32 v{SCN+10}, v{SCN+8}, v{SCN+4}
    v_add_u32 v{SCN+11}, v{SCN+8}, v{SCN+5}
    """)
    e.d('bw', f"ds_write_b128 v{vL16}, {vr(SCN+8,4)} offset:{L_B1}")
    e(f"s_mov_b64 exec, {sr(sM0,2)}")
    for k in range(4): e.d('b0', f"ds_read_b32 v{HA+k}, v{HA+k} offset:{L_B1}")
    e(f"s_mov_b64 exec, {sr(sM1,2)}")
    for k in range(4, 8): e.d('b1', f"ds_read_b32 v{HA+k}, v{HA+k} offset:{L_B1}")
    e("s_mov_b64 exec, -1")
    if not ordr:
        e.wds('w2')
        mm(ACC0, SCR)
    def rec_words():
        for r, (S, EE) in enumerate(((S0, E0), (S1, E1))):
            e(f"""
            v_lshl_or_b32 v{REC1+8*r}, v{EE}, 16, v{S}
            v_and_or_b32 v{REC1+8*r+2}, v{EE}, s6, v{S+1}
            v_lshl_or_b32 v{REC1+8*r+4}, v{EE+1}, 16, v{S+2}
            v_and_or_b32 v{REC1+8*r+6}, v{EE+1}, s6, v{S+3}
            """)
    if ordr:
        e.wvm('src'); rec_words()
    e.wds('b1')
    for k in range(8): e(f"v_add_u32 v{HA+k}, v{HA+k}, v{RK+k}")
    e(f"s_mov_b64 exec, {sr(sM0,2)}")
    for k in range(4): e(f"ds_write_b8 v{HA+k}, v{REC1+2*k+1} offset:{L_REC+DOFF}")
    e(f"s_mov_b64 exec, {sr(sM1,2)}")
    for k in range(4, 8): e(f"ds_write_b8 v{HA+k}, v{REC1+2*k+1} offset:{L_REC+DOFF}")
    e(f"s_mov_b64 exec, -1\nv_xor_b32 v{T0}, 16, v{vBW}")
    for k in range(8): e(f"v_lshlrev_b32 v{HA+k}, 2, v{HA+k}")
    if not ordr: b_out(wh_loads)
    stamp('scan')
    if not ordr:
        e.wvm('src'); rec_words()
    stamp('src')
    for r in range(2):
        e(f"s_mov_b64 exec, {sr(sM0 if r == 0 else sM1,2)}")
        for k in range(4 * r, 4 * r + 4): e(f"ds_write_b32 v{HA+k}, v{REC1+2*k} offset:{L_REC}")
    e("s_mov_b64 exec, -1")
    e(f"""
    s_cmp_lt_u32 s{s_w}, 6
    s_cbranch_scc1 K_nopf
    s_mov_b32 s{s_t0}, {N}
    v_cmp_gt_u32 vcc, {NPB}, v{PO+5}
    v_cmp_gt_u32 {sr(16,2)}, s{s_t0}, v{PO+4}
    v_lshlrev_b32 v{PO}, 16, v{PO}
    v_lshlrev_b32 v{PO+1}, 16, v{PO+1}
    v_lshlrev_b32 v{PO+2}, 16, v{PO+2}
    v_mov_b32 v{PO+3}, 0
    v_lshlrev_b32 v{PO+5}, 4, v{PO+5}
    ds_write_b128 v{PO+5}, {vr(PO,4)} offset:{L_POSD}
    s_and_b64 {sr(16,2)}, {sr(16,2)}, vcc
    K_nopf:
    """)
    nobx = opt.get('nobx', 0)
    if late: tok_load()
    elif ordr == 1:
        w1_loads(); wh_loads()
        if 'own' in e.vm: e.wvm('own')
    elif ordr == 2:
        w1_loads(); wh_loads()
    else: e.wvm('wh' if nobx else 'w1')
    e("s_waitcnt lgkmcnt(0)\ns_barrier")
    e.ds = []
    stamp('Bc')
    for r in range(2): e.d(f'c{r}', f"ds_read_b128 {vr(PRE0+4*r,4)}, v{tq} offset:{L_REC+8192*r}")
    if ordr == 1: b_reads()
    if not ordr: rd('w1', SCR, 0)
    for r in range(2):
        e.wds(f'c{r}')
        e.v('st', f"buffer_store_dwordx4 {vr(PRE0+4*r,4)}, v{tq if r < 1 else vPI}, {sr(sWS,4)}, s{8+r} offen{SN}")
    def posf_store():
        e(f"s_cmp_ge_u32 s{s_w}, 6\ns_cselect_b64 exec, {sr(16,2)}, 0")
        e.v('bst', f"buffer_store_dwordx4 {vr(PO,4)}, v{PO+4}, {sr(sPF,4)}, 0 idxen{SC}")
        e("s_mov_b64 exec, -1")
    def row_prep():
        e(f"""
        s_cmp_lg_u32 s{s_w}, 4
        s_cbranch_scc1 K_row_done
        s_mov_b32 s{s_t0}, 0
        K_tk:
        v_readfirstlane_b32 s{s_t1}, v{TK+1}
        s_add_u32 s{s_t0}, s{s_t0}, 1
        s_cmp_gt_u32 s{s_t0}, 0x40000
        s_cbranch_scc1 K_tkok
        s_bitcmp1_b32 s{s_t1}, 0
        s_cbranch_scc1 K_tkok
        buffer_load_dwordx2 {vr(TK,2)}, v{ZQ}, {sr(sDBG,4)}, 0 offen{SC}
        s_waitcnt vmcnt(0)
        s_branch K_tk
        K_tkok:
        v_and_b32 v{TK+1}, 0xff000000, v{TK+1}
        v_mov_b32 v{TK+2}, {L_TOK}
        ds_write_b64 v{TK+2}, {vr(TK,2)}
        """)
        for k in range(4):
            e(f"v_lshl_or_b32 v{RWV+2*k}, v{SCN+k}, 12, v{SCN+8+k}\nv_mov_b32 v{RWV+2*k+1}, v{TK}\nv_or_b32 v{RWV+2*k}, v{RWV+2*k}, v{TK+1}")

        e("K_row_done:")
    def row_store():
        e(f"s_cmp_eq_u32 s{s_w}, 4\ns_cselect_b64 exec, -1, 0")
        e.v('row', f"buffer_store_dwordx4 {vr(RWV,4)}, v{vRO}, {sr(sWS,4)}, s15 offen{SC}")
        e.v('row', f"buffer_store_dwordx4 {vr(RWV+4,4)}, v{vRO}, {sr(sWS,4)}, s15 offen offset:16{SC}")
        e("s_mov_b64 exec, -1")
    bl = opt.get('bl', 0)
    if not late:
        if not bl: posf_store()
        e.wds('w2')
        mm(ACC0, SCR)
        e.wvm('wh')
        e("s_nop 6")
        row_prep()
        e("s_nop 2")
        b_out(lambda: None, bl)
        stamp('Bx')
        e.wvm('st')
        e("s_barrier")
        stamp('Bd'); rt(27)
        row_store()
        nrow = 2
        if bl:
            e.v('bst', f"buffer_store_dwordx4 {vr(ACC0,4)}, v{nd}, {sr(sBS,4)}, 0 offen{BN}")
            e.v('bst', f"buffer_store_dwordx4 {vr(ACC0+4,4)}, v{nd2}, {sr(sBS,4)}, 0 offen offset:2048{BN}")
            posf_store()
            nrow = 0
    else:
        own_loads(); posf_store(); w1_loads(); wh_loads()
        sv = list(e.vm); e.wvm('tok'); e.vm = sv
        row_prep()
        stamp('Bx')
        e.wvm('st')
        e("s_waitcnt lgkmcnt(0)\ns_barrier")
        stamp('Bd'); rt(27)
        row_store()
        e.wvm('wh')
        e("s_barrier")
        b_reads()
        e.wds('w2')
        mm(ACC0, SCR)
        rd('w1', SCR, 0)
        e("s_nop 4")
        b_out(lambda: None)
        nrow = 0
    e.d('tk', f"ds_read_b64 {vr(TK,2)}, v{ZQ} offset:{L_TOK}")
    if not late: rd('w1', SCR, 0)
    e.wds0()
    mm(ACC0, SCR)
    e(f"v_readfirstlane_b32 s60, v{TK}\nv_readfirstlane_b32 s61, v{TK+1}")
    srd(e, sH, 24, 25, N, add=WS_B - 3072, stride=128)
    e(f"""
    s_lshl_b32 s{s_t0}, s{s_rb}, 5
    v_add_u32 v{PS}, s{s_t0}, v{rho}
    v_mul_u32_u24 v{PS}, {ATS}, v{PS}
    s_lshl_b32 s{s_t0}, s{s_cb}, 6
    s_add_u32 s{s_t0}, s{s_t0}, {L_ATAB}
    v_lshl_add_u32 v{PS}, v{hb}, 5, v{PS}
    v_add_u32 v{PS}, s{s_t0}, v{PS}
    """)
    rd('wh', TMP, 16384)
    for s_ in range(4):
        for t in range(2): e.d('wm', f"ds_read_b64_tr_b16 {vr(WHM+4*s_+2*t,2)}, v{T0+3} offset:{24576+2048*s_+512*t}")
    scale_pack(ACC0)
    e.wds('wh')
    mm(DH, TMP)
    e(f"ds_write_b128 v{PS}, {vr(AW,4)}\nds_write_b128 v{PS}, {vr(AW+4,4)} offset:16")
    e(mfma(ACC0, ZQ, ZQ)); e(mfma(ACC1, ZQ, ZQ))
    e(f"""
    s_cmp_eq_u32 s{s_w}, 5
    s_cbranch_scc1 K_side5
    s_cmp_lg_u32 s{s_w}, 4
    s_cbranch_scc1 K_side_done
    v_mul_u32_u24 v{PO}, 18, v1
    v_mov_b32 v{PO+1}, 0x3f80
    s_mov_b64 exec, 0xff
    ds_write_b16 v{PO}, v{PO+1} offset:{L_OHT}
    s_mov_b64 exec, -1
    """)
    e("s_branch K_side_done\nK_side5:")
    if not fold:
        e(f"ds_write_b16 v{PO+7}, v{PO} offset:{L_WDA}\nds_write_b16 v{PO+7}, v{PO+1} offset:{L_WDA+ATS}")
    else:
        e(f"""
        v_lshlrev_b32 v{PO}, 16, v{PO}
        v_lshlrev_b32 v{PO+1}, 16, v{PO+1}
        v_mul_f32 v{PO}, s7, v{PO}
        v_mul_f32 v{PO+1}, s7, v{PO+1}
        v_cvt_pk_bf16_f32 v{PO+2}, v{PO}, v{PO+1}
        v_lshlrev_b32 v{PO+3}, 16, v{PO+2}
        v_sub_f32 v{PO}, v{PO}, v{PO+3}
        v_and_b32 v{PO+3}, s6, v{PO+2}
        v_sub_f32 v{PO+1}, v{PO+1}, v{PO+3}
        v_cvt_pk_bf16_f32 v{PO+3}, v{PO}, v{PO+1}
        ds_write_b16 v{PO+7}, v{PO+2} offset:{L_WDA}
        ds_write_b16_d16_hi v{PO+7}, v{PO+2} offset:{L_WDA+ATS}
        ds_write_b16 v{PO+7}, v{PO+3} offset:{L_WDA+2*ATS}
        ds_write_b16_d16_hi v{PO+7}, v{PO+3} offset:{L_WDA+3*ATS}
        """)
    e(f"""
    K_side_done:
    v_lshlrev_b32 v{ID}, 3, v{hb}
    v_sub_u32 v{ID}, v{rho}, v{ID}
    v_subrev_u32 v{ID+4}, 16, v{ID}
    v_min_u32 v{ID}, 8, v{ID}
    v_min_u32 v{ID+4}, 8, v{ID+4}
    v_lshlrev_b32 v{ID}, 4, v{ID}
    v_lshlrev_b32 v{ID+4}, 4, v{ID+4}
    s_mov_b32 s{s_done}, 0
    s_mov_b32 s{s_take}, 32
    v_add_u32 v{T0+3}, {L_ACC}, v{tq}
    v_cmp_gt_u32 vcc, 91, v0
    s_lshl_b32 s14, s{s_c}, 7
    s_add_u32 s14, s14, {WS_FLG}
    """)
    OFFV = 162; cREC = 174; vT2D = 175; tA = 176; tB = 177
    RECV = PRE0; HADR = TMP; RANK = MR
    def offs_pre():
        e(f"""
        v_lshrrev_b32 v{tA}, 2, v1
        v_lshlrev_b32 v{tA}, 11, v{tA}
        s_lshl_b32 s{s_t0}, s{s_w}, 16
        s_lshl_b32 s{s_t1}, s{s_b}, 3
        s_add_u32 s{s_t0}, s{s_t0}, s{s_t1}
        s_add_u32 s16, s{s_t0}, {WS_OFF}
        s_add_u32 s17, s16, 32768
        """)
    def offs_loads():
        for i in range(2):
            e.v('off', f"buffer_load_dwordx2 {vr(OFFV+2*i,2)}, v{tA}, {sr(sWS,4)}, s{16+i} offen{SC}")
    cRD = 173; RA = PRE0; RD = PRE1; aAr = PRE1 + 6; aDr = PRE1 + 8; vU = PRE1 + 10; vD = PRE1 + 12; s_ovf = s_need
    smask = lambda k: sMASK + 2 * k
    def rec_pre():
        e(f"""
        s_mov_b32 s{s_t0}, {RECB}
        v_lshrrev_b32 v{cREC}, 2, v1
        v_and_b32 v{vT2D}, 3, v1
        v_mul_u32_u24 v{cREC}, s{s_t0}, v{cREC}
        v_mad_u32_u24 v{vT2D}, v{vT2D}, 6, s{s_done}
        s_mul_i32 s{s_o}, s{s_w}, {32*RECB}
        s_add_u32 s{s_o+1}, s{s_o}, {16*RECB}
        v_add_u32 v{cRD}, v{cREC}, v{vT2D}
        v_add_u32 v{cRD}, {DOFF}, v{cRD}
        v_lshl_add_u32 v{cREC}, v{vT2D}, 2, v{cREC}
        s_add_u32 s{s_o+2}, s{s_done}, 24
        """)
    def rec_loads(waits, tag):
        if waits: e("s_waitcnt vmcnt(0)")
        for i in range(2):
            e(f"""
            v_bfe_u32 v{vU+i}, v{OFFV+2*i}, 12, 12
            v_and_b32 v{tA}, 0xfff, v{OFFV+2*i}
            v_sub_u32 v{vD+i}, v{vU+i}, v{vT2D}
            v_add_u32 v{aDr+i}, v{tA}, v{cRD}
            v_cmp_lt_i32 {sr(smask(6*i),2)}, 0, v{vD+i}
            v_lshl_add_u32 v{aAr+i}, v{tA}, 2, v{cREC}
            v_cmp_lt_i32 {sr(smask(6*i+4),2)}, 4, v{vD+i}
            s_mov_b64 exec, {sr(smask(6*i),2)}
            buffer_load_dwordx2 {vr(RD+2*i,2)}, v{aDr+i}, {sr(sWS,4)}, s{s_o+i} offen{RN}
            s_mov_b64 exec, -1
            """)
        e(f"v_max_u32 v{vMX}, v{vU}, v{vU+1}")
        for i in range(2):
            e(f"""
            s_mov_b64 exec, {sr(smask(6*i),2)}
            buffer_load_dwordx4 {vr(RA+6*i,4)}, v{aAr+i}, {sr(sWS,4)}, s{s_o+i} offen{RN}
            s_mov_b64 exec, {sr(smask(6*i+4),2)}
            buffer_load_dwordx2 {vr(RA+6*i+4,2)}, v{aAr+i}, {sr(sWS,4)}, s{s_o+i} offen offset:16{RN}
            """)
        e(f"s_mov_b64 exec, -1\nv_cmp_lt_u32 vcc, s{s_o+2}, v{vMX}\ns_mov_b32 s{s_ovf}, 0")
        for i in range(2):
            for u in (1, 2, 3, 5): e(f"v_cmp_lt_i32 {sr(smask(6*i+u),2)}, {u}, v{vD+i}")
        e(f"s_cbranch_vccnz K_ovl{tag}\nK_ovlb{tag}:")
        t = f"K_ovl{tag}:\ns_mov_b32 s{s_ovf}, 1\nv_and_b32 v{tA}, 3, v1\nv_lshlrev_b32 v{tB}, 2, v{tA}\nv_subrev_u32 v{tB}, 24, v{tB}\n"
        for i in range(2):
            t += f"""v_add_u32 v{HADR+i}, v{vD+i}, v{tB}
            v_sub_u32 v{aDr+i}, v{aDr+i}, v{tB}
            v_lshlrev_b32 v{tA}, 2, v{tB}
            v_cmp_lt_i32 {sr(smask(12+2*i),2)}, 0, v{HADR+i}
            v_sub_u32 v{aAr+i}, v{aAr+i}, v{tA}
            v_cmp_lt_i32 {sr(smask(13+2*i),2)}, 1, v{HADR+i}
            s_mov_b64 exec, {sr(smask(12+2*i),2)}
            buffer_load_ushort v{RD+4+i}, v{aDr+i}, {sr(sWS,4)}, s{s_o+i} offen{RN}
            buffer_load_dwordx2 {vr(RA+12+2*i,2)}, v{aAr+i}, {sr(sWS,4)}, s{s_o+i} offen{RN}
            s_mov_b64 exec, -1
            """
        ovf_blocks.append(t + f"s_branch K_ovlb{tag}")
        e.vm = []
    ovf_blocks = []
    def sdwa(d, sh, k):
        r, b = (RD + 2 * (k // 6) + ((k % 6) >> 2), (k % 6) & 3) if k < 12 else (RD + 4 + ((k - 12) >> 1), k & 1)
        return f"v_lshlrev_b32_sdwa v{d}, {sh}, v{r} dst_sel:DWORD dst_unused:UNUSED_PAD src0_sel:DWORD src1_sel:BYTE_{b}"
    def ovf_call(name, body):
        e(f"s_cmp_lg_u32 s{s_ovf}, 0\ns_cbranch_scc1 K_ov{name}\nK_ov{name}b:")
        ovf_blocks.append(f"K_ov{name}:\n" + body + f"\ns_mov_b64 exec, -1\ns_branch K_ov{name}b")
    def loop_consts():
        e(f"""
        s_lshl_b32 s{s_stg}, s{s_w}, 12
        s_add_u32 s{s_stg}, s{s_stg}, {L_STG}
        v_lshlrev_b32 v{cRA}, 3, v1
        v_lshlrev_b32 v{cTA}, 3, v{o8}
        v_lshl_add_u32 v{HADR+8}, v{rho}, 7, s{s_stg}
        v_xor_b32 v{HADR+9}, v{hb}, v{f3}
        """)
        for s_ in range(4):
            if s_: e(f"v_xor_b32 v{cHS+s_}, {2*s_}, v{HADR+9}\nv_lshl_add_u32 v{cHS+s_}, v{cHS+s_}, 4, v{HADR+8}")
            else: e(f"v_lshl_add_u32 v{cHS}, v{HADR+9}, 4, v{HADR+8}")
        e(f"""
        s_lshl_b32 s{s_t0}, s{s_w}, 11
        s_add_u32 s{s_t0}, s{s_t0}, {L_MM}
        v_lshl_add_u32 v{cMW}, v{rho}, 6, s{s_t0}
        v_lshl_or_b32 v{cMW}, v{f3}, 3, v{cMW}
        v_mov_b32 v{vMA}, v{cMW}
        v_lshl_or_b32 v{HADR+8}, v{hb}, 2, v{r4}
        v_lshrrev_b32 v{HADR+9}, 1, v{HADR+8}
        v_xor_b32 v{HADR+9}, v{HADR+9}, v{slot}
        v_lshl_add_u32 v{HADR+8}, v{HADR+8}, 6, s{s_t0}
        v_lshl_add_u32 v{cM}, v{HADR+9}, 3, v{HADR+8}
        v_xor_b32 v{HADR+9}, 4, v{HADR+9}
        v_lshl_add_u32 v{cM+1}, v{HADR+9}, 3, v{HADR+8}
        v_add_u32 v{cM+1}, 0x200, v{cM+1}
        v_mul_u32_u24 v{cAW}, {ATS}, v{r4}
        v_lshl_add_u32 v{cAW}, v{slot}, 3, v{cAW}
        s_mov_b32 s{s_t0}, {L_WDA-L_ATAB}
        v_mad_i32_i24 v{cAW}, v{hb}, s{s_t0}, v{cAW}
        v_add_u32 v{cAW}, {L_ATAB}, v{cAW}
        v_mov_b32 v{vAWA}, v{cAW}
        v_mul_u32_u24 v{cF}, {ACS}, v{hb}
        v_lshl_add_u32 v{cF}, v{rho}, 3, v{cF}
        v_add_u32 v{cF}, {L_ACC}, v{cF}
        v_lshl_or_b32 v{cP}, v{r4}, 1, v{hb}
        v_lshlrev_b32 v{cP}, 5, v{cP}
        v_add_u32 v{cP}, {L_PACC}, v{cP}
        v_lshlrev_b32 v{wx0}, 16, v{wx0}
        v_lshlrev_b32 v{wx1}, 16, v{wx1}
        v_add_u32 v{IDX+1}, 0xc00, v{IDX+1}
        v_add_u32 v{IDX+3}, 0x800, v{IDX+3}
        v_add_u32 v{IDX+5}, 0x400, v{IDX+5}
        s_mov_b32 s{sLO}, -1
        v_mov_b32 v{SCR+19}, 0x1000000
        s_mov_b32 s{sLO+1}, 0
        s_mov_b32 s{sQ}, 0x11111111
        s_mov_b32 s{sQ+1}, 0x11111111
        s_mov_b32 s{sC}, {NLOG2E}
        s_mov_b32 s{sC+1}, {NLOG2E}
        """)
        if fold: e(f"v_mul_f32 v{wx0}, {NLN2}, v{wx0}\nv_mul_f32 v{wx1}, {NLN2}, v{wx1}")
        for r in list(range(OH1A, OH1A + 8)) + list(range(OH2, OH2 + 8)): e(f"v_mov_b32 v{r}, 0")

    cpos = opt.get('cpos', 2)
    offs_pre()
    if cpos == 0: loop_consts(); rec_pre()
    stamp('side')
    if opt.get('early') == 3: offs_loads(); nrow += 2
    e(f"s_waitcnt vmcnt({nrow}) lgkmcnt(0)\ns_barrier")
    e.ds = []; e.vm = []
    stamp('Bd2')
    e(f"""
    s_cmp_eq_u32 s{s_w}, 3
    s_cselect_b64 exec, 1, 0
    buffer_store_dwordx2 {vr(TK,2)}, v{ZQ}, {sr(sWS,4)}, s14 offen{SC}
    s_mov_b64 exec, -1
    ds_read_b128 {vr(ID,4)}, v{ID} offset:{L_OHT}
    ds_read_b128 {vr(ID+4,4)}, v{ID+4} offset:{L_OHT}
    """)
    RS = SCR; aA = SCR + 16; aPO = SCR + 17; aPA = SCR + 18; oP = SCR + 19; aW = SCR + 20; aR = SCR + 22
    def epi_consts():
        t0_, t1_, t2_, rho, hb, f3, c4 = range(TMP, TMP + 7)
        e(f"""
        v_and_b32 v{rho}, 31, v1
        v_lshrrev_b32 v{hb}, 5, v1
        v_bfe_u32 v{f3}, v1, 1, 3
        v_and_b32 v{c4}, 3, v1
        s_lshl_b32 s{s_t0}, s{s_rb}, 5
        v_add_u32 v{t0_}, s{s_t0}, v{rho}
        v_mul_u32_u24 v{aA}, {ACS}, v{t0_}
        v_lshl_add_u32 v{aA}, v{hb}, 6, v{aA}
        v_add_u32 v{aA}, {L_ACC}, v{aA}
        v_lshlrev_b32 v{aPO}, 2, v0
        v_lshlrev_b32 v{aPA}, 3, v0
        v_add_u32 v{aPA}, {L_PACC}, v{aPA}
        v_lshrrev_b32 v{oP}, 2, v0
        v_cmp_gt_u32 vcc, {NPB}, v{oP}
        v_cmp_gt_u32 {sr(s_o,2)}, 3, v{c4}
        v_add_u32 v{oP}, s{s_nb0}, v{oP}
        v_mul_u32_u24 v{oP}, 6, v{oP}
        v_lshl_add_u32 v{oP}, v{c4}, 1, v{oP}
        s_and_b64 vcc, {sr(s_o,2)}, vcc
        v_mov_b32 v{t2_}, 0x1000000
        v_and_b32 v{t0_}, 3, v{f3}
        v_cndmask_b32 v{oP}, v{t2_}, v{oP}, vcc
        v_lshlrev_b32 v{t1_}, 1, v{hb}
        v_xor_b32 v{t1_}, v{t1_}, v{t0_}
        v_lshl_add_u32 v{aW}, v{rho}, 6, s{s_stg}
        v_lshl_add_u32 v{aW}, v{t1_}, 4, v{aW}
        v_xor_b32 v{aW+1}, 16, v{aW}
        v_lshl_add_u32 v{aR}, v1, 4, s{s_stg}
        """)
        for r in range(8):
            e(f"v_lshlrev_b32 v{RS+2*r}, 16, v{HR+r}\nv_and_b32 v{RS+2*r+1}, 0xffff0000, v{HR+r}")
        if dhs:
            for i in range(0, 16, 2): e(f"v_pk_mul_f32 {vr(DH+i,2)}, {vr(DH+i,2)}, {sr(sC,2)}")
            e(f"s_mov_b32 s{sC}, {NLN2}\ns_mov_b32 s{sC+1}, {NLN2}")

    epos = opt.get('epos', 1)
    nz = opt.get('nz', 8)
    Z = [f"ds_write_b128 v{T0+3}, {vr(ZQ,4)} offset:{8192*r}" for r in range(7)]
    Z.append(f"s_mov_b64 exec, vcc\nds_write_b128 v{T0+3}, {vr(ZQ,4)} offset:{8192*7}\ns_mov_b64 exec, -1")
    for z in Z[:nz]: e(z)
    early = opt.get('early', 0)
    if early == 1: offs_loads()
    if cpos == 2: loop_consts()
    if early == 2: offs_loads()
    if epos == 2: epi_consts()
    if cpos == 2: rec_pre()
    if opt.get('isl'): e(f"s_sleep {opt.get('isl')}")
    if not early:
        if opt.get('zw', 1): e("s_waitcnt lgkmcnt(0)")
        offs_loads()
    for z in Z[nz:]: e(z)
    if cpos == 1: loop_consts(); rec_pre()
    e(f"s_mov_b32 s{s_t0}, 0\nK_poll:\ns_waitcnt vmcnt(0)")
    if opt.get('pst'): e(f"s_memrealtime s[0:1]\ns_min_u32 s2, s{s_t0}, 20\ns_add_u32 m0, s2, 32\ns_waitcnt lgkmcnt(0)\nv_writelane_b32 v{vST}, s0, m0\nv_writelane_b32 v{vST}, s{s_t0}, 24")
    for i in range(2):
        e(f"v_xor_b32 v{HADR+2*i}, s61, v{OFFV+2*i}\nv_xor_b32 v{HADR+2*i+1}, s60, v{OFFV+2*i+1}")
    for i in range(2): e(f"v_lshrrev_b32 v{HADR+2*i}, 24, v{HADR+2*i}")
    for i in range(2): e(f"v_or_b32 v{HADR+2*i}, v{HADR+2*i}, v{HADR+2*i+1}")
    for i in range(2): e(f"v_cmp_ne_u32 {sr(4+2*i,2)}, 0, v{HADR+2*i}")
    e(f"""
    s_add_u32 s{s_t0}, s{s_t0}, 1
    s_cmp_gt_u32 s{s_t0}, 0x40000
    s_cbranch_scc1 K_pollx
    s_or_b64 {sr(12,2)}, {sr(4,2)}, {sr(6,2)}
    s_cbranch_scc1 K_repoll
    K_pollx:
    """)
    stamp('Be'); rt(26)
    rec_loads(False, 'a')
    if epos == 0: epi_consts()
    e.ds = []
    hist1 = lambda k: f"s_mov_b64 exec, {sr(smask(k),2)}\nds_add_rtn_u32 v{RANK+k}, v{HADR+k}, v{tA} offset:{L_HIST}"
    base1 = lambda k: f"s_mov_b64 exec, {sr(smask(k),2)}\nds_read_b32 v{HADR+k}, v{HADR+k} offset:{L_BASE}"
    scat1 = lambda k: f"s_mov_b64 exec, {sr(smask(k),2)}\nds_write2_b32 v{HADR+k}, v{RA+k}, v{RANK+k} offset0:0 offset1:1"
    FLV = PS; aFL = T0; fp = opt.get('fp', 0)
    flag_load = f"buffer_load_dwordx2 {vr(FLV,2)}, v{aFL}, {sr(sWS,4)}, s62 offen{SC}"
    e(f"""
    K_hist:
    v_mov_b32 v{tA}, 1
    v_and_b32 v{aFL}, 31, v1
    v_lshlrev_b32 v{aFL}, 7, v{aFL}
    s_lshl_b32 s62, s{s_w}, 12
    s_add_u32 s62, s62, {WS_FLG}
    """)
    for i in range(2):
        e(f"s_waitcnt vmcnt({5 - i + (1 if fp == 1 and i else 0)})")
        if i == 0: stamp('rec')
        if fp == 1 and i == 0: e(flag_load)
        if fp == 2 and i == 1: e(flag_load)
        for k in range(6 * i, 6 * i + 6): e(sdwa(HADR + k, 2, k))
        for k in range(6 * i, 6 * i + 6): e(hist1(k))
        e("s_mov_b64 exec, -1")
    ovf_call('h', "s_waitcnt vmcnt(0)\n" + "\n".join(sdwa(HADR + k, 2, k) for k in range(12, 16)) + "\n" + "\n".join(hist1(k) for k in range(12, 16)))
    if fp == 0: e(flag_load)
    e(f"""
    s_waitcnt lgkmcnt(0)
    s_barrier
    """)
    stamp('B1')
    e(f"""
    ds_read_b64 v[{OFFV+8}:{OFFV+9}], v{cRA} offset:{L_HIST}
    s_add_u32 s{s_t0}, s{s_done}, s{s_take}
    v_cmp_lt_u32 vcc, s{s_t0}, v{vMX}
    s_waitcnt lgkmcnt(0)
    v_add_u32 v{tA}, v{OFFV+8}, v{OFFV+9}
    v_mov_b32 v{tB}, v{tA}
    """)
    wave_scan(e, tB)
    e(f"""
    v_sub_u32 v{OFFV+10}, v{tB}, v{tA}
    v_readlane_b32 s{s_T}, v{tB}, 63
    v_add_u32 v{OFFV+11}, v{OFFV+10}, v{OFFV+8}
    ds_write_b64 v{cRA}, v[{OFFV+10}:{OFFV+11}] offset:{L_BASE}
    s_cmp_gt_u32 s{s_T}, {CAP}
    s_cbranch_scc1 K_retry
    """)
    for k in range(12): e(base1(k))
    e(f"""
    s_mov_b64 exec, -1
    s_cbranch_vccnz K_setflag
    K_flagset:
    s_add_u32 s{s_t1}, s{s_T}, 31
    s_lshr_b32 s{s_t1}, s{s_t1}, 5
    s_lshr_b32 s{s_t0}, s{s_t1}, 3
    s_and_b32 s{s_t1}, s{s_t1}, 7
    s_mul_i32 s{s_p}, s{s_w}, s{s_t0}
    s_min_u32 s{s_t2}, s{s_w}, s{s_t1}
    s_add_u32 s{s_p}, s{s_p}, s{s_t2}
    s_add_u32 s{s_end}, s{s_p}, s{s_t0}
    s_cmp_lt_u32 s{s_w}, s{s_t1}
    s_addc_u32 s{s_end}, s{s_end}, 0
    s_lshl_b32 s{s_p}, s{s_p}, 5
    s_lshl_b32 s{s_end}, s{s_end}, 5
    s_min_u32 s{s_end}, s{s_end}, s{s_T}
    s_lshl_b32 s{s_t0}, s{s_T}, 3
    v_add_u32 v{tA}, s{s_t0}, v{cRA}
    s_mov_b32 s63, 0
    K_flg:
    s_waitcnt vmcnt(0)
    v_cmp_ne_u32 vcc, s60, v{FLV}
    v_cmp_ne_u32 {sr(0,2)}, s61, v{FLV+1}
    s_lshr_b32 s{s_t0}, s{s_c}, 3
    s_lshl_b32 s{s_t1}, s{s_w}, 5
    s_or_b64 vcc, vcc, {sr(0,2)}
    s_cbranch_scc1 K_reflg
    K_flgok:
    s_add_u32 s{s_t0}, s{s_t0}, s{s_t1}
    s_and_b32 s{s_t1}, s{s_t0}, 7
    s_lshl_b32 s{s_t1}, s{s_t1}, 5
    s_lshr_b32 s{s_t0}, s{s_t0}, 3
    s_add_u32 s{s_t0}, s{s_t0}, s{s_t1}
    s_mul_i32 s{s_t0}, s{s_t0}, {NPB}
    """)
    if opt.get('pfp'):
        e(f"s_add_u32 s{s_t1}, s{s_t0}, 7\ns_and_b32 s{s_t1}, s{s_t1}, -8\nv_lshl_add_u32 v{PS}, v1, 3, s{s_t1}\ns_mov_b64 exec, 0x7ff\nbuffer_load_dword v{PS}, v{PS}, {sr(sPF,4)}, 0 idxen{SC}\ns_mov_b64 exec, -1")
    if opt.get('pfb'):
        e(f"v_add_u32 v{PS+1}, s{s_t0}, v1\ns_bfm_b64 exec, {opt.get('pfb')}, 0\nbuffer_load_dword v{PS+1}, v{PS+1}, {sr(sH,4)}, 0 idxen offset:3072{SC}\ns_mov_b64 exec, -1")
    for q in range(3):
        e("s_waitcnt lgkmcnt(8)")
        for k in range(4 * q, 4 * q + 4): e(f"v_add_lshl_u32 v{HADR+k}, v{HADR+k}, v{RANK+k}, 3")
        for k in range(4 * q, 4 * q + 4): e(sdwa(RANK + k, 4, k))
        for k in range(4 * q, 4 * q + 4): e(scat1(k))
        e("s_mov_b64 exec, -1")
    X4 = range(12, 16)
    ovf_call('s', "\n".join(base1(k) for k in X4) + "\ns_mov_b64 exec, -1\ns_waitcnt lgkmcnt(0)\n"
             + "\n".join(f"v_add_lshl_u32 v{HADR+k}, v{HADR+k}, v{RANK+k}, 3" for k in X4) + "\n"
             + "\n".join(sdwa(RANK + k, 4, k) for k in X4) + "\n" + "\n".join(scat1(k) for k in X4))
    e(f"""
    s_cmp_lg_u32 s{s_w}, 7
    s_cbranch_scc1 K_nopad
    ds_write_b64 v{tA}, v[{ZQ}:{ZQ+1}] offset:{L_REC}
    K_nopad:
    s_lshl_b32 s{s_p8}, s{s_p}, 3
    s_mov_b32 s{s_lim}, 0
    s_mov_b32 s{s_nbCur}, 0
    v_add_u32 v{vRA}, s{s_p8}, v{cRA}
    v_add_u32 v{vTA}, s{s_p8}, v{cTA}
    """)
    for r in range(8): e(f"v_mov_b32 v{MR+r}, 0")
    e("s_waitcnt lgkmcnt(0)\ns_barrier")
    e.ds = []; e.vm = []
    spin(3)
    stamp('B2')
    e(f"s_cmp_ge_u32 s{s_p}, s{s_end}\ns_cbranch_scc1 {'K_skip' if epos == 1 else 'K_wavedone'}")

    tail = []
    D = lambda tag, t: (lambda: e.d(tag, t))
    V = lambda tag, t: (lambda: e.v(tag, t))
    def rec_read():
        return [D('rw', f"ds_read_b64 v[{RW}:{RW+1}], v{vRA} offset:{L_REC}"), D('rw', f"ds_read_u16 v{vPI}, v{vRA} offset:{L_REC}")]
    def window_pre():
        return [f"s_sub_u32 s{s_rem}, s{s_end}, s{s_p}", f"s_min_u32 s{s_need}, s{s_rem}, 64", f"s_bfm_b64 {sr(sMV,2)}, s{s_rem}, 0",
                f"s_cmp_ge_u32 s{s_rem}, 64", f"s_cselect_b64 {sr(sMV,2)}, -1, {sr(sMV,2)}", f"s_mov_b32 s{s_flN}, 0"]
    def window():
        l = e.lab("K_win")
        tail.append(f"""
        {l}a:
        v_readfirstlane_b32 s{s_nbN}, v{RW+1}
        s_mov_b32 s{s_flN}, 1
        s_add_u32 s{s_lim}, s{s_nbN}, 128
        v_cmp_gt_u32 vcc, s{s_lim}, v{RW+1}
        s_nop 0
        s_and_b64 {sr(sMK,2)}, vcc, {sr(sMV,2)}
        s_bcnt1_i32_b64 s{s_cntN}, {sr(sMK,2)}
        s_branch {l}b
        """)
        return [lambda: (e.wds('rw'), e(f"v_cmp_gt_u32 vcc, s{s_lim}, v{RW+1}")),
                V('ps', f"buffer_load_dwordx3 {vr(PS,3)}, v{vPI}, {sr(sPF,4)}, 0 idxen{FL[opt.get('pg', 2)]}"),
                D('pd', f"ds_read_b128 {vr(PD,4)}, v{RW+1} offset:{L_POSD}"),
                f"s_and_b64 {sr(sMK,2)}, vcc, {sr(sMV,2)}",
                f"s_bcnt1_i32_b64 s{s_cntN}, {sr(sMK,2)}",
                f"s_cmp_lg_u32 s{s_cntN}, s{s_need}",
                f"s_cbranch_scc1 {l}a\n{l}b:",
                f"s_add_u32 s{s_pn}, s{s_p}, s{s_cntN}" + (f"\ns_and_b32 s0, s{s_dbg}, 7\ns_cselect_b32 s{s_pn}, s{s_p}, s{s_pn}" if opt.get('x_rep') else "")]
    def idx_read(off): return [D('idx', f"ds_read_u16 v{IDX+2*j}, v{vTA} offset:{L_REC+off+64*j}") for j in range(4)]
    def hs_read(): return [D('hs', f"ds_read_b128 {vr(HS+4*s_,4)}, v{cHS+s_}") for s_ in range(4)]
    def oh2_read(): return [D('oh2', f"ds_read_b64_tr_b16 {vr(OH2+4*s_+2*t,2)}, v{cM+t} offset:{1024*s_}") for s_ in range(2) for t in range(2)]
    def aw_read():
        return [f"s_mul_i32 s{s_t0}, s{s_nbN}, {ATS//16}",
                f"s_mov_b64 exec, {sr(sLO,2)}\nv_add_u32 v{vAWA}, s{s_t0}, v{cAW}\ns_mov_b64 exec, -1"] + \
               [D('aw', f"ds_read_b64_tr_b16 {vr(AW+4*blk+2*t,2)}, v{vAWA} offset:{4*ATS*t+64*blk}") for blk in range(2) for t in range(2)]
    def aw_cond():
        t = f"K_aw:\ns_mul_i32 s{s_t0}, s{s_nbN}, {ATS//16}\ns_mov_b64 exec, {sr(sLO,2)}\nv_add_u32 v{vAWA}, s{s_t0}, v{cAW}\ns_mov_b64 exec, -1\n"
        t += "\n".join(f"ds_read_b64_tr_b16 {vr(AW+4*blk+2*t_,2)}, v{vAWA} offset:{4*ATS*t_+64*blk}" for blk in range(2) for t_ in range(2))
        tail.append(t + "\ns_branch K_awb")
        return [f"s_cmp_lg_u32 s{s_flN}, 0", "s_cbranch_scc1 K_aw\nK_awb:"]
    def m_b():
        return [D('mc', f"ds_write_b64 v{vMA}, v[{ZQ}:{ZQ+1}]"),
                f"s_mov_b32 exec_lo, 0\ns_mov_b32 exec_hi, s{s_mkB}\nds_write_b64 v{vMA}, v[{WP}:{WP+1}]\ns_mov_b64 exec, -1"]
    def misc():
        t0, t1, t2, t3 = T0, T0 + 1, T0 + 2, T0 + 3
        t4 = PD + 3
        L = [D('mc', f"ds_write_b64 v{vMA}, v[{ZQ}:{ZQ+1}]"),
             f"""v_subrev_u32 v{t0}, s{s_nbN}, v{RW+1}
             v_sub_f32 v{t1}, v{PD}, v{PS}
             v_sub_f32 v{t2}, v{PD+1}, v{PS+1}
             v_sub_f32 v{t3}, v{PD+2}, v{PS+2}
             v_min_u32 v{OH1A}, 0x80, v{t0}
             v_mul_f32 v{t4}, v{t1}, v{t1}
             v_lshrrev_b32 v{t0}, 1, v{OH1A}
             v_fmac_f32 v{t4}, v{t2}, v{t2}
             v_cvt_pk_bf16_f32 v{WP}, 1.0, v{t1}
             v_fmac_f32 v{t4}, v{t3}, v{t3}
             v_cvt_pk_bf16_f32 v{WP+1}, v{t2}, v{t3}
             v_cvt_pk_bf16_f32 v{OH1B}, v{t4}, v{RW}
             v_xor_b32 v{vMA}, v{t0}, v{cMW}""",
             f"s_mov_b32 s{s_mkB}, s{sMK+1}",
             f"v_permlane32_swap_b32 v{OH1A}, v{OH1B}" + (f"\nv_mov_b32 v{OH1A+1}, v{OH1A}\nv_mov_b32 v{OH1B+1}, v{OH1B}" if fold and opt.get('lo', 1) else ""),
             lambda: (e(f"s_and_b64 exec, {sr(sMK,2)}, {sr(sLO,2)}\nds_write_b64 v{vMA}, v[{WP}:{WP+1}]\ns_mov_b64 exec, {sr(sLO,2)}"), e.d('oh1', f"ds_read_b128 {vr(OH1A,4)}, v{OH1A} offset:{L_OHT}"),
                      e.d('oh1', f"ds_read_b128 {vr(OH1B,4)}, v{OH1B} offset:{L_OHT}"), e("s_mov_b64 exec, -1"))]
        return L
    def dma():
        return [V('dma', f"buffer_load_dwordx4 {vr(IDX+2*j,2)}, {sr(sH,4)}, 0 idxen offen offset:{1024*j}{FL[opt.get('gf', 2)]} lds") for j in range(4)]
    def run(L, gap=False):
        for x in L:
            if callable(x): x()
            else:
                e(x)
                if gap and 'm0' in x: e("s_nop 0")
    def flush(snb):
        e(f"s_mul_i32 s{s_t0}, s{snb}, {ACS//16}\nv_lshl_add_u32 v{T0+1}, s{snb}, 1, v{cP}\nv_add_u32 v{T0}, s{s_t0}, v{cF}")
        R = [4 * j + 1 + c for j in range(4) for c in range(3)]
        for blk, A in enumerate((ACC0, ACC1)):
            if fold and not dhs:
                for j in range(4): e(f"v_mul_f32 v{A+4*j}, {NLN2}, v{A+4*j}")
            if blk == 0:
                for r in R: e(f"v_mul_f32 v{ACC0+r}, v{ACC0+r}, v{wx0}")
            for j in range(4): e(f"v_cvt_f64_f32 {vr(TMP+4*j+2*blk,2)}, v{A+4*j}")
        for j in range(4):
            e(f"ds_add_f64 v{T0}, {vr(TMP+4*j,2)} offset:{2*ACS*j}\nds_add_f64 v{T0}, {vr(TMP+4*j+2,2)} offset:{2*ACS*j+256}")
        for r in R: e(f"v_fmac_f32 v{ACC0+r}, v{ACC1+r}, v{wx1}")
        e(mfma(ACC1, ZQ, ZQ))
        lo = [ACC0 + 4 * j + 1 + c for j in range(2) for c in range(3)]
        for r in lo: e(f"v_add_f32_dpp v{r}, v{r}, v{r} row_ror:8 row_mask:0xf bank_mask:0x3")
        for r in lo: e(f"v_add_f32_dpp v{r}, v{r+8}, v{r+8} row_ror:8 row_mask:0xf bank_mask:0xc")
        lo = [ACC0 + 1 + c for c in range(3)]
        for r in lo: e(f"v_add_f32_dpp v{r}, v{r}, v{r} row_half_mirror row_mask:0xf bank_mask:0x5")
        for r in lo: e(f"v_add_f32_dpp v{r}, v{r+4}, v{r+4} row_half_mirror row_mask:0xf bank_mask:0xa")
        for r in lo: e(f"v_add_f32_dpp v{r}, v{r}, v{r} quad_perm:[1,0,3,2] row_mask:0xf bank_mask:0xf")
        for r in lo: e(f"v_add_f32_dpp v{r}, v{r}, v{r} quad_perm:[2,3,0,1] row_mask:0xf bank_mask:0xf")
        for c in range(3): e(f"v_cvt_f64_f32 {vr(TMP+2*c,2)}, v{ACC0+1+c}")
        e(mfma(ACC0, ZQ, ZQ))
        e(f"s_mov_b64 exec, {sr(sQ,2)}")
        for c in range(3): e(f"ds_add_f64 v{T0+1}, {vr(TMP+2*c,2)} offset:{8*c}")
        e("s_mov_b64 exec, -1")
    def gemm1(q, blk, oh1):
        return [mfma(q, oh1, AW + 4 * blk, None)] + [mfma(q, HS + 8 * blk + 4 * s_, ID + 4 * s_, q) for s_ in range(2)]
    def seg(acc): return [mfma(acc, OH2 + 4 * s_, MR + 4 * s_, acc) for s_ in range(2)]
    def phase(P, G, S, pre, side):
        head = []
        if not fold:
            head = [f"v_pk_mul_f32 {vr(TMP+i,2)}, {vr(P+i,2)}, {sr(sC,2)}" for i in range(0, 16, 2)]
            ex = [f"v_exp_f32 v{TMP+i}, v{TMP+i}" for i in range(16)]
        else:
            ex = [f"v_exp_f32 v{TMP+i}, v{P+i}" for i in range(16)]
        base = []
        for m, x in enumerate([G[0], S[0], S[1]]): base += [x] + ex[4 * m:4 * m + 4]
        base += ex[12:]
        if not pair:
            base += [f"v_pk_add_f32 {vr(TMP+i,2)}, {vr(TMP+i,2)}, 1.0 op_sel_hi:[1,0]" for i in range(0, 16, 2)]
            rc = [f"v_rcp_f32 v{TMP+i}, v{TMP+i}" for i in range(16)]
            for m, x in enumerate(G[1:3]): base += [x] + rc[4 * m:4 * m + 4]
            base += rc[8:]
            base += [f"v_pk_mul_f32 {vr(TMP+i,2)}, {vr(P+i,2)}, {vr(TMP+i,2)}" for i in range(0, 16, 2)]
            base += [f"v_cvt_pk_bf16_f32 v{MR+i//2}, v{TMP+i}, v{TMP+i+1}" for i in range(0, 16, 2)]
        else:
            R2 = HR
            base += [f"v_pk_fma_f32 {vr(TMP+i,2)}, {vr(TMP+i,2)}, {sr(s_o,2)}, {sr(s_o,2)} clamp" for i in range(0, 16, 2)]
            base += [f"v_pk_mul_f32 {vr(R2+i//2,2)}, {vr(TMP+i,2)}, {vr(TMP+i+2,2)}" for i in range(0, 16, 4)]
            rc = [f"v_rcp_f32 v{R2+i}, v{R2+i}" for i in range(8)]
            base += [G[1]] + rc[:3] + [G[2]] + rc[3:]
            base += [f"v_pk_mul_f32 {vr(TMP+i,2)}, {vr(TMP+i,2)}, {vr(R2+2*(i//4),2)}" for i in range(0, 16, 2)]
            base += [f"v_pk_mul_f32 {vr(TMP+i,2)}, {vr(TMP+i,2)}, {vr(P+(i^2),2)}" for i in range(0, 16, 2)]
            base += [f"v_cvt_pk_bf16_f32 v{MR+i//2}, v{TMP+(i^2)}, v{TMP+(i^2)+1}" for i in range(0, 16, 2)]
        assert len(base) == (65 if pair else 61)
        if opt.get('plain', 0) & 1:
            base = [x if 'v_pk_add' not in x else None for x in base]
            k = 0
            for i, x in enumerate(base):
                if x is None: base[i] = f"v_add_f32 v{TMP+k}, 1.0, v{TMP+k}\nv_add_f32 v{TMP+k+1}, 1.0, v{TMP+k+1} ; v_pk_"; k += 2
        if opt.get('plain', 0) & 2:
            k = 0
            for i, x in enumerate(base):
                if 'v_pk_mul' in x: base[i] = f"v_mul_f32 v{TMP+k}, v{P+k}, v{TMP+k}\nv_mul_f32 v{TMP+k+1}, v{P+k+1}, v{TMP+k+1} ; v_pk_"; k += 2
        for x in head: e(x)
        q = [(st, it) for st, L in side for it in L]
        slot_ok = lambda x: 'v_pk_' in x or 'v_cvt_pk' in x
        for i, x in enumerate(base):
            if i in pre: run(pre[i])
            e(x)
            if slot_ok(x) and q and q[0][0] <= i:
                run([q.pop(0)[1]])
        assert not q, q

    if opt.get('x_rep'): e(f"s_mov_b32 s{s_dbg}, 0")
    if opt.get('pp3'): e("s_setprio 3")
    e(f"s_mov_b32 m0, s{s_stg}")
    run(rec_read()); run(idx_read(0)); run(window_pre())
    e.wds('idx')
    e.ds = ['rw']
    W = window()
    run(W[:3])
    run(dma(), True)
    run(W[3:])
    e(f"s_mov_b32 s{s_flN}, 0")
    run(aw_read())
    run(idx_read(256))
    if epos == 1:
        e(f"s_cmp_lg_u32 s{s_done}, 0\ns_cbranch_scc1 K_noepi")
        epi_consts()
        e("K_noepi:")
    wp = window_pre()
    adv = [f"s_lshl_b32 s{s_p8}, s{s_pn}, 3", f"s_mov_b32 s{s_p}, s{s_pn}", f"s_mov_b32 s{s_flush}, s{s_flN}",
           f"s_mov_b32 s{s_nbOld}, s{s_nbCur}", f"s_mov_b32 s{s_nbCur}, s{s_nbN}", f"s_mov_b32 s{s_cntCur}, s{s_cntN}"] + wp
    run(adv)
    if pair: e(f"s_mov_b32 s{s_o}, {KSC}\ns_mov_b32 s{s_o+1}, {KSC}")
    e.wvm('ps'); e.wds('pd')
    M = misc()
    run(M[:2])
    e.wvm0()
    run(hs_read())
    run(M[2:])
    e.wds('hs')
    G = [mfma(PRE0, HS, ID, None), mfma(PRE0, HS + 4, ID + 4, PRE0), mfma(PRE0, OH1A, AW, PRE0)]
    run(dma())
    e(G[0]); e(G[1]); e.wds0(); e(G[2])
    e("s_nop 5")
    if opt.get('prio', 3): e(f"s_setprio {2 if opt.get('pp3') else 3}")
    stamp('wprol')
    if opt.get('stamp'): e(f"s_mov_b32 s{s_dbg}, 0")
    if 'la' in opt:
        e(".p2align 6"); e("\n".join(["s_nop 0"] * (opt['la'] // 4))); e("K_loop:")
    else: e(".p2align 4\nK_loop:")
    loop_start = len(e.L)
    e.ds = []; e.vm = ['dma'] * 4
    if opt.get('stamp'): e(f"s_add_u32 s{s_dbg}, s{s_dbg}, 1")
    if opt.get('itst'): e(f"s_memtime s[0:1]\ns_add_u32 m0, s{s_dbg}, 31\ns_waitcnt lgkmcnt(0)\nv_writelane_b32 v{vST}, s0, m0")
    pm = opt.get('prio', 1)
    def prio_check(tag, reg, th):
        tail.append(f"""
        K_prio{tag}:
        s_setprio {1 if opt.get('pp3') == 2 else 2}
        s_cmp_le_u32 s{reg}, {th[1]}
        s_cbranch_scc0 K_priob{tag}
        s_setprio 1
        s_cmp_le_u32 s{reg}, {th[2]}
        s_cbranch_scc0 K_priob{tag}
        s_setprio 0
        s_branch K_priob{tag}
        """)
        return [f"s_cmp_le_u32 s{reg}, {th[0]}", f"s_cbranch_scc1 K_prio{tag}\nK_priob{tag}:"]
    W = window()
    hw = opt.get('hw', 19); c2 = opt.get('c2', 13); c3 = opt.get('c3', 19); c4_ = opt.get('c4', 15)
    pr = prio_check('a', s_rem, tuple(int(x) for x in str(opt.get('th', '192_64_0')).split('_'))) if pm else []
    dz = 4 if pair else 0
    phase(PRE0, gemm1(PRE1, 1, OH1A), seg(ACC1),
          {0: [f"v_add_u32 v{vRA}, s{s_p8}, v{cRA}\nv_add_u32 v{vTA}, s{s_p8}, v{cTA}"] + rec_read(), c2: oh2_read() + m_b(), c3: W[:3]},
          [(c3, W[3:]), (45 + dz, pr), (59 + dz, [f"s_cmp_lg_u32 s{s_flush}, 0"])])
    e("s_cbranch_scc1 K_flush\nK_flushb:")
    phase(PRE1, gemm1(PRE0, 0, OH1B), seg(ACC0),
          {0: [lambda: e.wvm('dma')] + hs_read() + idx_read(0), 5: [lambda: e.wds('oh2')], hw: [lambda: e.wds('idx')] + dma()},
          [(53 + dz, [f"s_cmp_gt_u32 s{s_cntCur}, 32", f"s_cselect_b32 s{s_t0}, 1, s{s_cntN}", f"s_cmp_eq_u32 s{s_t0}, 0"])])
    e("s_cbranch_scc1 K_drain")
    M = misc()
    phase(PRE0, gemm1(PRE1, 1, OH1B), seg(ACC1),
          {c2: oh2_read() + M[:1], c4_: [lambda: e.wvm('ps')] + M[1:]},
          [(19, aw_cond())] + ([(45 + dz, prio_check('b', s_rem, tuple(int(x) for x in str(opt['th2']).split('_'))))] if opt.get('th2') else []))
    phase(PRE1, gemm1(PRE0, 0, OH1A), seg(ACC0),
          {0: [lambda: e.wvm('dma')] + hs_read() + idx_read(256) + [lambda: e.wds('oh1')], hw: [lambda: e.wds('idx')] + dma()},
          [(45 + dz, adv + [f"s_cmp_lg_u32 s{s_cntN}, 0"])])
    e("s_cbranch_scc1 K_loop")
    assert e.vm == ['dma'] * 4, e.vm
    def xf(l):
        if opt.get('x_novm') and ('buffer_load' in l or 'vmcnt' in l): return False
        if opt.get('x_nods') and ('_tr_' in l or 'ds_read_b128' in l or 'ds_write' in l): return False
        rm = {'hs': [f"ds_read_b128 v[{HS+4*i}:" for i in range(4)], 'oh2': [f"ds_read_b64_tr_b16 v[{OH2+2*i}:" for i in range(4)],
              'aw': [f"ds_read_b64_tr_b16 v[{AW+2*i}:" for i in range(4)], 'pd': [f"ds_read_b128 v[{PD}:"],
              'oh1': [f"ds_read_b128 v[{OH1A}:", f"ds_read_b128 v[{OH1B}:"], 'mw': ["ds_write_b64"], 'dma': [" lds"], 'ps': ["dwordx3"],
              'mf': ['v_mfma'], 'tr': ['v_exp', 'v_rcp'], 'idx': [f"ds_read_u16 v{IDX+2*j}," for j in range(4)], 'm0': [' m0,'],
              'vmw': ['vmcnt'], 'pk': ['v_pk_'], 'cvt': [f"v_cvt_pk_bf16_f32 v{MR+i}," for i in range(8)], 'perm': ['permlane'],
              'seg': [f"v_mfma_f32_32x32x16_bf16 v[{ACC0}:", f"v_mfma_f32_32x32x16_bf16 v[{ACC1}:"]}
        for k in str(opt.get('x_rm', '')).split('+'):
            if k in rm and any(t in l for t in rm[k]): return False
        return True
    e.L = e.L[:loop_start] + [l for l in e.L[loop_start:] if xf(l)]
    e("K_drain:\ns_nop 0")
    stamp('loop')
    if opt.get('stamp'): e(f"v_writelane_b32 v{vST}, s{s_dbg}, 28")
    for x in seg(ACC1): e(x)
    e(f"ds_write_b64 v{vMA}, v[{ZQ}:{ZQ+1}]")
    flush(s_nbCur)
    e("K_wavedone:")
    e("s_setprio 0")
    e("s_waitcnt vmcnt(0) lgkmcnt(0)")
    stamp('drain')
    e("s_barrier")
    stamp('B3')
    dreg = lambda k: (PRE0 + 4 * k) if k < 8 else (ACC0 + 4 * (k - 8))
    aF = T0
    e(f"ds_read_b32 v{aF}, v{ZQ} offset:{L_FLAG}")
    for k in range(16): e(f"ds_read_b128 {vr(dreg(k),4)}, v{aA} offset:{128*(k>>2)+16*(k&3)}")
    e(f"ds_read_b64 {vr(PD,2)}, v{aPA}\nds_read_b32 v{PD+2}, v{aPO} offset:{L_POSD}")
    e(f"s_waitcnt lgkmcnt(14)\nv_readfirstlane_b32 s{s_t0}, v{aF}")
    for k in range(16):
        if k % 4 == 0 and k: e(f"s_waitcnt lgkmcnt({14-k})")
        r = dreg(k)
        e(f"v_cvt_f32_f64 v{r}, {vr(r,2)}\nv_cvt_f32_f64 v{r+1}, {vr(r+2,2)}")
        if k == 0: e(f"s_cmp_lg_u32 s{s_t0}, 0\ns_cbranch_scc1 K_more")
        if k: e(f"v_cvt_pk_bf16_f32 v{HS+k-1}, v{dreg(k-1)}, v{dreg(k-1)+1}")
        if k % 4 == 1 and k > 4: e(mfma(DH, WHM + 4 * (k // 4 - 1), HS + 4 * (k // 4 - 1), DH))
    e(f"v_cvt_pk_bf16_f32 v{HS+15}, v{dreg(15)}, v{dreg(15)+1}")
    e(f"s_waitcnt lgkmcnt(0)\nv_cvt_f32_f64 v{PD}, {vr(PD,2)}")
    e(mfma(DH, WHM + 12, HS + 12, DH))
    e(f"""
    v_add_f32 v{PD}, v{PD}, v{PD+2}
    v_cvt_pk_bf16_f32 v{PD}, v{PD}, v{PD}
    buffer_store_short v{PD}, v{oP}, {sr(sOP,4)}, 0 offen{OF}
    """)
    e("s_nop 7\ns_nop 1")
    X = TMP
    if not dhs:
        for i in range(0, 16, 2): e(f"v_pk_mul_f32 {vr(X+i,2)}, {vr(DH+i,2)}, {sr(sC,2)}")
    for i in range(16): e(f"v_exp_f32 v{X+i}, v{(DH if dhs else X)+i}")
    for i in range(0, 16, 2): e(f"v_pk_add_f32 {vr(X+i,2)}, {vr(X+i,2)}, 1.0 op_sel_hi:[1,0]")
    for i in range(16): e(f"v_rcp_f32 v{X+i}, v{X+i}")
    for hf in range(2):
        if dhs:
            for i in range(8 * hf, 8 * hf + 8, 2): e(f"v_pk_mul_f32 {vr(X+i,2)}, {vr(DH+i,2)}, {vr(X+i,2)}")
            for i in range(8 * hf, 8 * hf + 8, 2): e(f"v_pk_fma_f32 {vr(X+i,2)}, {vr(X+i,2)}, {sr(sC,2)}, {vr(RS+i,2)}")
        else:
            for i in range(8 * hf, 8 * hf + 8, 2): e(f"v_pk_fma_f32 {vr(X+i,2)}, {vr(DH+i,2)}, {vr(X+i,2)}, {vr(RS+i,2)}")
        for i in range(4 * hf, 4 * hf + 4): e(f"v_cvt_pk_bf16_f32 v{HS+i}, v{X+2*i}, v{X+2*i+1}")
        e(f"ds_write_b128 v{aW+hf}, {vr(HS+4*hf,4)}")
    e(f"ds_read_b128 {vr(HS+8,4)}, v{aR}\nds_read_b128 {vr(HS+12,4)}, v{aR} offset:1024")
    spin(2)
    stamp('epi'); rt(25)
    fin(s_b, s_w, 8, sWS, WS_STAMP, T0 + 1)
    e(f"""
    s_waitcnt lgkmcnt(1)
    buffer_store_dwordx4 {vr(HS+8,4)}, v{nd}, {sr(sOUT,4)}, 0 offen{OF}
    s_waitcnt lgkmcnt(0)
    buffer_store_dwordx4 {vr(HS+12,4)}, v{nd2}, {sr(sOUT,4)}, 0 offen offset:2048{OF}
    K_fin:
    """)
    if opt.get('x_pad') == 'fin': e("s_waitcnt vmcnt(0)"); stamp('fin')
    e("K_end:\ns_endpgm")
    e("K_flush:")
    flush(s_nbOld)
    e("s_branch K_flushb")
    for t in tail: e(t)
    e(f"""
    K_reflg:
    s_add_u32 s63, s63, 1
    s_cmp_gt_u32 s63, 0x40000
    s_cbranch_scc1 K_flgok
    buffer_load_dwordx2 {vr(FLV,2)}, v{aFL}, {sr(sWS,4)}, s62 offen{SC}
    s_branch K_flg
    """)
    e("K_repoll:")
    if opt.get('sleep', 4): e(f"s_sleep {opt.get('sleep', 4)}")
    for i in range(2):
        e(f"s_mov_b64 exec, {sr(4+2*i,2)}\nbuffer_load_dwordx2 {vr(OFFV+2*i,2)}, v{tA}, {sr(sWS,4)}, s{16+i} offen{SC}")
    e("s_mov_b64 exec, -1\ns_branch K_poll")
    for t in ovf_blocks: e(t)
    ovf_blocks.clear()
    e(f"K_setflag:\nv_mov_b32 v{tA}, 1\nv_mov_b32 v{tB}, {L_FLAG}\nds_write_b32 v{tB}, v{tA}\ns_waitcnt lgkmcnt(0)\ns_branch K_flagset")
    def zero_hist():
        e(f"""
        v_cmp_gt_u32 vcc, 65, v0
        v_lshlrev_b32 v{tA}, 4, v0
        s_nop 0
        s_mov_b64 exec, vcc
        ds_write_b128 v{tA}, {vr(ZQ,4)} offset:{L_HIST}
        s_mov_b64 exec, -1
        s_waitcnt lgkmcnt(0)
        s_barrier
        """)
    if epos == 1:
        e(f"K_skip:\ns_cmp_lg_u32 s{s_done}, 0\ns_cbranch_scc1 K_wavedone")
        epi_consts()
        e("s_branch K_wavedone")
    e("K_retry:\ns_waitcnt lgkmcnt(0)\ns_barrier")
    zero_hist()
    e(f"s_mov_b32 s{s_take}, 8\ns_mov_b32 s{s_ovf}, 0\ns_add_u32 s{s_t0}, s{s_done}, 8")
    for i in range(2):
        e(f"v_min_u32 v{tB}, s{s_t0}, v{vU+i}\nv_sub_u32 v{tB}, v{tB}, v{vT2D}")
        for u in range(6): e(f"v_cmp_lt_i32 {sr(smask(6*i+u),2)}, {u}, v{tB}")
    e("s_branch K_hist")
    e("K_more:\ns_waitcnt lgkmcnt(0)\ns_barrier")
    zero_hist()
    e(mfma(ACC0, ZQ, ZQ)); e(mfma(ACC1, ZQ, ZQ))
    for r in range(16): e(f"v_mov_b32 v{OH1A+r}, 0")
    e(f"s_add_u32 s{s_done}, s{s_done}, s{s_take}\ns_mov_b32 s{s_take}, 32")
    e.vm = []
    offs_pre(); offs_loads(); rec_pre(); rec_loads(True, 'b')
    e("s_branch K_hist")
    for t in ovf_blocks: e(t)
    s = HEADER + f"; @launch grid=({NW},1,1) block=(512,1,1) lds={LDS}\n"
    s += DOC
    s += '.amdgcn_target "amdgcn-amd-amdhsa--gfx950"\n.text\n' + e.text()
    s += KD.format(name=nm, vgpr=256, acc=256, sgpr=102)
    return s

if __name__ == "__main__":
    opt = {}
    for a in sys.argv[2:]:
        k, _, v = a.partition("="); opt[k] = (int(v) if v.isdigit() else v) if v else 1
    open(sys.argv[1], "w").write(gen(opt))
    if opt.get('stamp'): print(",".join(opt['names']))
```
